```python
import torch

def _softmax(x, axis=-1):
    return torch.softmax(x, dim=axis)
def _gelu(x):
    return torch.nn.functional.gelu(x, approximate="tanh")
def _silu(x):
    return torch.nn.functional.silu(x)
def _sigmoid(x):
    return torch.sigmoid(x)
def _layernorm(x, axis=-1, eps=1e-5):
    m = x.mean(dim=axis, keepdim=True)
    v = x.var(dim=axis, keepdim=True, unbiased=False)
    return (x - m) / torch.sqrt(v + eps)
def _scatter_add(tgt, idx, src, axis=0):
    return tgt.clone().index_add_(axis, idx, src)
def _segment_sum(src, seg, n):
    out = torch.zeros((n,) + src.shape[1:], dtype=src.dtype)
    return out.index_add_(0, seg, src)
def _pad(x, pw):
    flat = tuple(v for pair in reversed(pw) for v in pair)
    return torch.nn.functional.pad(x, flat)

kernel_name = 'gather_scatter__edge_featured_mpnn_egc__graph'

def setup_inputs():

    _w = (lambda a: (lambda t: t.to(torch.bfloat16) if t.is_floating_point() else t)(torch.as_tensor(a)))
    N, deg, D, De = 12500, 64, 64, max(4, 1)
    E = N * deg
    return {
        "x": _w((lambda *s: torch.randn(*s, dtype=torch.bfloat16) * 0.2)(N, D)),
        "e_attr": _w((lambda *s: torch.randn(*s, dtype=torch.bfloat16) * 0.2)(E, De)),
        "src": _w((lambda lo, hi, *s: torch.randint(lo, hi, s))(0, N, E).to(torch.int64)),
        "dst": _w((lambda lo, hi, *s: torch.randint(lo, hi, s))(0, N, E).to(torch.int64)),
        "u_w": _w((lambda *s: torch.randn(*s, dtype=torch.bfloat16) * 0.05)(D, D)),
        "v_w": _w((lambda *s: torch.randn(*s, dtype=torch.bfloat16) * 0.05)(D, D)),
        "g_w": _w((lambda *s: torch.randn(*s, dtype=torch.bfloat16) * 0.2)(2 * D + De, D)),
    }

def reference(x, e_attr, src, dst, u_w, v_w, g_w):
    N, D = x.shape
    g_in = torch.concatenate([x[dst], x[src], e_attr], axis=-1)
    eta = _sigmoid(g_in @ g_w)
    hv = x @ v_w
    msg = eta * hv[src]
    agg = _segment_sum(msg, dst, N)
    return _silu(x @ u_w + agg)
```

```python
import sys

NAME = "gather_scatter__edge_featured_mpnn_egc__graph"
N, E = 12500, 800000
NPB = 49
SL = 3136
WS_TB = 256
WS_T = 4 << 20
WS_REC = 5 << 20
WS_DBG = 32 << 20
WS_SIZE = 64 << 20
NLOG2E = "0xbfb8aa3b"


class Asm:
    def __init__(self):
        self.l = []

    def __call__(self, s):
        for x in s.split("\n"):
            x = x.strip()
            if x:
                self.l.append(("" if x.endswith(":") else "    ") + x)

    def text(self):
        return "\n".join(self.l) + "\n"


def vr(a, n):
    return f"v[{a}:{a+n-1}]"


def scan64(a, v):
    for sh in (1, 2, 4, 8):
        a(f"s_nop 1\nv_add_u32_dpp v{v}, v{v}, v{v} row_shr:{sh} row_mask:0xf bank_mask:0xf bound_ctrl:0")
    a(f"s_nop 1\nv_add_u32_dpp v{v}, v{v}, v{v} row_bcast:15 row_mask:0xa bank_mask:0xf")
    a(f"s_nop 1\nv_add_u32_dpp v{v}, v{v}, v{v} row_bcast:31 row_mask:0xc bank_mask:0xf")


def stamp(a, opt, kern, idx):
    if opt.get("stamps"):
        a(f"s_memrealtime s[{64+2*idx}:{65+2*idx}]")


def stamp_out(a, opt, kern, n, ws):
    if opt.get("stamps"):
        a("s_waitcnt lgkmcnt(0)")
        a(f"s_lshl_b32 s62, s2, 4\ns_add_u32 s62, s62, s3\ns_lshl_b32 s62, s62, 6\ns_add_u32 s62, s62, {WS_DBG + kern*(1<<20)}")
        a("s_mov_b64 exec, 1\nv_mov_b32 v1, 0")
        for i in range(n):
            a(f"v_mov_b32 v2, s{64+2*i}")
            a(f"buffer_store_dword v2, v1, s[{ws}:{ws+3}], s62 offen offset:{4*i}")


def gemm_job(a, LW, LX, vA, vB, vD, vt):
    a(f"""
    s_bfe_u32 s40, s3, 0x20001
    s_and_b32 s41, s3, 1
    v_and_b32 v{vt}, 15, v1
    v_lshrrev_b32 v{vt+1}, 4, v1
    s_lshl_b32 s42, s40, 11
    s_add_u32 s42, s42, {LX}
    v_lshlrev_b32 v{vt+2}, 7, v{vt}
    v_lshl_add_u32 v{vt+2}, v{vt+1}, 4, v{vt+2}
    v_add_u32 v{vt+2}, s42, v{vt+2}
    ds_read_b128 {vr(vA,4)}, v{vt+2}
    ds_read_b128 {vr(vA+4,4)}, v{vt+2} offset:64
    v_lshrrev_b32 v{vt+2}, 2, v{vt}
    v_lshl_add_u32 v{vt+2}, v{vt+1}, 3, v{vt+2}
    v_lshlrev_b32 v{vt+2}, 7, v{vt+2}
    v_and_b32 v{vt}, 3, v{vt}
    v_lshl_add_u32 v{vt+2}, v{vt}, 3, v{vt+2}
    s_lshl_b32 s42, s41, 5
    s_add_u32 s42, s42, {LW}
    v_add_u32 v{vt+2}, s42, v{vt+2}
    """)
    idx = 0
    for M in range(2):
        for t in range(2):
            for s in range(2):
                for j2 in range(2):
                    a(f"ds_read_b64_tr_b16 {vr(vB+2*idx,2)}, v{vt+2} offset:{M*8192+s*4096+j2*512+t*64}")
                    idx += 1
    for q in range(4):
        a(f"s_waitcnt lgkmcnt({12-4*q})")
        a(f"v_mfma_f32_16x16x32_bf16 {vr(vD+4*q,4)}, {vr(vA,4)}, {vr(vB+8*q,4)}, 0")
        a(f"v_mfma_f32_16x16x32_bf16 {vr(vD+4*q,4)}, {vr(vA+4,4)}, {vr(vB+8*q+4,4)}, {vr(vD+4*q,4)}")
    a("s_nop 7")


def k1(opt):
    a = Asm()
    CNT, BASE, KEYS, EA, LW, LX = 0, 1024, 2048, 14592, 40960, 57344
    sDST, sSRC, sEA, sX, sW, sV, sWS, sTB = 8, 12, 16, 20, 24, 28, 32, 36
    a(f"""
    part_kernel:
    s_cmp_ge_u32 s2, 256
    s_cbranch_scc1 L1_end
    s_load_dwordx2 s[{sDST}:{sDST+1}], s[0:1], 24
    s_load_dwordx2 s[{sSRC}:{sSRC+1}], s[0:1], 16
    s_load_dwordx2 s[{sEA}:{sEA+1}], s[0:1], 8
    s_load_dwordx2 s[{sX}:{sX+1}], s[0:1], 0
    s_load_dwordx2 s[{sW}:{sW+1}], s[0:1], 48
    s_load_dwordx2 s[{sV}:{sV+1}], s[0:1], 40
    s_load_dwordx2 s[{sWS}:{sWS+1}], s[0:1], 72
    """)
    stamp(a, opt, 0, 0)
    a(f"""
    v_readfirstlane_b32 s3, v0
    v_and_b32 v1, 63, v0
    v_lshlrev_b32 v2, 2, v0
    v_mov_b32 v3, 0
    ds_write_b32 v2, v3
    s_lshr_b32 s3, s3, 6
    s_mov_b32 s{sDST+2}, {E*4}
    s_mov_b32 s{sDST+3}, 0x20000
    s_mov_b32 s{sSRC+2}, {E*4}
    s_mov_b32 s{sSRC+3}, 0x20000
    s_mov_b32 s{sEA+2}, {E*8}
    s_mov_b32 s{sEA+3}, 0x20000
    s_mov_b32 s{sX+2}, {N*128}
    s_mov_b32 s{sX+3}, 0x20000
    s_mov_b32 s{sW+3}, 0x20000
    s_mov_b32 s{sWS+2}, {WS_SIZE}
    s_mov_b32 s{sWS+3}, 0x20000
    s_mov_b32 s{sTB+3}, 0x20000
    s_mul_i32 s4, s3, 192
    v_add_u32 v4, s4, v1
    v_lshlrev_b32 v5, 2, v4
    s_cmp_eq_u32 s3, 15
    s_cselect_b32 s5, 0, 0x40000000
    v_add_u32 v6, s5, v5
    s_mul_i32 s6, s2, {SL*4}
    v_lshlrev_b32 v7, 4, v1
    s_waitcnt lgkmcnt(0)
    """)
    vD, vS = 8, 12
    for k in range(4):
        a(f"buffer_load_dword v{vD+k}, v{5 if k<3 else 6}, s[{sDST}:{sDST+3}], s6 offen offset:{256*k}")
    a(f"""
    s_lshl_b32 s7, s3, 10
    s_add_u32 m0, s7, {LW}
    s_cmp_lt_u32 s3, 8
    s_cselect_b32 s{sW}, s{sW}, s{sV}
    s_cselect_b32 s{sW+1}, s{sW+1}, s{sV+1}
    s_mov_b32 s{sW+2}, 16384
    s_xor_b32 s42, s7, 8192
    buffer_load_dwordx4 v7, s[{sW}:{sW+3}], s42 offen lds
    s_cmp_lt_u32 s3, 9
    s_cbranch_scc1 L1_nox
    s_add_u32 m0, s7, {LX-9*1024}
    s_mul_i32 s42, s2, {NPB*128}
    s_add_u32 s42, s42, s7
    s_sub_u32 s42, s42, {9*1024}
    buffer_load_dwordx4 v7, s[{sX}:{sX+3}], s42 offen lds
    L1_nox:
    """)
    for k in range(4):
        a(f"buffer_load_dword v{vS+k}, v{5 if k<3 else 6}, s[{sSRC}:{sSRC+3}], s6 offen offset:{256*k}")
    a(f"""
    s_add_u32 m0, s7, {EA}
    s_lshl_b32 s42, s6, 1
    s_add_u32 s42, s42, s7
    buffer_load_dwordx4 v7, s[{sEA}:{sEA+3}], s42 offen lds
    s_cmp_lt_u32 s3, 9
    s_cbranch_scc0 L1_noe
    s_add_u32 m0, s7, {EA+16384}
    s_add_u32 s42, s42, 16384
    s_nop 0
    buffer_load_dwordx4 v7, s[{sEA}:{sEA+3}], s42 offen lds
    L1_noe:
    """)
    a(f"""
    s_cmp_lt_u32 s2, 255
    s_cselect_b32 s42, 49, 5
    s_mul_i32 s43, s3, 3
    """)
    for k in range(3):
        a(f"s_cmp_lt_u32 s43, s42\ns_cselect_b64 s[{44+2*k}:{45+2*k}], -1, 0\ns_add_u32 s43, s43, 1")
    a(f"""
    s_add_u32 s43, s43, s5
    s_cmp_lt_u32 s43, s42
    s_cselect_b64 s[50:51], -1, 0
    s_mov_b32 s52, -{NPB}
    v_mov_b32 v3, 1
    s_barrier
    s_waitcnt vmcnt(7)
    """)
    stamp(a, opt, 0, 1)
    vB, vR, vL = 16, 20, 24
    for k in range(4):
        a(f"""
        v_mul_u32_u24 v{vB+k}, 21400, v{vD+k}
        v_lshrrev_b32 v{vB+k}, 20, v{vB+k}
        v_mad_i32_i24 v{vL+k}, v{vB+k}, s52, v{vD+k}
        v_lshlrev_b32 v{vB+k}, 2, v{vB+k}
        s_mov_b64 exec, s[{44+2*k}:{45+2*k}]
        ds_add_rtn_u32 v{vR+k}, v{vB+k}, v3 offset:{CNT}
        s_mov_b64 exec, -1
        """)
    a(f"""
    s_waitcnt vmcnt(5) lgkmcnt(0)
    s_barrier
    """)
    stamp(a, opt, 0, 2)
    a(f"""
    s_cmp_eq_u32 s3, 0
    s_cbranch_scc0 L1_noscan
    ds_read_b128 v[28:31], v7 offset:{CNT}
    s_waitcnt lgkmcnt(0)
    v_add_u32 v33, v28, v29
    v_add_u32 v34, v33, v30
    v_add_u32 v35, v34, v31
    v_mov_b32 v36, v35
    """)
    scan64(a, 36)
    a(f"""
    v_sub_u32 v36, v36, v35
    v_add_u32 v37, v36, v28
    v_add_u32 v38, v36, v33
    v_add_u32 v39, v36, v34
    v_lshl_or_b32 v36, v28, 16, v36
    v_lshl_or_b32 v37, v29, 16, v37
    v_lshl_or_b32 v38, v30, 16, v38
    v_lshl_or_b32 v39, v31, 16, v39
    ds_write_b128 v7, v[36:39] offset:{BASE}
    s_waitcnt lgkmcnt(0)
    L1_noscan:
    s_barrier
    """)
    stamp(a, opt, 0, 3)
    vP = 28
    for k in range(4):
        a(f"ds_read_u16 v{vP+k}, v{vB+k} offset:{BASE}")
    a(f"""
    s_cmp_lt_u32 s3, 9
    s_cbranch_scc1 L1_w2
    s_waitcnt vmcnt(1)
    L1_w2:
    s_waitcnt vmcnt(2)
    v_lshlrev_b32 v32, 20, v4
    """)
    for k in range(4):
        a(f"v_lshl_or_b32 v{vS+k}, v{vS+k}, 6, v{vL+k}")
        a(f"v_or_b32 v{vS+k}, v{vS+k}, v32")
        if k < 3:
            a(f"v_add_u32 v32, {64<<20}, v32")
    a("s_waitcnt lgkmcnt(0)")
    for k in range(4):
        a(f"""
        v_add_lshl_u32 v{vP+k}, v{vP+k}, v{vR+k}, 2
        s_mov_b64 exec, s[{44+2*k}:{45+2*k}]
        ds_write_b32 v{vP+k}, v{vS+k} offset:{KEYS}
        s_mov_b64 exec, -1
        """)
    stamp(a, opt, 0, 4)
    a(f"""
    s_cmp_eq_u32 s3, 0
    s_cbranch_scc0 L1_not
    s_lshl_b32 s42, s2, 10
    s_add_u32 s42, s42, {WS_T}
    buffer_store_dwordx4 v[36:39], v7, s[{sWS}:{sWS+3}], s42 offen
    L1_not:
    s_cmp_lt_u32 s3, 8
    s_cbranch_scc1 L1_nojob
    """)
    vA, vW, vM = 8, 16, 48
    gemm_job(a, LW, LX, vA, vW, vM, 64)
    a(f"""
    s_mov_b32 s{sTB}, s{sWS}
    s_mov_b32 s{sTB+1}, s{sWS+1}
    s_mul_i32 s42, s2, {NPB*256}
    s_add_u32 s{sTB+2}, s42, {WS_TB + NPB*256}
    s_lshl_b32 s43, s40, 12
    s_add_u32 s42, s42, s43
    s_lshl_b32 s43, s41, 6
    s_add_u32 s42, s42, s43
    s_add_u32 s42, s42, {WS_TB}
    v_and_b32 v64, 15, v1
    v_lshlrev_b32 v64, 2, v64
    v_lshrrev_b32 v65, 4, v1
    v_lshl_add_u32 v64, v65, 10, v64
    v_add_u32 v64, s42, v64
    s_mov_b32 s53, 0x7fffffff
    s_mov_b32 s54, 0x07060100
    s_mov_b32 s55, 0x07060302
    """)
    sd = "dst_sel:DWORD dst_unused:UNUSED_PAD src0_sel:DWORD"
    for r in range(4):
        b0, b1, h0, h1 = vM + r, vM + 4 + r, vM + 8 + r, vM + 12 + r
        t = 8 + 4 * r
        a(f"""
        v_cvt_pk_bf16_f32 v{h0}, v{h0}, v{h0}
        v_mul_f32 v{b0}, {NLOG2E}, v{b0}
        v_mul_f32 v{b1}, {NLOG2E}, v{b1}
        v_and_b32 v{t}, s53, v{b0}
        v_and_b32 v{t+1}, s53, v{h1}
        v_and_b32 v{t+2}, s53, v{b1}
        v_add_u32 v{t}, 0x8000, v{t}
        v_add_u32 v{t+1}, 0x8000, v{t+1}
        v_add_u32 v{t+2}, 0x8000, v{t+2}
        v_sub_u32_sdwa v{t}, v{t}, v{h0} clamp {sd} src1_sel:WORD_0
        v_bfi_b32 v{b0}, s53, v{t}, v{b0}
        v_sub_u32_sdwa v{t+1}, v{t+1}, v{b0} clamp {sd} src1_sel:WORD_1
        v_bfi_b32 v{h1}, s53, v{t+1}, v{h1}
        v_sub_u32_sdwa v{t+2}, v{t+2}, v{h1} clamp {sd} src1_sel:WORD_1
        v_bfi_b32 v{b1}, s53, v{t+2}, v{b1}
        v_perm_b32 v{b0}, v{b0}, v{h0}, s54
        v_perm_b32 v{b1}, v{b1}, v{h1}, s55
        buffer_store_dword v{b0}, v64, s[{sTB}:{sTB+3}], 0 offen offset:{256*r}
        buffer_store_dword v{b1}, v64, s[{sTB}:{sTB+3}], 0 offen offset:{256*r+128}
        """)
    a(f"""
    s_waitcnt vmcnt(8) lgkmcnt(0)
    s_branch L1_join
    L1_nojob:
    s_waitcnt vmcnt(0) lgkmcnt(0)
    L1_join:
    s_barrier
    """)
    stamp(a, opt, 0, 5)
    vO = 8
    for k in range(4):
        a(f"ds_read_b32 v{vO+4*k+2}, v5 offset:{KEYS+256*k}")
    a(f"""
    v_mul_u32_u24 v6, 12, v4
    s_mul_i32 s42, s2, {SL*12}
    s_add_u32 s42, s42, {WS_REC}
    """)
    for k in range(4):
        a(f"""
        s_waitcnt lgkmcnt(3)
        v_lshrrev_b32 v{vO+4*k+3}, 17, v{vO+4*k+2}
        v_and_b32 v{vO+4*k+3}, 0x7ff8, v{vO+4*k+3}
        ds_read_b64 {vr(vO+4*k,2)}, v{vO+4*k+3} offset:{EA}
        v_lshlrev_b32 v{vO+4*k+2}, 2, v{vO+4*k+2}
        """)
    for k in range(4):
        a(f"""
        s_waitcnt lgkmcnt({3-k})
        s_mov_b64 exec, s[{44+2*k}:{45+2*k}]
        s_cbranch_execz L1_done
        buffer_store_dwordx3 {vr(vO+4*k,3)}, v6, s[{sWS}:{sWS+3}], s42 offen offset:{768*k}
        """)
    a("L1_done:")
    stamp(a, opt, 0, 6)
    if opt.get("stamps"):
        a("s_waitcnt vmcnt(0)")
        stamp(a, opt, 0, 7)
    stamp_out(a, opt, 0, 8, sWS)
    a("""
    L1_end:
    s_endpgm
    """)
    return a.text(), 65536


def k2(opt):
    a = Asm()
    CAP = 8576
    NODE = 0
    OFF = NPB * 768
    GD = OFF + CAP * 4
    EA = GD + CAP // 2
    CN = (EA + CAP * 8 + 255) & ~255
    MX, FL = CN + 256, CN + 260
    LDS = CN + 512
    LW, LX = EA, EA + 16384
    sX, sW, sU, sG, sO, sWS, sTB = 8, 12, 16, 20, 24, 28, 32
    ZOFF = N * 256
    safe = opt.get("safe")
    a(f"""
    edge_kernel:
    s_cmp_ge_u32 s2, 256
    s_cbranch_scc1 L2_end
    s_load_dwordx2 s[{sWS}:{sWS+1}], s[0:1], 72
    s_load_dwordx2 s[{sX}:{sX+1}], s[0:1], 0
    s_load_dwordx2 s[{sG}:{sG+1}], s[0:1], 48
    s_load_dwordx2 s[{sU}:{sU+1}], s[0:1], 32
    s_load_dwordx2 s[{sO}:{sO+1}], s[0:1], 56
    """)
    stamp(a, opt, 1, 0)
    a(f"""
    v_readfirstlane_b32 s3, v0
    v_and_b32 v1, 63, v0
    s_and_b32 s4, s2, 7
    s_lshl_b32 s4, s4, 5
    s_lshr_b32 s5, s2, 3
    s_add_u32 s4, s4, s5
    s_lshr_b32 s3, s3, 6
    s_mov_b32 s{sX+2}, {N*128}
    s_mov_b32 s{sX+3}, 0x20000
    s_mov_b32 s{sW+2}, 8192
    s_mov_b32 s{sW+3}, 0x20000
    s_mov_b32 s{sG+2}, {132*128}
    s_mov_b32 s{sG+3}, 0x20000
    s_mov_b32 s{sO+2}, {N*128}
    s_mov_b32 s{sO+3}, 0x20000
    s_mov_b32 s{sWS+2}, {WS_SIZE}
    s_mov_b32 s{sWS+3}, 0x20000
    s_mov_b32 s{sTB+2}, {WS_T}
    s_mov_b32 s{sTB+3}, {"0x20000" if safe else "0x800000"}
    s_mov_b32 s61, 0
    s_waitcnt lgkmcnt(0)
    s_add_u32 s{sTB}, s{sWS}, {WS_TB-128}
    s_addc_u32 s{sTB+1}, s{sWS+1}, {0 if safe else 0x40000}
    s_cmp_lt_u32 s3, 8
    s_cselect_b32 s{sW}, s{sG}, s{sU}
    s_cselect_b32 s{sW+1}, s{sG+1}, s{sU+1}
    L2_start:
    """)
    vT = 2
    vG4, vI = 6, 7
    a(f"""
    v_lshrrev_b32 v{vG4}, 4, v1
    v_and_b32 v{vI}, 15, v1
    v_lshlrev_b32 v8, 10, v{vG4}
    s_lshl_b32 s5, s3, 14
    s_lshl_b32 s6, s4, 2
    s_add_u32 s5, s5, s6
    s_add_u32 s5, s5, {WS_T}
    """)
    for u in range(4):
        a(f"buffer_load_dword v{vT+u}, v8, s[{sWS}:{sWS+3}], s5 offen")
        if u < 3:
            a("s_add_u32 s5, s5, 4096")
    a(f"""
    v_lshlrev_b32 v9, 4, v1
    s_lshl_b32 s7, s3, 10
    s_add_u32 m0, s7, {LW}
    s_and_b32 s5, s7, 8191
    buffer_load_dwordx4 v9, s[{sW}:{sW+3}], s5 offen lds
    s_add_u32 m0, s5, {LX}
    s_mul_i32 s6, s4, {NPB*128}
    s_add_u32 s6, s6, s5
    buffer_load_dwordx4 v9, s[{sX}:{sX+3}], s6 offen lds
    v_lshlrev_b32 v10, 1, v1
    s_movk_i32 s5, 0x4000
    """)
    vC = 12
    for k in range(4):
        a(f"buffer_load_ushort v{vC+k}, v10, s[{sG}:{sG+3}], s5 offen offset:{128*k}")
    a(f"""
    v_lshlrev_b32 v10, 2, v0
    v_add_u32 v10, {CN}, v10
    v_mov_b32 v11, 0
    s_cmp_lt_u32 s3, 2
    s_cbranch_scc0 L2_nz
    ds_write_b32 v10, v11
    L2_nz:
    s_mov_b32 s60, 0
    s_waitcnt vmcnt(6)
    """)
    stamp(a, opt, 1, 1)
    vR = 16
    vK = 48
    a(f"""
    L2_round:
    s_mul_i32 s5, s3, {16*SL*12}
    s_add_u32 s5, s5, {WS_REC}
    v_add_u32 v10, s60, v{vI}
    v_add_u32 v11, 16, v10
    v_mul_u32_u24 v8, {SL}, v{vG4}
    v_add_u32 v8, v8, v10
    """)
    for u in range(4):
        a(f"""
        v_lshrrev_b32 v9, 16, v{vT+u}
        v_cmp_lt_u32 s[{44+4*u}:{45+4*u}], v10, v9
        v_cmp_lt_u32 s[{46+4*u}:{47+4*u}], v11, v9
        v_and_b32 v9, 0xffff, v{vT+u}
        v_add_u32 v9, v9, v8
        v_mul_u32_u24 v9, 12, v9
        v_cndmask_b32 v{vK}, 2.0, v9, s[{44+4*u}:{45+4*u}]
        v_cndmask_b32 v{vK+1}, 2.0, v9, s[{46+4*u}:{47+4*u}]
        buffer_load_dwordx3 {vr(vR+8*u,3)}, v{vK}, s[{sWS}:{sWS+3}], s5 offen
        buffer_load_dwordx3 {vr(vR+8*u+4,3)}, v{vK+1}, s[{sWS}:{sWS+3}], s5 offen offset:192
        """)
        if u < 3:
            a(f"s_add_u32 s5, s5, {4*SL*12}")
    a(f"""
    s_waitcnt vmcnt(8) lgkmcnt(0)
    s_barrier
    s_cmp_eq_u32 s60, 0
    s_cbranch_scc0 L2_nojob
    """)
    stamp(a, opt, 1, 2)
    vEA, vBO = 56, 60
    for k in range(4):
        a(f"v_lshlrev_b32 v{vC+k}, 16, v{vC+k}\nv_mul_f32 v{vC+k}, {NLOG2E}, v{vC+k}")
    a(f"""
    v_cvt_pk_bf16_f32 v{vBO}, v{vC}, v{vC+1}
    v_cvt_pk_bf16_f32 v{vBO+1}, v{vC+2}, v{vC+3}
    v_max_u32 v8, v{vT}, v{vT+1}
    v_max3_u32 v8, v8, v{vT+2}, v{vT+3}
    v_lshrrev_b32 v8, 16, v8
    v_cmp_lt_u32 vcc, 32, v8
    s_and_saveexec_b64 s[42:43], vcc
    s_cbranch_execz L2_nomax
    v_mov_b32 v9, {MX}
    ds_max_u32 v9, v8
    L2_nomax:
    s_mov_b64 exec, -1
    """)
    if not opt.get("nopf"):
        a(f"""
        s_lshr_b32 s5, s2, 3
        s_mul_i32 s5, s5, {784*128}
        s_add_u32 s5, s5, {WS_TB}
        v_lshlrev_b32 v8, 7, v0
        s_cmp_lt_u32 s3, 13
        s_cbranch_scc0 L2_nopf
        buffer_load_dword v126, v8, s[{sWS}:{sWS+3}], s5 offen
        L2_nopf:
        """)
    a(f"""
    s_cmp_lt_u32 s3, 8
    s_cbranch_scc1 L2_nojob
    """)
    vA, vW, vM = 64, 72, 104
    gemm_job(a, LW, LX, vA, vW, vM, 8)
    a(f"""
    s_mul_i32 s42, s40, {16*768}
    s_lshl_b32 s43, s41, 7
    s_add_u32 s42, s42, s43
    v_mul_u32_u24 v8, {4*768}, v{vG4}
    v_lshl_add_u32 v8, v{vI}, 3, v8
    v_add_u32 v8, s42, v8
    """)
    for r in range(4):
        t = 64 + 8 * r
        a(f"""
        v_mul_f32 v{vM+r}, {NLOG2E}, v{vM+r}
        v_mul_f32 v{vM+4+r}, {NLOG2E}, v{vM+4+r}
        v_and_b32 v{t}, 0xffff0000, v{vM+r}
        v_and_b32 v{t+1}, 0xffff0000, v{vM+4+r}
        v_sub_f32 v{vM+r}, v{vM+r}, v{t}
        v_sub_f32 v{vM+4+r}, v{vM+4+r}, v{t+1}
        v_cvt_pk_bf16_f32 v{t}, v{t}, v{vM+r}
        v_cvt_pk_bf16_f32 v{t+1}, v{t+1}, v{vM+4+r}
        v_cvt_f64_f32 {vr(t+2,2)}, v{vM+8+r}
        v_cvt_f64_f32 {vr(t+4,2)}, v{vM+12+r}
        ds_write_b64 v8, {vr(t,2)} offset:{768*r}
        ds_write_b64 v8, {vr(t+2,2)} offset:{768*r+256}
        ds_write_b64 v8, {vr(t+4,2)} offset:{768*r+512}
        """)
    a(f"""
    L2_nojob:
    v_mov_b32 v9, 4
    s_mov_b32 s42, {CN}
    s_mov_b32 s43, 0xfc
    v_mov_b32 v8, s42
    s_waitcnt vmcnt(0)
    """)
    stamp(a, opt, 1, 3)
    for j in range(8):
        a(f"""
        s_mov_b64 exec, s[{44+2*j}:{45+2*j}]
        v_and_or_b32 v{vK+j}, v{vR+4*j+2}, s43, v8
        ds_add_rtn_u32 v{vR+4*j+3}, v{vK+j}, v9
        v_and_b32 v{vR+4*j+2}, 0x3fff00, v{vR+4*j+2}
        """)
    a(f"""
    s_mov_b64 exec, -1
    v_lshl_add_u32 v8, v1, 2, s42
    s_waitcnt lgkmcnt(0)
    s_barrier
    """)
    stamp(a, opt, 1, 4)
    a(f"""
    ds_read_b32 v10, v8
    v_cmp_eq_u32 vcc, {NPB}, v1
    s_waitcnt lgkmcnt(0)
    v_add_u32 v11, 28, v10
    v_and_b32 v11, 0xffffffe0, v11
    v_cndmask_b32 v11, v11, 32, vcc
    v_mov_b32 v12, v11
    """)
    scan64(a, 12)
    a(f"""
    v_sub_u32 v12, v12, v11
    s_mov_b32 s43, {EA}
    s_nop 0
    v_readlane_b32 s40, v12, {NPB}
    """)
    for j in range(8):
        a(f"ds_bpermute_b32 v{vK+j}, v{vK+j}, v12")
    a(f"""
    s_add_u32 s40, s40, 32
    s_lshr_b32 s40, s40, 6
    v_min_u32 v13, {NPB-1}, v1
    v_mul_u32_u24 v13, 768, v13
    s_lshl_b32 s5, s3, 5
    L2_gd:
    v_cmp_lt_u32 vcc, s5, v11
    s_and_saveexec_b64 s[6:7], vcc
    s_cbranch_execz L2_gdd
    v_add_u32 v14, s5, v12
    v_lshrrev_b32 v14, 3, v14
    v_add_u32 v14, {GD}, v14
    ds_write_b32 v14, v13
    s_add_u32 s5, s5, 512
    s_branch L2_gd
    L2_gdd:
    s_mov_b64 exec, -1
    s_lshl_b32 s5, s3, 2
    v_add_u32 v14, s5, v10
    v_cmp_lt_u32 vcc, v14, v11
    s_and_saveexec_b64 s[6:7], vcc
    s_cbranch_execz L2_nopad
    v_add_u32 v14, v14, v12
    v_and_b32 v13, 32, v14
    v_lshlrev_b32 v13, 2, v13
    v_add_u32 v13, {ZOFF}, v13
    ds_write_b32 v14, v13 offset:{OFF}
    v_lshl_add_u32 v14, v14, 1, s43
    v_mov_b64 v[10:11], 0
    ds_write_b64 v14, v[10:11]
    L2_nopad:
    s_waitcnt lgkmcnt(0)
    """)
    for j in range(8):
        p = vR + 4 * j + 3
        a(f"""
        s_mov_b64 exec, s[{44+2*j}:{45+2*j}]
        v_add_u32 v{p}, v{p}, v{vK+j}
        v_and_b32 v{vK+j}, 32, v{p}
        v_lshl_or_b32 v{p-1}, v{vK+j}, 2, v{p-1}
        ds_write_b32 v{p}, v{p-1} offset:{OFF}
        v_lshl_add_u32 v{vK+j}, v{p}, 1, s43
        ds_write_b64 v{vK+j}, {vr(p-3,2)}
        """)
    vAO, vAE, vAG, vN8 = 8, 9, 10, 11
    vS = 12
    a(f"""
    s_mov_b64 exec, -1
    v_lshrrev_b32 v14, 5, v1
    v_xor_b32 v15, 1, v14
    s_lshl_b32 s5, s3, 6
    v_lshl_add_u32 v{vAO}, v15, 5, s5
    s_lshl_b32 s5, s3, 3
    s_add_u32 s5, s5, {GD}
    v_lshl_add_u32 v{vAG}, v15, 2, s5
    v_and_b32 v{vN8}, 31, v1
    v_bfe_u32 v16, v1, 2, 1
    v_and_b32 v17, 1, v1
    v_cmp_eq_u32 vcc, v16, v14
    v_mov_b32 v18, 0x3f803f80
    v_xor_b32 v16, 1, v16
    v_cndmask_b32 v18, 0, v18, vcc
    v_cmp_eq_u32 vcc, 0, v17
    v_lshlrev_b32 v16, 3, v16
    v_lshrrev_b32 v19, 3, v{vN8}
    v_cndmask_b32 v{vEA+2}, 0, v18, vcc
    v_cndmask_b32 v{vEA+3}, v18, 0, vcc
    v_lshl_add_u32 v16, v19, 1, v16
    v_bfe_u32 v19, v1, 1, 1
    v_add_u32 v16, v16, v19
    s_lshl_b32 s5, s3, 7
    s_add_u32 s5, s5, {EA}
    v_lshl_add_u32 v{vAE}, v16, 3, s5
    v_lshlrev_b32 v{vN8}, 3, v{vN8}
    v_mov_b64 {vr(vEA,2)}, 0
    v_mov_b64 {vr(vS,2)}, 0
    s_mov_b32 s56, 0x55555555
    s_mov_b32 s57, 0xaaaaaaaa
    s_waitcnt lgkmcnt(0)
    s_barrier
    """)
    stamp(a, opt, 1, 5)
    a(f"""
    s_cmp_eq_u32 s3, 0
    s_cbranch_scc0 L2_nz2
    v_lshl_add_u32 v14, v1, 2, s42
    ds_write_b32 v14, v{vS}
    L2_nz2:
    """)
    vGA, vGB, vH, vDD, vOF = 64, 80, 96, 112, 16
    vNA = (24, 25)
    vGDt = 26
    vP, vNn, vRc, vF = 28, 30, 32, 34
    vL4 = 27

    def rd_off(step):
        a(f"ds_read_b128 {vr(vOF,4)}, v{vAO} offset:{OFF+1024*step}")
        a(f"ds_read_b128 {vr(vOF+4,4)}, v{vAO} offset:{OFF+1024*step+16}")

    def gathers(g):
        for r in range(8):
            if safe:
                a(f"v_add_u32 v{vOF+r}, v{vOF+r}, v{vL4}")
            a(f"buffer_load_dword v{g+2*r}, v{vOF+r}, s[{sTB}:{sTB+3}], 0 offen")
            a(f"buffer_load_dword v{g+2*r+1}, v{vOF+r}, s[{sTB}:{sTB+3}], 0 offen offset:128")

    def rd_gd_ea(step):
        a(f"ds_read_b32 v{vGDt}, v{vAG} offset:{128*step}")
        a(f"s_mov_b64 exec, s[56:57]\nds_read_b64 {vr(vEA,2)}, v{vAE} offset:{2048*step}\ns_mov_b64 exec, -1")

    def rd_apk(na):
        a(f"v_add_u32 v{na}, v{vGDt}, v{vN8}\nds_read_b64 {vr(vBO+2,2)}, v{na}")

    a(f"""
    v_lshlrev_b32 v{vL4}, 2, v1
    s_sub_u32 s41, s40, s3
    s_cbranch_scc1 L2_mdone
    s_add_u32 s41, s41, 15
    s_lshr_b32 s41, s41, 4
    s_cbranch_scc0 L2_mdone
    """)
    rd_off(0)
    rd_gd_ea(0)
    a("s_waitcnt lgkmcnt(2)")
    gathers(vGA)
    rd_off(1)
    a("s_waitcnt lgkmcnt(3)")
    rd_apk(vNA[0])
    a("s_cmp_lt_u32 s41, 2\ns_cbranch_scc1 L2_p1\ns_waitcnt lgkmcnt(1)")
    gathers(vGB)
    a("L2_p1:")
    rd_off(2)
    a("s_waitcnt lgkmcnt(0)\ns_cmp_eq_u32 s61, 0\ns_cbranch_scc0 L2_slow")

    def unit(tag, g, par, slow):
        na, nb = vNA[par], vNA[1 - par]
        a(f"""
        s_cmp_lt_u32 s41, 2
        s_cbranch_scc0 {tag}_w
        s_waitcnt vmcnt(0)
        {tag}_w:
        s_waitcnt vmcnt(16) lgkmcnt(2)
        v_mfma_f32_32x32x16_bf16 {vr(vDD,16)}, {vr(vEA,4)}, {vr(vBO,4)}, {vr(g,16)}
        """)
        for r in range(8):
            a(f"v_lshlrev_b64 {vr(vH+2*r,2)}, 16, {vr(g+2*r,2)}")
        a(f"s_cmp_lt_u32 s41, 3\ns_cbranch_scc1 {tag}_ng")
        gathers(g)
        a(f"{tag}_ng:")
        rd_gd_ea(par + 1)
        rd_off(par + 3)
        if par == 1:
            a(f"v_add_u32 v{vAO}, 2048, v{vAO}\nv_add_u32 v{vAE}, 4096, v{vAE}\nv_add_u32 v{vAG}, 256, v{vAG}")
        T = lambda r: vr(vDD + 2 * r, 2)
        H = lambda r: vr(vH + 2 * r, 2)
        P, Nn = vr(vP, 2), vr(vNn, 2)

        def ex(r):
            a(f"v_exp_f32 v{vDD+2*r}, v{vDD+2*r}\nv_exp_f32 v{vDD+2*r+1}, v{vDD+2*r+1}")
        ex(0)
        ex(1)
        if not slow:
            a(f"v_pk_add_f32 {P}, {T(0)}, 1.0 op_sel_hi:[1,0]")
            ex(2)
            a(f"v_pk_fma_f32 {Nn}, {H(0)}, {T(1)}, {H(0)}")
            a(f"v_pk_fma_f32 {Nn}, {H(1)}, {P}, {Nn}")
            a(f"v_pk_fma_f32 {P}, {P}, {T(1)}, {P}")
            for r in range(2, 8):
                if r < 7:
                    ex(r + 1)
                if r == 3:
                    a("s_waitcnt lgkmcnt(3)")
                    rd_apk(nb)
                a(f"v_pk_fma_f32 {Nn}, {Nn}, {T(r)}, {Nn}")
                a(f"v_pk_fma_f32 {Nn}, {H(r)}, {P}, {Nn}")
                a(f"v_pk_fma_f32 {P}, {P}, {T(r)}, {P}")
            a(f"""
            v_rcp_f32 v{vRc}, v{vP}
            v_rcp_f32 v{vRc+1}, v{vP+1}
            v_pk_add_f32 {vr(vS,2)}, {vr(vS,2)}, {P}
            v_pk_mul_f32 {Nn}, {Nn}, {vr(vRc,2)}
            """)
        else:
            for r in range(2, 8):
                ex(r)
            a("s_waitcnt lgkmcnt(3)")
            rd_apk(nb)
            a(f"v_mov_b64 {Nn}, 0")
            for r in range(8):
                a(f"v_pk_add_f32 {T(r)}, {T(r)}, 1.0 op_sel_hi:[1,0]")
                a(f"v_rcp_f32 v{vDD+2*r}, v{vDD+2*r}\nv_rcp_f32 v{vDD+2*r+1}, v{vDD+2*r+1}\ns_nop 0")
                a(f"v_pk_fma_f32 {Nn}, {H(r)}, {T(r)}, {Nn}")
        a(f"""
        v_cvt_f64_f32 {vr(vF,2)}, v{vNn}
        v_cvt_f64_f32 {vr(vF+2,2)}, v{vNn+1}
        ds_add_f64 v{na}, {vr(vF,2)} offset:256
        ds_add_f64 v{na}, {vr(vF+2,2)} offset:512
        s_sub_u32 s41, s41, 1
        s_cmp_eq_u32 s41, 0
        """)

    def loop(tag, slow):
        a(f"{tag}:")
        unit(tag + "a", vGA, 0, slow)
        a("s_cbranch_scc1 L2_mdone")
        unit(tag + "b", vGB, 1, slow)
        a(f"s_cbranch_scc0 {tag}")

    loop("L2_fast", False)
    a(f"""
    L2_mdone:
    v_mov_b32 v14, {MX}
    ds_read_b32 v15, v14
    v_add_f32 v{vS}, v{vS}, v{vS+1}
    v_cmp_ngt_f32 vcc, 0x7e000000, v{vS}
    """)
    a(f"""
    s_and_saveexec_b64 s[6:7], vcc
    s_cbranch_execz L2_sok
    ds_write_b32 v14, v14 offset:4
    L2_sok:
    s_mov_b64 exec, -1
    s_waitcnt lgkmcnt(0)
    v_readfirstlane_b32 s5, v15
    s_add_u32 s60, s60, 32
    s_cmp_lt_u32 s60, s5
    s_cbranch_scc1 L2_round
    """)
    stamp(a, opt, 1, 6)
    a(f"""
    v_lshrrev_b32 v8, 4, v0
    v_mul_u32_u24 v9, 768, v8
    v_lshl_add_u32 v9, v{vI}, 5, v9
    v_lshlrev_b32 v10, 3, v0
    s_mul_i32 s5, s4, {NPB*128}
    s_barrier
    """)
    stamp(a, opt, 1, 7)
    a(f"""
    v_cmp_gt_u32 vcc, {NPB*16}, v0
    s_and_saveexec_b64 s[6:7], vcc
    s_cbranch_execz L2_noout
    ds_read_b128 v[16:19], v9 offset:256
    ds_read_b128 v[20:23], v9 offset:272
    s_waitcnt lgkmcnt(0)
    """)
    for i in range(4):
        a(f"v_cvt_f32_f64 v{24+i}, {vr(16+2*i,2)}")
    for i in range(4):
        a(f"v_mul_f32 v{28+i}, {NLOG2E}, v{24+i}")
    for i in range(4):
        a(f"v_exp_f32 v{28+i}, v{28+i}")
    a("v_add_f32 v16, v24, v25\nv_add_f32 v17, v26, v27")
    for i in range(4):
        a(f"v_add_f32 v{28+i}, 1.0, v{28+i}")
    for i in range(4):
        a(f"v_rcp_f32 v{28+i}, v{28+i}")
    a("v_add_f32 v16, v16, v17\nv_mov_b32 v17, 0x207")
    for i in range(4):
        a(f"v_mul_f32 v{28+i}, v{28+i}, v{24+i}")
    a(f"""
    v_cvt_pk_bf16_f32 v28, v28, v29
    v_cvt_pk_bf16_f32 v29, v30, v31
    buffer_store_dwordx2 v[28:29], v10, s[{sO}:{sO+3}], s5 offen
    v_cmp_class_f32 vcc, v16, v17
    s_and_b64 exec, exec, vcc
    s_cbranch_execz L2_noout
    ds_write_b32 v14, v14 offset:4
    L2_noout:
    s_mov_b64 exec, -1
    s_cmp_eq_u32 s61, 0
    s_cbranch_scc0 L2_fin
    s_waitcnt lgkmcnt(0)
    s_barrier
    ds_read_b32 v15, v14 offset:4
    s_waitcnt lgkmcnt(0)
    v_readfirstlane_b32 s5, v15
    s_cmp_eq_u32 s5, 0
    s_cbranch_scc1 L2_fin
    s_mov_b32 s61, 1
    s_waitcnt vmcnt(0)
    s_barrier
    s_branch L2_start
    L2_fin:
    """)
    stamp(a, opt, 1, 8)
    if opt.get("stamps"):
        a("s_waitcnt vmcnt(0)")
        stamp(a, opt, 1, 9)
    stamp_out(a, opt, 1, 10, sWS)
    a("""
    L2_end:
    s_endpgm
    """)
    loop("L2_slow", True)
    a("s_branch L2_mdone")
    return a.text(), LDS


def kd(name, vgpr):
    return f""".p2align 6
.amdhsa_kernel {name}
  .amdhsa_next_free_vgpr {vgpr}
  .amdhsa_next_free_sgpr 96
  .amdhsa_accum_offset {vgpr}
  .amdhsa_group_segment_fixed_size 0
  .amdhsa_kernarg_size 80
  .amdhsa_user_sgpr_count 2
  .amdhsa_user_sgpr_kernarg_segment_ptr 1
  .amdhsa_system_sgpr_workgroup_id_x 1
.end_amdhsa_kernel
"""


def gen(opt):
    t1, l1 = k1(opt)
    t2, l2 = k2(opt)
    ref = open(f"cdna_kernels/{NAME}.s.ref").read().split("\n")
    head = [x for x in ref[:11]]
    out = "\n".join(head) + "\n"
    out += f"; @launch kernel=part_kernel grid=(256,1,1) block=(1024,1,1) lds={l1}\n"
    out += f"; @launch kernel=edge_kernel grid=(256,1,1) block=(1024,1,1) lds={l2}\n"
    out += '.amdgcn_target "amdgcn-amd-amdhsa--gfx950"\n.text\n'
    for nm, t in (("part_kernel", t1), ("edge_kernel", t2)):
        out += f".globl {nm}\n.p2align 8\n.type {nm},@function\n" + t
    out += '.section .rodata,"a"\n' + kd("part_kernel", 72) + kd("edge_kernel", 128)
    return out


if __name__ == "__main__":
    opt = {}
    for x in sys.argv[2:]:
        k, _, v = x.partition("=")
        opt[k] = int(v) if v else 1
    open(sys.argv[1], "w").write(gen(opt))
```

```python
import sys

NAME = "gather_scatter__edge_featured_mpnn_egc__graph"
N, E = 12500, 800000
NPB = 49
SL = 3136
WS_TB = 256
WS_T = 4 << 20
WS_REC = 5 << 20
WS_DBG = 32 << 20
WS_SIZE = 64 << 20
NLOG2E = "0xbfb8aa3b"


class Asm:
    def __init__(self):
        self.l = []

    def __call__(self, s):
        for x in s.split("\n"):
            x = x.strip()
            if x:
                self.l.append(("" if x.endswith(":") else "    ") + x)

    def text(self):
        return "\n".join(self.l) + "\n"


def vr(a, n):
    return f"v[{a}:{a+n-1}]"


def scan64(a, v):
    for sh in (1, 2, 4, 8):
        a(f"s_nop 1\nv_add_u32_dpp v{v}, v{v}, v{v} row_shr:{sh} row_mask:0xf bank_mask:0xf bound_ctrl:0")
    a(f"s_nop 1\nv_add_u32_dpp v{v}, v{v}, v{v} row_bcast:15 row_mask:0xa bank_mask:0xf")
    a(f"s_nop 1\nv_add_u32_dpp v{v}, v{v}, v{v} row_bcast:31 row_mask:0xc bank_mask:0xf")


def stamp(a, opt, kern, idx):
    if opt.get("stamps"):
        a(f"s_mem{'' if opt['stamps']==2 else 'real'}time s[{64+2*idx}:{65+2*idx}]")


def stamp_out(a, opt, kern, n, ws):
    if opt.get("dbg"):
        a("s_load_dwordx2 s[4:5], s[0:1], 64\ns_mov_b32 s6, 256\ns_mov_b32 s7, 0x20000\ns_waitcnt lgkmcnt(0)")
        a("s_mov_b64 exec, 1\nv_mov_b32 v1, 0\ns_cmp_eq_u32 s3, 15\ns_cbranch_scc0 L%d_end" % (kern+1))
        a("s_not_b32 s62, s64\nv_mov_b32 v2, s62\nbuffer_atomic_umax v2, v1, s[4:7], 0 offen")
        for i in range(n):
            a(f"v_mov_b32 v2, s{64+2*i}")
            a(f"buffer_atomic_umax v2, v1, s[4:7], 0 offen offset:{4*i+4}")
        return
    if opt.get("stamps"):
        a("s_waitcnt lgkmcnt(0)")
        a(f"s_lshl_b32 s62, s2, 4\ns_add_u32 s62, s62, s3\ns_lshl_b32 s62, s62, 6\ns_add_u32 s62, s62, {WS_DBG + kern*(1<<20)}")
        a("s_mov_b64 exec, 1\nv_mov_b32 v1, 0")
        for i in range(n):
            a(f"v_mov_b32 v2, s{64+2*i}")
            a(f"buffer_store_dword v2, v1, s[{ws}:{ws+3}], s62 offen offset:{4*i}")


def gemm_job(a, LW, LX, vA, vB, vD, vt):
    a(f"""
    s_bfe_u32 s40, s3, 0x20001
    s_and_b32 s41, s3, 1
    v_and_b32 v{vt}, 15, v1
    v_lshrrev_b32 v{vt+1}, 4, v1
    s_lshl_b32 s42, s40, 11
    s_add_u32 s42, s42, {LX}
    v_lshlrev_b32 v{vt+2}, 7, v{vt}
    v_lshl_add_u32 v{vt+2}, v{vt+1}, 4, v{vt+2}
    v_add_u32 v{vt+2}, s42, v{vt+2}
    ds_read_b128 {vr(vA,4)}, v{vt+2}
    ds_read_b128 {vr(vA+4,4)}, v{vt+2} offset:64
    v_lshrrev_b32 v{vt+2}, 2, v{vt}
    v_lshl_add_u32 v{vt+2}, v{vt+1}, 3, v{vt+2}
    v_lshlrev_b32 v{vt+2}, 7, v{vt+2}
    v_and_b32 v{vt}, 3, v{vt}
    v_lshl_add_u32 v{vt+2}, v{vt}, 3, v{vt+2}
    s_lshl_b32 s42, s41, 5
    s_add_u32 s42, s42, {LW}
    v_add_u32 v{vt+2}, s42, v{vt+2}
    """)
    idx = 0
    for M in range(2):
        for t in range(2):
            for s in range(2):
                for j2 in range(2):
                    a(f"ds_read_b64_tr_b16 {vr(vB+2*idx,2)}, v{vt+2} offset:{M*8192+s*4096+j2*512+t*64}")
                    idx += 1
    for q in range(4):
        a(f"s_waitcnt lgkmcnt({12-4*q})")
        a(f"v_mfma_f32_16x16x32_bf16 {vr(vD+4*q,4)}, {vr(vA,4)}, {vr(vB+8*q,4)}, 0")
        a(f"v_mfma_f32_16x16x32_bf16 {vr(vD+4*q,4)}, {vr(vA+4,4)}, {vr(vB+8*q+4,4)}, {vr(vD+4*q,4)}")
    a("s_nop 7")


def k1(opt):
    a = Asm()
    CNT, BASE, KEYS, EA, LW, LX = 0, 1024, 2048, 14592, 40960, 57344
    sDST, sSRC, sEA, sX, sW, sV, sWS, sTB = 8, 12, 16, 20, 24, 28, 32, 36
    a(f"""
    part_kernel:
    s_cmp_ge_u32 s2, 256
    s_cbranch_scc1 L1_end
    s_load_dwordx2 s[{sDST}:{sDST+1}], s[0:1], 24
    s_load_dwordx2 s[{sSRC}:{sSRC+1}], s[0:1], 16
    s_load_dwordx2 s[{sEA}:{sEA+1}], s[0:1], 8
    s_load_dwordx2 s[{sX}:{sX+1}], s[0:1], 0
    s_load_dwordx2 s[{sW}:{sW+1}], s[0:1], 48
    s_load_dwordx2 s[{sV}:{sV+1}], s[0:1], 40
    s_load_dwordx2 s[{sWS}:{sWS+1}], s[0:1], 72
    """)
    stamp(a, opt, 0, 0)
    a(f"""
    v_readfirstlane_b32 s3, v0
    v_and_b32 v1, 63, v0
    v_lshlrev_b32 v2, 2, v0
    v_mov_b32 v3, 0
    ds_write_b32 v2, v3
    s_lshr_b32 s3, s3, 6
    s_mov_b32 s{sDST+2}, {E*4}
    s_mov_b32 s{sDST+3}, 0x20000
    s_mov_b32 s{sSRC+2}, {E*4}
    s_mov_b32 s{sSRC+3}, 0x20000
    s_mov_b32 s{sEA+2}, {E*8}
    s_mov_b32 s{sEA+3}, 0x20000
    s_mov_b32 s{sX+2}, {N*128}
    s_mov_b32 s{sX+3}, 0x20000
    s_mov_b32 s{sW+3}, 0x20000
    s_mov_b32 s{sWS+2}, {WS_SIZE}
    s_mov_b32 s{sWS+3}, 0x20000
    s_mov_b32 s{sTB+3}, 0x20000
    s_mul_i32 s4, s3, 192
    v_add_u32 v4, s4, v1
    v_lshlrev_b32 v5, 2, v4
    s_cmp_eq_u32 s3, 15
    s_cselect_b32 s5, 0, 0x40000000
    v_add_u32 v6, s5, v5
    s_mul_i32 s6, s2, {SL*4}
    v_lshlrev_b32 v7, 4, v1
    s_waitcnt lgkmcnt(0)
    """)
    vD, vS = 8, 12
    for k in range(4):
        a(f"buffer_load_dword v{vD+k}, v{5 if k<3 else 6}, s[{sDST}:{sDST+3}], s6 offen offset:{256*k}")
    a(f"""
    s_lshl_b32 s7, s3, 10
    s_add_u32 m0, s7, {LW}
    s_cmp_lt_u32 s3, 8
    s_cselect_b32 s{sW}, s{sW}, s{sV}
    s_cselect_b32 s{sW+1}, s{sW+1}, s{sV+1}
    s_mov_b32 s{sW+2}, 16384
    s_xor_b32 s42, s7, 8192
    buffer_load_dwordx4 v7, s[{sW}:{sW+3}], s42 offen lds
    s_cmp_lt_u32 s3, 9
    s_cbranch_scc1 L1_nox
    s_add_u32 m0, s7, {LX-9*1024}
    s_mul_i32 s42, s2, {NPB*128}
    s_add_u32 s42, s42, s7
    s_sub_u32 s42, s42, {9*1024}
    buffer_load_dwordx4 v7, s[{sX}:{sX+3}], s42 offen lds
    L1_nox:
    """)
    for k in range(4):
        a(f"buffer_load_dword v{vS+k}, v{5 if k<3 else 6}, s[{sSRC}:{sSRC+3}], s6 offen offset:{256*k}")
    a(f"""
    s_add_u32 m0, s7, {EA}
    s_lshl_b32 s42, s6, 1
    s_add_u32 s42, s42, s7
    buffer_load_dwordx4 v7, s[{sEA}:{sEA+3}], s42 offen lds
    s_cmp_lt_u32 s3, 9
    s_cbranch_scc0 L1_noe
    s_add_u32 m0, s7, {EA+16384}
    s_add_u32 s42, s42, 16384
    s_nop 0
    buffer_load_dwordx4 v7, s[{sEA}:{sEA+3}], s42 offen lds
    L1_noe:
    """)
    a(f"""
    s_cmp_lt_u32 s2, 255
    s_cselect_b32 s42, 49, 5
    s_mul_i32 s43, s3, 3
    """)
    for k in range(3):
        a(f"s_cmp_lt_u32 s43, s42\ns_cselect_b64 s[{44+2*k}:{45+2*k}], -1, 0\ns_add_u32 s43, s43, 1")
    a(f"""
    s_add_u32 s43, s43, s5
    s_cmp_lt_u32 s43, s42
    s_cselect_b64 s[50:51], -1, 0
    s_mov_b32 s52, -{NPB}
    v_mov_b32 v3, 1
    s_barrier
    s_waitcnt vmcnt(7)
    """)
    stamp(a, opt, 0, 1)
    vB, vR, vL = 16, 20, 24
    for k in range(4):
        a(f"""
        v_mul_u32_u24 v{vB+k}, 21400, v{vD+k}
        v_lshrrev_b32 v{vB+k}, 20, v{vB+k}
        v_mad_i32_i24 v{vL+k}, v{vB+k}, s52, v{vD+k}
        v_lshlrev_b32 v{vB+k}, 2, v{vB+k}
        s_mov_b64 exec, s[{44+2*k}:{45+2*k}]
        ds_add_rtn_u32 v{vR+k}, v{vB+k}, v3 offset:{CNT}
        s_mov_b64 exec, -1
        """)
    a(f"""
    s_waitcnt vmcnt(5) lgkmcnt(0)
    s_barrier
    """)
    stamp(a, opt, 0, 2)
    a(f"""
    s_cmp_eq_u32 s3, 0
    s_cbranch_scc0 L1_noscan
    ds_read_b128 v[28:31], v7 offset:{CNT}
    s_waitcnt lgkmcnt(0)
    v_add_u32 v33, v28, v29
    v_add_u32 v34, v33, v30
    v_add_u32 v35, v34, v31
    v_mov_b32 v36, v35
    """)
    scan64(a, 36)
    a(f"""
    v_sub_u32 v36, v36, v35
    v_add_u32 v37, v36, v28
    v_add_u32 v38, v36, v33
    v_add_u32 v39, v36, v34
    v_lshl_or_b32 v36, v28, 16, v36
    v_lshl_or_b32 v37, v29, 16, v37
    v_lshl_or_b32 v38, v30, 16, v38
    v_lshl_or_b32 v39, v31, 16, v39
    ds_write_b128 v7, v[36:39] offset:{BASE}
    s_waitcnt lgkmcnt(0)
    L1_noscan:
    s_barrier
    """)
    stamp(a, opt, 0, 3)
    vP = 28
    for k in range(4):
        a(f"ds_read_u16 v{vP+k}, v{vB+k} offset:{BASE}")
    a(f"""
    s_cmp_lt_u32 s3, 9
    s_cbranch_scc1 L1_w2
    s_waitcnt vmcnt(1)
    L1_w2:
    s_waitcnt vmcnt(2)
    v_lshlrev_b32 v32, 20, v4
    """)
    for k in range(4):
        a(f"v_lshl_or_b32 v{vS+k}, v{vS+k}, 6, v{vL+k}")
        a(f"v_or_b32 v{vS+k}, v{vS+k}, v32")
        if k < 3:
            a(f"v_add_u32 v32, {64<<20}, v32")
    a("s_waitcnt lgkmcnt(0)")
    for k in range(4):
        a(f"""
        v_add_lshl_u32 v{vP+k}, v{vP+k}, v{vR+k}, 2
        s_mov_b64 exec, s[{44+2*k}:{45+2*k}]
        ds_write_b32 v{vP+k}, v{vS+k} offset:{KEYS}
        s_mov_b64 exec, -1
        """)
    stamp(a, opt, 0, 4)
    a(f"""
    s_cmp_eq_u32 s3, 0
    s_cbranch_scc0 L1_not
    s_lshl_b32 s42, s2, 10
    s_add_u32 s42, s42, {WS_T}
    buffer_store_dwordx4 v[36:39], v7, s[{sWS}:{sWS+3}], s42 offen
    L1_not:
    s_cmp_lt_u32 s3, 8
    s_cbranch_scc1 L1_nojob
    """)
    vA, vW, vM = 8, 16, 48
    gemm_job(a, LW, LX, vA, vW, vM, 64)
    a(f"""
    s_mov_b32 s{sTB}, s{sWS}
    s_mov_b32 s{sTB+1}, s{sWS+1}
    s_mul_i32 s42, s2, {NPB*256}
    s_add_u32 s{sTB+2}, s42, {WS_TB + NPB*256}
    s_lshl_b32 s43, s40, 12
    s_add_u32 s42, s42, s43
    s_lshl_b32 s43, s41, 6
    s_add_u32 s42, s42, s43
    s_add_u32 s42, s42, {WS_TB}
    v_and_b32 v64, 15, v1
    v_lshlrev_b32 v64, 2, v64
    v_lshrrev_b32 v65, 4, v1
    v_lshl_add_u32 v64, v65, 10, v64
    v_add_u32 v64, s42, v64
    s_mov_b32 s53, 0x7fffffff
    s_mov_b32 s54, 0x07060100
    s_mov_b32 s55, 0x07060302
    """)
    sd = "dst_sel:DWORD dst_unused:UNUSED_PAD src0_sel:DWORD"
    for r in range(4):
        b0, b1, h0, h1 = vM + r, vM + 4 + r, vM + 8 + r, vM + 12 + r
        t = 8 + 4 * r
        a(f"""
        v_cvt_pk_bf16_f32 v{h0}, v{h0}, v{h0}
        v_mul_f32 v{b0}, {NLOG2E}, v{b0}
        v_mul_f32 v{b1}, {NLOG2E}, v{b1}
        v_and_b32 v{t}, s53, v{b0}
        v_and_b32 v{t+1}, s53, v{h1}
        v_and_b32 v{t+2}, s53, v{b1}
        v_add_u32 v{t}, 0x8000, v{t}
        v_add_u32 v{t+1}, 0x8000, v{t+1}
        v_add_u32 v{t+2}, 0x8000, v{t+2}
        v_sub_u32_sdwa v{t}, v{t}, v{h0} clamp {sd} src1_sel:WORD_0
        v_bfi_b32 v{b0}, s53, v{t}, v{b0}
        v_sub_u32_sdwa v{t+1}, v{t+1}, v{b0} clamp {sd} src1_sel:WORD_1
        v_bfi_b32 v{h1}, s53, v{t+1}, v{h1}
        v_sub_u32_sdwa v{t+2}, v{t+2}, v{h1} clamp {sd} src1_sel:WORD_1
        v_bfi_b32 v{b1}, s53, v{t+2}, v{b1}
        v_perm_b32 v{b0}, v{b0}, v{h0}, s54
        v_perm_b32 v{b1}, v{b1}, v{h1}, s55
        buffer_store_dword v{b0}, v64, s[{sTB}:{sTB+3}], 0 offen offset:{256*r}
        buffer_store_dword v{b1}, v64, s[{sTB}:{sTB+3}], 0 offen offset:{256*r+128}
        """)
    a(f"""
    s_waitcnt vmcnt(8) lgkmcnt(0)
    s_branch L1_join
    L1_nojob:
    s_waitcnt vmcnt(0) lgkmcnt(0)
    L1_join:
    s_barrier
    """)
    stamp(a, opt, 0, 5)
    vO = 8
    for k in range(4):
        a(f"ds_read_b32 v{vO+4*k+2}, v5 offset:{KEYS+256*k}")
    a(f"""
    v_mul_u32_u24 v6, 12, v4
    s_mul_i32 s42, s2, {SL*12}
    s_add_u32 s42, s42, {WS_REC}
    """)
    for k in range(4):
        a(f"""
        s_waitcnt lgkmcnt(3)
        v_lshrrev_b32 v{vO+4*k+3}, 17, v{vO+4*k+2}
        v_and_b32 v{vO+4*k+3}, 0x7ff8, v{vO+4*k+3}
        ds_read_b64 {vr(vO+4*k,2)}, v{vO+4*k+3} offset:{EA}
        v_lshlrev_b32 v{vO+4*k+2}, 2, v{vO+4*k+2}
        """)
    for k in range(4):
        a(f"""
        s_waitcnt lgkmcnt({3-k})
        s_mov_b64 exec, s[{44+2*k}:{45+2*k}]
        s_cbranch_execz L1_done
        buffer_store_dwordx3 {vr(vO+4*k,3)}, v6, s[{sWS}:{sWS+3}], s42 offen offset:{768*k}
        """)
    a("L1_done:")
    stamp(a, opt, 0, 6)
    if opt.get("stamps"):
        a("s_waitcnt vmcnt(0)")
        stamp(a, opt, 0, 7)
    stamp_out(a, opt, 0, 8, sWS)
    a("""
    L1_end:
    s_endpgm
    """)
    return a.text(), 65536


def k2(opt):
    a = Asm()
    CAP = 8576
    NODE = 0
    OFF = NPB * 768
    GD = OFF + CAP * 4
    EA = GD + CAP // 2
    CN = (EA + CAP * 8 + 255) & ~255
    MX, FL = CN + 256, CN + 260
    LDS = CN + 512
    LW, LX = EA, EA + 16384
    sX, sW, sU, sG, sO, sWS, sTB = 8, 12, 16, 20, 24, 28, 32
    ZOFF = N * 256
    safe = opt.get("safe")
    a(f"""
    edge_kernel:
    s_cmp_ge_u32 s2, 256
    s_cbranch_scc1 L2_end
    s_load_dwordx2 s[{sWS}:{sWS+1}], s[0:1], 72
    s_load_dwordx2 s[{sX}:{sX+1}], s[0:1], 0
    s_load_dwordx2 s[{sG}:{sG+1}], s[0:1], 48
    s_load_dwordx2 s[{sU}:{sU+1}], s[0:1], 32
    s_load_dwordx2 s[{sO}:{sO+1}], s[0:1], 56
    """)
    stamp(a, opt, 1, 0)
    a(f"""
    v_readfirstlane_b32 s3, v0
    v_and_b32 v1, 63, v0
    s_and_b32 s4, s2, 7
    s_lshl_b32 s4, s4, 5
    s_lshr_b32 s5, s2, 3
    s_add_u32 s4, s4, s5
    s_lshr_b32 s3, s3, 6
    s_mov_b32 s{sX+2}, {N*128}
    s_mov_b32 s{sX+3}, 0x20000
    s_mov_b32 s{sW+2}, 8192
    s_mov_b32 s{sW+3}, 0x20000
    s_mov_b32 s{sG+2}, {132*128}
    s_mov_b32 s{sG+3}, 0x20000
    s_mov_b32 s{sO+2}, {N*128}
    s_mov_b32 s{sO+3}, 0x20000
    s_mov_b32 s{sWS+2}, {WS_SIZE}
    s_mov_b32 s{sWS+3}, 0x20000
    s_mov_b32 s{sTB+2}, {WS_T}
    s_mov_b32 s{sTB+3}, {"0x20000" if safe else "0x800000"}
    s_mov_b32 s61, 0
    s_waitcnt lgkmcnt(0)
    s_add_u32 s{sTB}, s{sWS}, {WS_TB-128}
    s_addc_u32 s{sTB+1}, s{sWS+1}, {0 if safe else 0x40000}
    s_cmp_lt_u32 s3, 8
    s_cselect_b32 s{sW}, s{sG}, s{sU}
    s_cselect_b32 s{sW+1}, s{sG+1}, s{sU+1}
    L2_start:
    """)
    vT = 2
    vG4, vI = 6, 7
    a(f"""
    v_lshrrev_b32 v{vG4}, 4, v1
    v_and_b32 v{vI}, 15, v1
    v_lshlrev_b32 v8, 10, v{vG4}
    s_lshl_b32 s5, s3, 14
    s_lshl_b32 s6, s4, 2
    s_add_u32 s5, s5, s6
    s_add_u32 s5, s5, {WS_T}
    """)
    for u in range(4):
        a(f"buffer_load_dword v{vT+u}, v8, s[{sWS}:{sWS+3}], s5 offen")
        if u < 3:
            a("s_add_u32 s5, s5, 4096")
    a(f"""
    v_lshlrev_b32 v9, 4, v1
    s_lshl_b32 s7, s3, 10
    s_add_u32 m0, s7, {LW}
    s_and_b32 s5, s7, 8191
    buffer_load_dwordx4 v9, s[{sW}:{sW+3}], s5 offen lds
    s_add_u32 m0, s5, {LX}
    s_mul_i32 s6, s4, {NPB*128}
    s_add_u32 s6, s6, s5
    buffer_load_dwordx4 v9, s[{sX}:{sX+3}], s6 offen lds
    v_lshlrev_b32 v10, 1, v1
    s_movk_i32 s5, 0x4000
    """)
    vC = 12
    for k in range(4):
        a(f"buffer_load_ushort v{vC+k}, v10, s[{sG}:{sG+3}], s5 offen offset:{128*k}")
    a(f"""
    v_lshlrev_b32 v10, 2, v0
    v_add_u32 v10, {CN}, v10
    v_mov_b32 v11, 0
    s_cmp_lt_u32 s3, 2
    s_cbranch_scc0 L2_nz
    ds_write_b32 v10, v11
    L2_nz:
    s_mov_b32 s60, 0
    s_waitcnt vmcnt(6)
    """)
    stamp(a, opt, 1, 1)
    vR = 16
    vK = 48
    a(f"""
    L2_round:
    s_mul_i32 s5, s3, {16*SL*12}
    s_add_u32 s5, s5, {WS_REC}
    v_add_u32 v10, s60, v{vI}
    v_add_u32 v11, 16, v10
    v_mul_u32_u24 v8, {SL}, v{vG4}
    v_add_u32 v8, v8, v10
    """)
    for u in range(4):
        a(f"""
        v_lshrrev_b32 v9, 16, v{vT+u}
        v_cmp_lt_u32 s[{44+4*u}:{45+4*u}], v10, v9
        v_cmp_lt_u32 s[{46+4*u}:{47+4*u}], v11, v9
        v_and_b32 v9, 0xffff, v{vT+u}
        v_add_u32 v9, v9, v8
        v_mul_u32_u24 v9, 12, v9
        v_cndmask_b32 v{vK}, 2.0, v9, s[{44+4*u}:{45+4*u}]
        v_cndmask_b32 v{vK+1}, 2.0, v9, s[{46+4*u}:{47+4*u}]
        buffer_load_dwordx3 {vr(vR+8*u,3)}, v{vK}, s[{sWS}:{sWS+3}], s5 offen
        buffer_load_dwordx3 {vr(vR+8*u+4,3)}, v{vK+1}, s[{sWS}:{sWS+3}], s5 offen offset:192
        """)
        if u < 3:
            a(f"s_add_u32 s5, s5, {4*SL*12}")
    a(f"""
    s_waitcnt vmcnt(8) lgkmcnt(0)
    s_barrier
    s_cmp_eq_u32 s60, 0
    s_cbranch_scc0 L2_nojob
    """)
    stamp(a, opt, 1, 2)
    vEA, vBO = 56, 60
    for k in range(4):
        a(f"v_lshlrev_b32 v{vC+k}, 16, v{vC+k}\nv_mul_f32 v{vC+k}, {NLOG2E}, v{vC+k}")
    a(f"""
    v_cvt_pk_bf16_f32 v{vBO}, v{vC}, v{vC+1}
    v_cvt_pk_bf16_f32 v{vBO+1}, v{vC+2}, v{vC+3}
    v_max_u32 v8, v{vT}, v{vT+1}
    v_max3_u32 v8, v8, v{vT+2}, v{vT+3}
    v_lshrrev_b32 v8, 16, v8
    v_cmp_lt_u32 vcc, 32, v8
    s_and_saveexec_b64 s[42:43], vcc
    s_cbranch_execz L2_nomax
    v_mov_b32 v9, {MX}
    ds_max_u32 v9, v8
    L2_nomax:
    s_mov_b64 exec, -1
    """)
    if not opt.get("nopf"):
        a(f"""
        s_lshr_b32 s5, s2, 3
        s_mul_i32 s5, s5, {784*128}
        s_add_u32 s5, s5, {WS_TB}
        v_lshlrev_b32 v8, 7, v0
        s_cmp_lt_u32 s3, 13
        s_cbranch_scc0 L2_nopf
        buffer_load_dword v126, v8, s[{sWS}:{sWS+3}], s5 offen
        L2_nopf:
        """)
    a(f"""
    s_cmp_lt_u32 s3, 8
    s_cbranch_scc1 L2_nojob
    """)
    vA, vW, vM = 64, 72, 104
    gemm_job(a, LW, LX, vA, vW, vM, 8)
    a(f"""
    s_mul_i32 s42, s40, {16*768}
    s_lshl_b32 s43, s41, 7
    s_add_u32 s42, s42, s43
    v_mul_u32_u24 v8, {4*768}, v{vG4}
    v_lshl_add_u32 v8, v{vI}, 3, v8
    v_add_u32 v8, s42, v8
    """)
    for r in range(4):
        t = 64 + 8 * r
        a(f"""
        v_mul_f32 v{vM+r}, {NLOG2E}, v{vM+r}
        v_mul_f32 v{vM+4+r}, {NLOG2E}, v{vM+4+r}
        v_and_b32 v{t}, 0xffff0000, v{vM+r}
        v_and_b32 v{t+1}, 0xffff0000, v{vM+4+r}
        v_sub_f32 v{vM+r}, v{vM+r}, v{t}
        v_sub_f32 v{vM+4+r}, v{vM+4+r}, v{t+1}
        v_cvt_pk_bf16_f32 v{t}, v{t}, v{vM+r}
        v_cvt_pk_bf16_f32 v{t+1}, v{t+1}, v{vM+4+r}
        v_cvt_f64_f32 {vr(t+2,2)}, v{vM+8+r}
        v_cvt_f64_f32 {vr(t+4,2)}, v{vM+12+r}
        ds_write_b64 v8, {vr(t,2)} offset:{768*r}
        ds_write_b64 v8, {vr(t+2,2)} offset:{768*r+256}
        ds_write_b64 v8, {vr(t+4,2)} offset:{768*r+512}
        """)
    a(f"""
    L2_nojob:
    v_mov_b32 v9, 4
    s_mov_b32 s42, {CN}
    s_mov_b32 s43, 0xfc
    v_mov_b32 v8, s42
    s_waitcnt vmcnt(0)
    """)
    stamp(a, opt, 1, 3)
    for j in range(8):
        a(f"""
        s_mov_b64 exec, s[{44+2*j}:{45+2*j}]
        v_and_or_b32 v{vK+j}, v{vR+4*j+2}, s43, v8
        ds_add_rtn_u32 v{vR+4*j+3}, v{vK+j}, v9
        v_and_b32 v{vR+4*j+2}, 0x3fff00, v{vR+4*j+2}
        """)
    a(f"""
    s_mov_b64 exec, -1
    v_lshl_add_u32 v8, v1, 2, s42
    s_waitcnt lgkmcnt(0)
    s_barrier
    """)
    stamp(a, opt, 1, 4)
    a(f"""
    ds_read_b32 v10, v8
    v_cmp_eq_u32 vcc, {NPB}, v1
    s_waitcnt lgkmcnt(0)
    v_add_u32 v11, 28, v10
    v_and_b32 v11, 0xffffffe0, v11
    v_cndmask_b32 v11, v11, 32, vcc
    v_mov_b32 v12, v11
    """)
    scan64(a, 12)
    a(f"""
    v_sub_u32 v12, v12, v11
    s_mov_b32 s43, {EA}
    s_nop 0
    v_readlane_b32 s40, v12, {NPB}
    """)
    for j in range(8):
        a(f"ds_bpermute_b32 v{vK+j}, v{vK+j}, v12")
    a(f"""
    s_add_u32 s40, s40, 32
    s_lshr_b32 s40, s40, 6
    v_min_u32 v13, {NPB-1}, v1
    v_mul_u32_u24 v13, 768, v13
    s_lshl_b32 s5, s3, 5
    L2_gd:
    v_cmp_lt_u32 vcc, s5, v11
    s_and_saveexec_b64 s[6:7], vcc
    s_cbranch_execz L2_gdd
    v_add_u32 v14, s5, v12
    v_lshrrev_b32 v14, 3, v14
    v_add_u32 v14, {GD}, v14
    ds_write_b32 v14, v13
    s_add_u32 s5, s5, 512
    s_branch L2_gd
    L2_gdd:
    s_mov_b64 exec, -1
    s_lshl_b32 s5, s3, 2
    v_add_u32 v14, s5, v10
    v_cmp_lt_u32 vcc, v14, v11
    s_and_saveexec_b64 s[6:7], vcc
    s_cbranch_execz L2_nopad
    v_add_u32 v14, v14, v12
    v_and_b32 v13, 32, v14
    v_lshlrev_b32 v13, 2, v13
    v_add_u32 v13, {ZOFF}, v13
    ds_write_b32 v14, v13 offset:{OFF}
    v_lshl_add_u32 v14, v14, 1, s43
    v_mov_b64 v[10:11], 0
    ds_write_b64 v14, v[10:11]
    L2_nopad:
    s_waitcnt lgkmcnt(0)
    """)
    for j in range(8):
        p = vR + 4 * j + 3
        a(f"""
        s_mov_b64 exec, s[{44+2*j}:{45+2*j}]
        v_add_u32 v{p}, v{p}, v{vK+j}
        v_and_b32 v{vK+j}, 32, v{p}
        v_lshl_or_b32 v{p-1}, v{vK+j}, 2, v{p-1}
        ds_write_b32 v{p}, v{p-1} offset:{OFF}
        v_lshl_add_u32 v{vK+j}, v{p}, 1, s43
        ds_write_b64 v{vK+j}, {vr(p-3,2)}
        """)
    vAO, vAE, vAG, vN8 = 8, 9, 10, 11
    vS = 12
    a(f"""
    s_mov_b64 exec, -1
    v_lshrrev_b32 v14, 5, v1
    v_xor_b32 v15, 1, v14
    s_lshl_b32 s5, s3, 6
    v_lshl_add_u32 v{vAO}, v15, 5, s5
    s_lshl_b32 s5, s3, 3
    s_add_u32 s5, s5, {GD}
    v_lshl_add_u32 v{vAG}, v15, 2, s5
    v_and_b32 v{vN8}, 31, v1
    v_bfe_u32 v16, v1, 2, 1
    v_and_b32 v17, 1, v1
    v_cmp_eq_u32 vcc, v16, v14
    v_mov_b32 v18, 0x3f803f80
    v_xor_b32 v16, 1, v16
    v_cndmask_b32 v18, 0, v18, vcc
    v_cmp_eq_u32 vcc, 0, v17
    v_lshlrev_b32 v16, 3, v16
    v_lshrrev_b32 v19, 3, v{vN8}
    v_cndmask_b32 v{vEA+2}, 0, v18, vcc
    v_cndmask_b32 v{vEA+3}, v18, 0, vcc
    v_lshl_add_u32 v16, v19, 1, v16
    v_bfe_u32 v19, v1, 1, 1
    v_add_u32 v16, v16, v19
    s_lshl_b32 s5, s3, 7
    s_add_u32 s5, s5, {EA}
    v_lshl_add_u32 v{vAE}, v16, 3, s5
    v_lshlrev_b32 v{vN8}, 3, v{vN8}
    v_mov_b64 {vr(vEA,2)}, 0
    v_mov_b64 {vr(vS,2)}, 0
    s_mov_b32 s56, 0x55555555
    s_mov_b32 s57, 0xaaaaaaaa
    s_waitcnt lgkmcnt(0)
    s_barrier
    """)
    stamp(a, opt, 1, 5)
    if opt.get("stamps"): a("s_memtime s[84:85]")
    a(f"""
    s_cmp_eq_u32 s3, 0
    s_cbranch_scc0 L2_nz2
    v_lshl_add_u32 v14, v1, 2, s42
    ds_write_b32 v14, v{vS}
    L2_nz2:
    """)
    vGA, vGB, vH, vDD, vOF = 64, 80, 96, 112, 16
    vNA = (24, 25)
    vGDt = 26
    vP, vNn, vRc, vF = 28, 30, 32, 34
    vL4 = 27

    def rd_off(step):
        a(f"ds_read_b128 {vr(vOF,4)}, v{vAO} offset:{OFF+1024*step}")
        a(f"ds_read_b128 {vr(vOF+4,4)}, v{vAO} offset:{OFF+1024*step+16}")

    def gathers(g):
        if opt.get("nog"):
            return
        for r in range(8):
            if safe:
                a(f"v_add_u32 v{vOF+r}, v{vOF+r}, v{vL4}")
            a(f"buffer_load_dword v{g+2*r}, v{vOF+r}, s[{sTB}:{sTB+3}], 0 offen")
            a(f"buffer_load_dword v{g+2*r+1}, v{vOF+r}, s[{sTB}:{sTB+3}], 0 offen offset:128")

    def rd_gd_ea(step):
        a(f"ds_read_b32 v{vGDt}, v{vAG} offset:{128*step}")
        a(f"s_mov_b64 exec, s[56:57]\nds_read_b64 {vr(vEA,2)}, v{vAE} offset:{2048*step}\ns_mov_b64 exec, -1")

    def rd_apk(na):
        a(f"v_add_u32 v{na}, v{vGDt}, v{vN8}\nds_read_b64 {vr(vBO+2,2)}, v{na}")

    a(f"""
    v_lshlrev_b32 v{vL4}, 2, v1
    s_sub_u32 s41, s40, s3
    s_cbranch_scc1 L2_mdone
    s_add_u32 s41, s41, 15
    s_lshr_b32 s41, s41, 4
    s_cbranch_scc0 L2_mdone
    """)
    rd_off(0)
    rd_gd_ea(0)
    a("s_waitcnt lgkmcnt(2)")
    gathers(vGA)
    rd_off(1)
    a("s_waitcnt lgkmcnt(3)")
    rd_apk(vNA[0])
    a("s_cmp_lt_u32 s41, 2\ns_cbranch_scc1 L2_p1\ns_waitcnt lgkmcnt(1)")
    gathers(vGB)
    a("L2_p1:")
    rd_off(2)
    a("s_waitcnt lgkmcnt(0)\ns_cmp_eq_u32 s61, 0\ns_cbranch_scc0 L2_slow")

    def unit(tag, g, par, slow):
        na, nb = vNA[par], vNA[1 - par]
        a(f"""
        s_cmp_lt_u32 s41, 2
        s_cbranch_scc0 {tag}_w
        s_waitcnt vmcnt(0)
        {tag}_w:
        s_waitcnt vmcnt(16) lgkmcnt(2)
        v_mfma_f32_32x32x16_bf16 {vr(vDD,16)}, {vr(vEA,4)}, {vr(vBO,4)}, {vr(g,16)}
        """)
        if opt.get("shfirst"):
            mf = a.l.pop()
        for r in range(8):
            a(f"v_lshlrev_b64 {vr(vH+2*r,2)}, 16, {vr(g+2*r,2)}")
        if opt.get("shfirst"):
            a.l.append(mf)
            a("s_nop 3")
        a(f"s_cmp_lt_u32 s41, 3\ns_cbranch_scc1 {tag}_ng")
        gathers(g)
        a(f"{tag}_ng:")
        rd_gd_ea(par + 1)
        rd_off(par + 3)
        if par == 1:
            a(f"v_add_u32 v{vAO}, 2048, v{vAO}\nv_add_u32 v{vAE}, 4096, v{vAE}\nv_add_u32 v{vAG}, 256, v{vAG}")
        T = lambda r: vr(vDD + 2 * r, 2)
        H = lambda r: vr(vH + 2 * r, 2)
        P, Nn = vr(vP, 2), vr(vNn, 2)

        def ex(r):
            if opt.get("noex"): return
            a(f"v_exp_f32 v{vDD+2*r}, v{vDD+2*r}\nv_exp_f32 v{vDD+2*r+1}, v{vDD+2*r+1}")
        ex(0)
        ex(1)
        if not slow:
            a(f"v_pk_add_f32 {P}, {T(0)}, 1.0 op_sel_hi:[1,0]")
            ex(2)
            a(f"v_pk_fma_f32 {Nn}, {H(0)}, {T(1)}, {H(0)}")
            a(f"v_pk_fma_f32 {Nn}, {H(1)}, {P}, {Nn}")
            a(f"v_pk_fma_f32 {P}, {P}, {T(1)}, {P}")
            for r in range(2, 8):
                if r < 7:
                    ex(r + 1)
                if r == 3:
                    a("s_waitcnt lgkmcnt(3)")
                    rd_apk(nb)
                a(f"v_pk_fma_f32 {Nn}, {Nn}, {T(r)}, {Nn}")
                a(f"v_pk_fma_f32 {Nn}, {H(r)}, {P}, {Nn}")
                a(f"v_pk_fma_f32 {P}, {P}, {T(r)}, {P}")
            a(f"""
            v_rcp_f32 v{vRc}, v{vP}
            v_rcp_f32 v{vRc+1}, v{vP+1}
            v_pk_add_f32 {vr(vS,2)}, {vr(vS,2)}, {P}
            v_pk_mul_f32 {Nn}, {Nn}, {vr(vRc,2)}
            """)
        else:
            for r in range(2, 8):
                ex(r)
            a("s_waitcnt lgkmcnt(3)")
            rd_apk(nb)
            a(f"v_mov_b64 {Nn}, 0")
            for r in range(8):
                a(f"v_pk_add_f32 {T(r)}, {T(r)}, 1.0 op_sel_hi:[1,0]")
                a(f"v_rcp_f32 v{vDD+2*r}, v{vDD+2*r}\nv_rcp_f32 v{vDD+2*r+1}, v{vDD+2*r+1}\ns_nop 0")
                a(f"v_pk_fma_f32 {Nn}, {H(r)}, {T(r)}, {Nn}")
        a(f"""
        v_cvt_f64_f32 {vr(vF,2)}, v{vNn}
        v_cvt_f64_f32 {vr(vF+2,2)}, v{vNn+1}
        ds_add_f64 v{na}, {vr(vF,2)} offset:256
        ds_add_f64 v{na}, {vr(vF+2,2)} offset:512
        s_sub_u32 s41, s41, 1
        s_cmp_eq_u32 s41, 0
        """)

    def loop(tag, slow):
        a(f"{tag}:")
        unit(tag + "a", vGA, 0, slow)
        a("s_cbranch_scc1 L2_mdone")
        unit(tag + "b", vGB, 1, slow)
        a(f"s_cbranch_scc0 {tag}")

    loop("L2_fast", False)
    a(f"""
    L2_mdone:
    v_mov_b32 v14, {MX}
    ds_read_b32 v15, v14
    v_add_f32 v{vS}, v{vS}, v{vS+1}
    v_cmp_ngt_f32 vcc, 0x7e000000, v{vS}
    """)
    a(f"""
    s_and_saveexec_b64 s[6:7], vcc
    s_cbranch_execz L2_sok
    ds_write_b32 v14, v14 offset:4
    L2_sok:
    s_mov_b64 exec, -1
    s_waitcnt lgkmcnt(0)
    v_readfirstlane_b32 s5, v15
    s_add_u32 s60, s60, 32
    s_cmp_lt_u32 s60, s5
    s_cbranch_scc1 L2_round
    """)
    stamp(a, opt, 1, 6)
    a(f"""
    v_lshrrev_b32 v8, 4, v0
    v_mul_u32_u24 v9, 768, v8
    v_lshl_add_u32 v9, v{vI}, 5, v9
    v_lshlrev_b32 v10, 3, v0
    s_mul_i32 s5, s4, {NPB*128}
    s_barrier
    """)
    stamp(a, opt, 1, 7)
    if opt.get("stamps"): a("s_memtime s[86:87]")
    a(f"""
    v_cmp_gt_u32 vcc, {NPB*16}, v0
    s_and_saveexec_b64 s[6:7], vcc
    s_cbranch_execz L2_noout
    ds_read_b128 v[16:19], v9 offset:256
    ds_read_b128 v[20:23], v9 offset:272
    s_waitcnt lgkmcnt(0)
    """)
    for i in range(4):
        a(f"v_cvt_f32_f64 v{24+i}, {vr(16+2*i,2)}")
    for i in range(4):
        a(f"v_mul_f32 v{28+i}, {NLOG2E}, v{24+i}")
    for i in range(4):
        a(f"v_exp_f32 v{28+i}, v{28+i}")
    a("v_add_f32 v16, v24, v25\nv_add_f32 v17, v26, v27")
    for i in range(4):
        a(f"v_add_f32 v{28+i}, 1.0, v{28+i}")
    for i in range(4):
        a(f"v_rcp_f32 v{28+i}, v{28+i}")
    a("v_add_f32 v16, v16, v17\nv_mov_b32 v17, 0x207")
    for i in range(4):
        a(f"v_mul_f32 v{28+i}, v{28+i}, v{24+i}")
    a(f"""
    v_cvt_pk_bf16_f32 v28, v28, v29
    v_cvt_pk_bf16_f32 v29, v30, v31
    buffer_store_dwordx2 v[28:29], v10, s[{sO}:{sO+3}], s5 offen
    v_cmp_class_f32 vcc, v16, v17
    s_and_b64 exec, exec, vcc
    s_cbranch_execz L2_noout
    ds_write_b32 v14, v14 offset:4
    L2_noout:
    s_mov_b64 exec, -1
    s_cmp_eq_u32 s61, 0
    s_cbranch_scc0 L2_fin
    s_waitcnt lgkmcnt(0)
    s_barrier
    ds_read_b32 v15, v14 offset:4
    s_waitcnt lgkmcnt(0)
    v_readfirstlane_b32 s5, v15
    s_cmp_eq_u32 s5, {"s5" if opt.get("nog") or opt.get("noex") else 0}
    s_cbranch_scc1 L2_fin
    s_mov_b32 s61, 1
    s_waitcnt vmcnt(0)
    s_barrier
    s_branch L2_start
    L2_fin:
    """)
    stamp(a, opt, 1, 8)
    if opt.get("stamps"):
        a("s_waitcnt vmcnt(0)")
        stamp(a, opt, 1, 9)
    stamp_out(a, opt, 1, 12, sWS)
    a("""
    L2_end:
    s_endpgm
    """)
    loop("L2_slow", True)
    a("s_branch L2_mdone")
    return a.text(), LDS


def kd(name, vgpr):
    return f""".p2align 6
.amdhsa_kernel {name}
  .amdhsa_next_free_vgpr {vgpr}
  .amdhsa_next_free_sgpr 96
  .amdhsa_accum_offset {vgpr}
  .amdhsa_group_segment_fixed_size 0
  .amdhsa_kernarg_size 80
  .amdhsa_user_sgpr_count 2
  .amdhsa_user_sgpr_kernarg_segment_ptr 1
  .amdhsa_system_sgpr_workgroup_id_x 1
.end_amdhsa_kernel
"""


def gen(opt):
    t1, l1 = k1(opt)
    t2, l2 = k2(opt)
    ref = open(f"cdna_kernels/{NAME}.s.ref").read().split("\n")
    head = [x for x in ref[:11]]
    out = "\n".join(head) + "\n"
    out += f"; @launch kernel=part_kernel grid=(256,1,1) block=(1024,1,1) lds={l1}\n"
    out += f"; @launch kernel=edge_kernel grid=(256,1,1) block=(1024,1,1) lds={l2}\n"
    out += '.amdgcn_target "amdgcn-amd-amdhsa--gfx950"\n.text\n'
    for nm, t in (("part_kernel", t1), ("edge_kernel", t2)):
        out += f".globl {nm}\n.p2align 8\n.type {nm},@function\n" + t
    out += '.section .rodata,"a"\n' + kd("part_kernel", 72) + kd("edge_kernel", 128)
    return out


if __name__ == "__main__":
    opt = {}
    for x in sys.argv[2:]:
        k, _, v = x.partition("=")
        opt[k] = int(v) if v else 1
    open(sys.argv[1], "w").write(gen(opt))
```

```python
import sys, gen
def mk(src, out, A, B, wg=37, wave=3):
    s=open(src).read()
    lines=s.split("\n")
    last=max(i for i,l in enumerate(lines) if l.startswith("; @launch"))
    lines.insert(last+1,"; @launch kernel=spin_kernel grid=(1,1,1) block=(64,1,1) lds=0")
    s="\n".join(lines)
    def off(x): return gen.WS_DBG + x[0]*(1<<20) + (wg*16+wave)*64 + x[1]*4
    ldB = f"s_add_u32 s12, s4, {off(B)}\n s_addc_u32 s13, s5, 0\n s_load_dword s9, s[12:13], 0" if B else "s_mov_b32 s9, s16"
    body=f""".globl spin_kernel
.p2align 8
.type spin_kernel,@function
spin_kernel:
 s_cmp_ge_u32 s2, 1
 s_cbranch_scc1 Ls_end
 s_memrealtime s[16:17]
 s_load_dwordx2 s[4:5], s[0:1], 72
 s_waitcnt lgkmcnt(0)
 s_add_u32 s10, s4, {off(A)}
 s_addc_u32 s11, s5, 0
 s_load_dword s8, s[10:11], 0
 {ldB}
 s_waitcnt lgkmcnt(0)
 s_sub_u32 s8, s9, s8
 s_min_u32 s8, s8, 10000
 s_lshl_b32 s8, s8, 3
Ls_loop:
 s_memrealtime s[18:19]
 s_waitcnt lgkmcnt(0)
 s_sub_u32 s18, s18, s16
 s_cmp_lt_u32 s18, s8
 s_cbranch_scc1 Ls_loop
Ls_end:
 s_endpgm
"""
    s=s.replace('.section .rodata,"a"\n',body+'.section .rodata,"a"\n'+gen.kd("spin_kernel",8))
    open(out,"w").write(s)
if __name__=="__main__":
    mk("k_st.s","y0.s",(0,0),(0,0))
    mk("k_st.s","y1.s",(0,0),(0,7))
    mk("k_st.s","y2.s",(0,0),(1,0))
    mk("k_st.s","y3.s",(1,0),(1,5))
    mk("k_st.s","y4.s",(1,5),(1,7))
    mk("k_st.s","y5.s",(0,0),None)
```

```python
import sys, gen
def mk(src, out, A, B, single=False):
    s=open(src).read()
    lines=s.split("\n")
    idx=[i for i,l in enumerate(lines) if l.startswith("; @launch")]
    if "kernel=" not in lines[idx[0]]:
        lines[idx[0]]=lines[idx[0]].replace("@launch ","@launch kernel="+gen.NAME+"_kernel ")
    lines.insert(idx[-1]+1,"; @launch kernel=spin_kernel grid=(1,1,1) block=(64,1,1) lds=0")
    s="\n".join(lines)
    def red(x, dst):
        o=[]
        wgs=list(range(8))+list(range(240,248))
        for j,wg in enumerate(wgs):
            off=gen.WS_DBG + x[0]*(1<<20) + (wg*16)*64 + x[1]*4
            o.append(f" s_add_u32 s10, s4, {off}\n s_addc_u32 s11, s5, 0\n s_load_dword s{32+j}, s[10:11], 0")
        o.append(" s_waitcnt lgkmcnt(0)")
        o.append(f" s_mov_b32 s{dst}, s32")
        for j in range(1,16): o.append(f" s_{x[2]}_u32 s{dst}, s{dst}, s{32+j}")
        return "\n".join(o)
    body=f""".globl spin_kernel
.p2align 8
.type spin_kernel,@function
spin_kernel:
 s_cmp_ge_u32 s2, 1
 s_cbranch_scc1 Ls_end
 s_memrealtime s[16:17]
 s_load_dwordx2 s[4:5], s[0:1], 72
 s_waitcnt lgkmcnt(0)
{red(A,8)}
{red(B,9) if B else " s_mov_b32 s9, s16"}
 s_sub_u32 s8, s9, s8
 s_min_u32 s8, s8, 10000
 s_lshl_b32 s8, s8, 3
 s_add_u32 s8, s8, 400
Ls_loop:
 s_memrealtime s[18:19]
 s_waitcnt lgkmcnt(0)
 s_sub_u32 s18, s18, s16
 s_cmp_lt_u32 s18, s8
 s_cbranch_scc1 Ls_loop
Ls_end:
 s_endpgm
"""
    s=s.replace('.section .rodata,"a"\n',body+'.section .rodata,"a"\n'+gen.kd("spin_kernel",8))
    open(out,"w").write(s)
if __name__=="__main__":
    mk("k_st.s","y0.s",(0,0,'min'),(0,0,'min'))
    mk("k_st.s","y1.s",(0,0,'min'),(0,0,'max'))
    mk("k_st.s","y2.s",(0,0,'min'),(0,7,'max'))
    mk("k_st.s","y3.s",(0,7,'max'),(1,0,'min'))
    mk("k_st.s","y4.s",(1,0,'min'),(1,0,'max'))
    mk("k_st.s","y5.s",(0,0,'min'),None)
```

```python
import sys

NAME = "gather_scatter__edge_featured_mpnn_egc__graph"
N, E = 12500, 800000
NPB = 49
SL = 3136
WS_TB = 0
WS_T = 4 << 20
WS_K = 5 << 20
WS_E = 9 << 20
WS_DBG = 32 << 20
WS_SIZE = 64 << 20
NLOG2E = "0xbfb8aa3b"
OOB = 0x40000000

CN2 = 0
GC, MORE, FL = 256, 260, 264
CNT, BASE = 512, 1536
NODE = 2560
GD = NODE + NPB * 768
OFF = GD + 6400
EA = OFF + 25344
LWA = EA + 50240
LX = LWA + 16384
LDS = LX + 8192
KEYS, EAIN, TBS, LWB = 40192, 53504, 80128, 96512
ZOFF = N * 8


class Asm:
    def __init__(self):
        self.l = []

    def __call__(self, s):
        for x in s.split("\n"):
            x = x.strip()
            if x:
                self.l.append(("" if x.endswith(":") else "    ") + x)

    def text(self):
        return "\n".join(self.l) + "\n"


def vr(a, n):
    return f"v[{a}:{a+n-1}]"


def sr(a, n=4):
    return f"s[{a}:{a+n-1}]"


def scan64(a, v):
    for sh in (1, 2, 4, 8):
        a(f"s_nop 1\nv_add_u32_dpp v{v}, v{v}, v{v} row_shr:{sh} row_mask:0xf bank_mask:0xf bound_ctrl:0")
    a(f"s_nop 1\nv_add_u32_dpp v{v}, v{v}, v{v} row_bcast:15 row_mask:0xa bank_mask:0xf")
    a(f"s_nop 1\nv_add_u32_dpp v{v}, v{v}, v{v} row_bcast:31 row_mask:0xc bank_mask:0xf")


def gemm_job(a, vXA, vWA, wofs, vA, vB, vD):
    a(f"ds_read_b128 {vr(vA,4)}, v{vXA}\nds_read_b128 {vr(vA+4,4)}, v{vXA} offset:64")
    idx = 0
    for M in range(2):
        for t in range(2):
            for s in range(2):
                for j2 in range(2):
                    a(f"ds_read_b64_tr_b16 {vr(vB+2*idx,2)}, v{vWA} offset:{wofs+M*8192+s*4096+j2*512+t*64}")
                    idx += 1
    for q in range(4):
        a(f"s_waitcnt lgkmcnt({12-4*q})")
        a(f"v_mfma_f32_16x16x32_bf16 {vr(vD+4*q,4)}, {vr(vA,4)}, {vr(vB+8*q,4)}, 0")
        a(f"v_mfma_f32_16x16x32_bf16 {vr(vD+4*q,4)}, {vr(vA+4,4)}, {vr(vB+8*q+4,4)}, {vr(vD+4*q,4)}")


def kernel(opt):
    a = Asm()
    safe = opt.get("safe")
    nst = [0]

    def stamp():
        if opt.get("stamps"):
            a(f"s_memrealtime s[94:95]\ns_waitcnt lgkmcnt(0)\nv_writelane_b32 v127, s94, {nst[0]}")
            nst[0] += 1

    sDST, sSRC, sEA, sX, sWB, sWA, sG, sWS, sTB, sO, sDB = 8, 12, 16, 20, 24, 28, 32, 36, 64, 68, 72
    SC = "sc1"
    a(f"""
    {NAME}_kernel:
    s_cmp_ge_u32 s2, 256
    s_cbranch_scc1 L_end
    s_load_dwordx2 s[{sX}:{sX+1}], s[0:1], 0
    s_load_dwordx2 s[{sG}:{sG+1}], s[0:1], 48
    s_load_dwordx2 s[{sWB}:{sWB+1}], s[0:1], 40
    s_load_dwordx2 s[{sDST}:{sDST+1}], s[0:1], 24
    s_load_dwordx2 s[{sSRC}:{sSRC+1}], s[0:1], 16
    s_load_dwordx2 s[{sEA}:{sEA+1}], s[0:1], 8
    s_load_dwordx2 s[{sWA}:{sWA+1}], s[0:1], 32
    s_load_dwordx2 s[{sWS}:{sWS+1}], s[0:1], 72
    s_load_dwordx2 s[{sO}:{sO+1}], s[0:1], 56
    s_load_dwordx2 s[{sDB}:{sDB+1}], s[0:1], 64
    """)
    if opt.get("stamps"):
        a("s_memrealtime s[92:93]")
    a(f"""
    v_readfirstlane_b32 s3, v0
    v_and_b32 v1, 63, v0
    v_lshlrev_b32 v2, 2, v0
    v_mov_b32 v40, 0
    ds_write_b32 v2, v40
    s_and_b32 s4, s2, 7
    s_lshl_b32 s4, s4, 5
    s_lshr_b32 s5, s2, 3
    s_add_u32 s4, s4, s5
    s_lshr_b32 s3, s3, 6
    """)
    for s, sz in ((sX, N * 128), (sWB, 16384), (sDST, E * 4), (sSRC, E * 4), (sEA, E * 8), (sWA, 8192),
                  (sG, 132 * 128), (sWS, WS_SIZE), (sO, N * 128), (sDB, 256)):
        a(f"s_mov_b32 s{s+2}, {sz}\ns_mov_b32 s{s+3}, 0x20000")
    a(f"""
    s_mov_b32 s{sTB+2}, {WS_T}
    s_mov_b32 s{sTB+3}, {"0x20000" if safe else "0xc00000"}
    s_cmp_lt_u32 s2, 255
    s_movk_i32 s5, 784
    s_cselect_b32 s5, s5, 80
    v_cmp_gt_u32 s[44:45], s5, v0
    v_lshlrev_b32 v4, 4, v0
    v_lshlrev_b32 v7, 4, v1
    s_mul_i32 s6, s2, {SL*4}
    s_lshl_b32 s7, s3, 10
    v_cndmask_b32 v5, 2.0, v4, s[44:45]
    s_mul_i32 s63, s4, {NPB*128}
    s_add_u32 s42, s63, s7
    s_add_u32 m0, s7, {LX}
    s_xor_b32 s43, s7, 8192
    s_cmp_lt_u32 s3, 7
    s_waitcnt lgkmcnt(0)
    s_cbranch_scc0 L_nox
    buffer_load_dwordx4 v7, {sr(sX)}, s42 offen lds
    L_nox:
    s_add_u32 m0, s7, {LWB}
    s_cmp_lt_u32 s3, 8
    s_cselect_b32 s{sWB}, s{sG}, s{sWB}
    s_cselect_b32 s{sWB+1}, s{sG+1}, s{sWB+1}
    s_cselect_b32 s{sWA}, s{sG}, s{sWA}
    s_cselect_b32 s{sWA+1}, s{sG+1}, s{sWA+1}
    buffer_load_dwordx4 v7, {sr(sWB)}, s43 offen lds
    buffer_load_dwordx4 v[8:11], v5, {sr(sDST)}, s6 offen
    """)
    if opt.get("stamps"):
        a("v_writelane_b32 v127, s92, 0")
        nst[0] = 1
    a(f"""
    s_lshl_b32 s42, s2, 12
    s_add_u32 s42, s42, s7
    s_add_u32 s42, s42, {WS_T - 12*1024}
    s_cmp_lt_u32 s2, 64
    s_cselect_b32 s42, s42, {OOB}
    s_cmp_ge_u32 s3, 12
    s_cselect_b32 s42, s42, {OOB}
    v_add_u32 v6, s42, v7
    v_mov_b32 v41, 0
    v_mov_b64 v[42:43], 0
    s_barrier
    buffer_store_dwordx4 v[40:43], v6, {sr(sWS)}, 0 offen {SC}
    buffer_load_dwordx4 v[12:15], v5, {sr(sSRC)}, s6 offen
    s_add_u32 m0, s7, {EAIN}
    s_lshl_b32 s42, s6, 1
    s_add_u32 s42, s42, s7
    buffer_load_dwordx4 v7, {sr(sEA)}, s42 offen lds
    s_add_u32 m0, s7, {LWA}
    s_and_b32 s43, s7, 8191
    v_lshlrev_b32 v6, 1, v1
    buffer_load_dwordx4 v7, {sr(sWA)}, s43 offen lds
    s_movk_i32 s43, 0x4000
    """)
    vC = 120
    for k in range(4):
        a(f"buffer_load_ushort v{vC+k}, v6, {sr(sG)}, s43 offen offset:{128*k}")
    a(f"""
    s_cmp_lt_u32 s3, 9
    s_cbranch_scc0 L_noe
    s_add_u32 m0, s7, {EAIN+16384}
    s_add_u32 s42, s42, 16384
    s_nop 0
    buffer_load_dwordx4 v7, {sr(sEA)}, s42 offen lds
    L_noe:
    """)
    vXA, vWA, vG4, vI = 124, 125, 126, 6
    a(f"""
    s_mov_b32 s{sTB}, s{sWS}
    s_or_b32 s{sTB+1}, s{sWS+1}, {0 if safe else 0x80000000}
    s_bfe_u32 s40, s3, 0x20001
    s_and_b32 s41, s3, 1
    v_and_b32 v{vI}, 15, v1
    v_lshrrev_b32 v{vG4}, 4, v1
    s_lshl_b32 s42, s40, 11
    s_add_u32 s42, s42, {LX}
    v_lshlrev_b32 v{vXA}, 7, v{vI}
    v_lshl_add_u32 v{vXA}, v{vG4}, 4, v{vXA}
    v_add_u32 v{vXA}, s42, v{vXA}
    v_lshrrev_b32 v{vWA}, 2, v{vI}
    v_lshl_add_u32 v{vWA}, v{vG4}, 3, v{vWA}
    v_lshlrev_b32 v{vWA}, 7, v{vWA}
    v_and_b32 v2, 3, v1
    v_lshl_add_u32 v{vWA}, v2, 3, v{vWA}
    s_lshl_b32 s42, s41, 5
    s_add_u32 s42, s42, {LWB}
    v_add_u32 v{vWA}, s42, v{vWA}
    s_lshl_b32 s42, s40, 12
    s_lshl_b32 s43, s41, 6
    s_add_u32 s42, s42, s43
    s_add_u32 s42, s42, {TBS}
    v_lshlrev_b32 v2, 10, v{vG4}
    v_lshl_add_u32 v2, v{vI}, 2, v2
    v_add_u32 v2, s42, v2
    v_lshlrev_b32 v28, 16, v0
    v_mov_b32 v3, 4
    v_mov_b32 v29, 0x21800000
    s_mov_b32 s52, -{NPB}
    s_mov_b32 s53, {NLOG2E}
    s_movk_i32 s54, 0x4000
    s_mov_b32 s55, 0x8000
    s_mov_b32 s56, 0xc000
    s_mov_b32 s61, 0
    s_waitcnt vmcnt(9)
    s_barrier
    """)
    stamp()
    vA, vW, vM = 64, 72, 104
    a("s_cmp_lt_u32 s3, 8\ns_cbranch_scc1 L_nojob1")
    gemm_job(a, vXA, vWA, 0, vA, vW, vM)
    sd = "dst_sel:DWORD dst_unused:UNUSED_PAD src0_sel:DWORD"
    a("s_nop 1")
    for r in range(4):
        a(f"v_fma_f32 v{vM+r}, v{vM+r}, s53, v29")
    for r in range(4):
        a(f"v_fma_f32 v{vM+4+r}, v{vM+4+r}, s53, v29")
    for r in range(4):
        a(f"v_cvt_pk_bf16_f32 v{64+r}, v{vM+8+r}, v{vM+8+r}")
    for r in range(4):
        a(f"v_add_f32 v{vM+12+r}, 0, v{vM+12+r}")
    for r in range(4):
        a(f"v_sub_u32_sdwa v{vM+r}, v{vM+r}, v{64+r} clamp {sd} src1_sel:WORD_0")
    for r in range(4):
        a(f"v_cvt_pk_bf16_f32 v{vM+r}, v{vM+8+r}, v{vM+r}")
    for r in range(4):
        a(f"v_sub_u32_sdwa v{vM+12+r}, v{vM+12+r}, v{vM+r} clamp {sd} src1_sel:WORD_1")
    for r in range(4):
        a(f"v_cvt_pk_bf16_f32 v{64+r}, v{vM+12+r}, v{vM+12+r}")
    for r in range(4):
        a(f"v_sub_u32_sdwa v{vM+4+r}, v{vM+4+r}, v{64+r} clamp {sd} src1_sel:WORD_0")
    for r in range(4):
        a(f"v_cvt_pk_bf16_f32 v{vM+4+r}, v{vM+12+r}, v{vM+4+r}")
        a(f"ds_write2_b32 v2, v{vM+r}, v{vM+4+r} offset0:{64*r} offset1:{64*r+32}")
    vD, vS, vB, vR, vL = 8, 12, 16, 20, 24
    a(f"""
    L_nojob1:
    s_mov_b64 exec, s[44:45]
    s_cbranch_execz L_norank
    s_waitcnt vmcnt(8)
    """)
    for k in range(4):
        a(f"""
        v_mul_u32_u24 v{vB+k}, 21400, v{vD+k}
        v_lshrrev_b32 v{vB+k}, 20, v{vB+k}
        v_mad_i32_i24 v{vL+k}, v{vB+k}, s52, v{vD+k}
        v_lshlrev_b32 v{vB+k}, 2, v{vB+k}
        ds_add_rtn_u32 v{vR+k}, v{vB+k}, v3 offset:{CNT}
        """)
    for k in range(4):
        a(f"v_lshl_or_b32 v{vL+k}, v{vL+k}, 26, v28")
    a(f"""
    L_norank:
    s_mov_b64 exec, -1
    s_cmp_lt_u32 s3, 9
    s_cbranch_scc1 L_w2
    s_waitcnt vmcnt(6)
    L_w2:
    s_waitcnt vmcnt(7)
    v_or_b32 v{vS}, v{vS}, v{vL}
    v_or3_b32 v{vS+1}, v{vS+1}, v{vL+1}, s54
    v_or3_b32 v{vS+2}, v{vS+2}, v{vL+2}, s55
    v_or3_b32 v{vS+3}, v{vS+3}, v{vL+3}, s56
    v_add_u32 v30, {TBS - 3072}, v4
    s_cmp_lt_u32 s3, 3
    s_waitcnt lgkmcnt(0)
    s_barrier
    """)
    if opt.get("stamps"):
        stamp()
        a("s_cmp_lt_u32 s3, 3")
    a(f"""
    s_cbranch_scc1 L_notb
    ds_read_b128 v[32:35], v30
    v_cmp_gt_u32 s[46:47], {784+192}, v0
    s_lshl_b32 s42, s63, 1
    v_subrev_u32 v30, 3072, v4
    v_cndmask_b32 v30, 2.0, v30, s[46:47]
    s_waitcnt lgkmcnt(0)
    buffer_store_dwordx4 v[32:35], v30, {sr(sWS)}, s42 offen {SC}
    s_branch L_noscan
    L_notb:
    s_lshl_b32 s42, s2, 2
    s_cmp_eq_u32 s3, 1
    s_cselect_b32 s42, s42, 0x1000
    v_lshl_add_u32 v31, v1, 10, s42
    buffer_store_dword v3, v31, {sr(sDB)}, 0 offen {SC}
    s_cmp_eq_u32 s3, 0
    s_cbranch_scc0 L_noscan
    ds_read_b128 v[32:35], v7 offset:{CNT}
    s_waitcnt lgkmcnt(0)
    v_add_u32 v44, v32, v33
    v_add_u32 v45, v44, v34
    v_add_u32 v46, v45, v35
    v_mov_b32 v36, v46
    """.replace(f"v_cmp_gt_u32 s[46:47], {784+192}, v0", f"s_movk_i32 s43, {784+192}\nv_cmp_gt_u32 s[46:47], s43, v0"))
    scan64(a, 36)
    a(f"""
    v_sub_u32 v36, v36, v46
    v_add_u32 v36, 0x40000, v36
    v_add_u32 v37, v36, v32
    v_add_u32 v38, v36, v44
    v_add_u32 v39, v36, v45
    v_lshl_add_u32 v36, v32, 16, v36
    v_lshl_add_u32 v37, v33, 16, v37
    v_lshl_add_u32 v38, v34, 16, v38
    v_lshl_add_u32 v39, v35, 16, v39
    ds_write_b128 v7, v[36:39] offset:{BASE}
    s_waitcnt lgkmcnt(0)
    L_noscan:
    s_barrier
    """)
    stamp()
    a("s_mov_b64 exec, s[44:45]\ns_cbranch_execz L_nosc")
    for k in range(4):
        a(f"ds_read_u16 v{vB+k}, v{vB+k} offset:{BASE}")
    for k in range(4):
        a(f"""
        s_waitcnt lgkmcnt(3)
        v_add_u32 v{vB+k}, v{vB+k}, v{vR+k}
        ds_write_b32 v{vB+k}, v{vS+k} offset:{KEYS}
        """)
    vBO, vEA = 60, 56
    a(f"""
    L_nosc:
    s_mov_b64 exec, -1
    v_lshlrev_b32 v2, 3, v0
    s_mul_i32 s42, s2, {SL*8}
    s_add_u32 s42, s42, {WS_E}
    s_add_u32 s43, s6, {WS_K}
    s_add_u32 s5, s42, 16384
    s_waitcnt vmcnt(1) lgkmcnt(0)
    s_barrier
    """)
    stamp()
    a(f"""
    ds_read_b64 v[8:9], v2 offset:{KEYS}
    ds_read_b64 v[10:11], v2 offset:{KEYS+8192}
    ds_read_b128 v[20:23], v4 offset:{KEYS-3072}
    v_cmp_gt_u32 vcc, {1568-1024}, v0
    s_waitcnt lgkmcnt(2)
    """)
    for k in range(2):
        a(f"v_lshrrev_b32 v{8+k}, 11, v{8+k}\nv_and_b32 v{8+k}, 0x7ff8, v{8+k}\nds_read_b64 {vr(12+2*k,2)}, v{8+k} offset:{EAIN}")
    a(f"""
    s_cmp_lt_u32 s3, 3
    s_cbranch_scc1 L_nok
    s_waitcnt lgkmcnt(2)
    buffer_store_dwordx4 v[20:23], v30, {sr(sWS)}, s43 offen {SC}
    L_nok:
    s_and_saveexec_b64 s[48:49], vcc
    s_cbranch_execz L_noe2
    s_waitcnt lgkmcnt(2)
    """)
    for k in range(2, 4):
        a(f"v_lshrrev_b32 v{8+k}, 11, v{8+k}\nv_and_b32 v{8+k}, 0x7ff8, v{8+k}\nds_read_b64 {vr(12+2*k,2)}, v{8+k} offset:{EAIN}")
    a(f"""
    s_waitcnt lgkmcnt(0)
    buffer_store_dwordx4 v[16:19], v4, {sr(sWS)}, s5 offen {SC}
    L_noe2:
    s_mov_b64 exec, -1
    s_waitcnt lgkmcnt(0)
    buffer_store_dwordx4 v[12:15], v4, {sr(sWS)}, s42 offen {SC}
    """)
    stamp()
    vAH, vAM, vEM, vEC, vN8 = 48, 49, 50, 51, 52
    vTA = 53
    for k in range(4):
        a(f"v_lshlrev_b32 v{vC+k}, 16, v{vC+k}\nv_mul_f32 v{vC+k}, s53, v{vC+k}")
    a(f"""
    v_cvt_pk_bf16_f32 v{vBO}, v{vC}, v{vC+1}
    v_cvt_pk_bf16_f32 v{vBO+1}, v{vC+2}, v{vC+3}
    v_lshrrev_b32 v24, 5, v1
    v_bfe_u32 v25, v1, 2, 1
    v_and_b32 v26, 1, v1
    v_and_b32 v{vN8}, 31, v1
    v_cmp_eq_u32 vcc, v25, v24
    v_mov_b32 v27, 0x3f803f80
    v_lshrrev_b32 v28, 3, v{vN8}
    v_cndmask_b32 v27, 0, v27, vcc
    v_cmp_eq_u32 vcc, 0, v26
    v_bfe_u32 v29, v1, 1, 1
    v_lshl_add_u32 v28, v28, 1, v29
    v_cndmask_b32 v{vEA+2}, 0, v27, vcc
    v_cndmask_b32 v{vEA+3}, v27, 0, vcc
    v_cmp_eq_u32 vcc, v26, v24
    v_lshlrev_b32 v28, 3, v28
    v_add_u32 v28, {EA}, v28
    v_mov_b32 v29, {EA + NPB*1024}
    v_cndmask_b32 v{vEC}, v29, v28, vcc
    v_cndmask_b32 v{vEM}, 0, 2, vcc
    v_lshlrev_b32 v{vN8}, 3, v{vN8}
    s_lshl_b32 s5, s3, 4
    s_add_u32 s5, s5, {GD}
    v_lshl_add_u32 v120, v24, 3, s5
    v_lshl_add_u32 v121, v25, 3, s5
    s_lshl_b32 s5, s3, 14
    s_lshl_b32 s42, s4, 2
    s_add_u32 s5, s5, s42
    s_add_u32 s5, s5, {WS_T}
    v_lshl_add_u32 v{vTA}, v{vG4}, 10, s5
    s_movk_i32 s76, 0x1000
    s_movk_i32 s77, 0x2000
    s_movk_i32 s78, 0x3000
    s_mul_i32 s5, s3, {16*SL*4}
    s_add_u32 s80, s5, {WS_K}
    s_lshl_b32 s5, s5, 1
    s_add_u32 s84, s5, {WS_E}
    """)
    for u in range(1, 4):
        a(f"s_add_u32 s{80+u}, s80, {u*4*SL*4}\ns_add_u32 s{84+u}, s84, {u*4*SL*8}")
    a(f"""
    s_lshr_b32 s5, s2, 3
    s_lshl_b32 s5, s5, 4
    s_add_u32 s5, s5, s3
    s_mul_i32 s88, s5, {49*128}
    v_lshlrev_b32 v54, 7, v1
    s_mov_b32 s62, 0
    s_cmp_eq_u32 s3, 0
    s_cbranch_scc0 L_nodbg
    v_lshlrev_b32 v24, 2, v1
    L_dbg:
    buffer_load_dword v25, v24, {sr(sDB)}, 0 offen {SC}
    s_add_u32 s62, s62, 1
    s_bitcmp1_b32 s62, 20
    s_cbranch_scc1 L_end
    s_waitcnt vmcnt(0)
    v_cmp_eq_u32 vcc, 0, v25
    s_cbranch_vccnz L_dbg
    L_nodbg:
    s_waitcnt vmcnt(0)
    s_barrier
    """)
    stamp()
    PF1 = opt.get("pf1", 20)
    a(f"""
    s_cmp_eq_u32 s3, 0
    s_cbranch_scc0 L_not
    s_lshl_b32 s42, s2, 10
    s_add_u32 s42, s42, {WS_T}
    buffer_store_dwordx4 v[36:39], v7, {sr(sWS)}, s42 offen {SC}
    L_not:
    """)
    if PF1:
        a(f"""
        s_mov_b32 exec_lo, {hex(((1 << PF1) - 1) & 0xffffffff)}
        s_mov_b32 exec_hi, {hex(((1 << PF1) - 1) >> 32)}
        buffer_load_dword v55, v54, {sr(sWS)}, s88 offen {SC}
        s_mov_b64 exec, -1
        """)
    a(f"""
    L_restart:
    s_mov_b32 s60, 0
    s_cmp_lt_u32 s3, 8
    s_cbranch_scc1 L_nojob2
    """)
    gemm_job(a, vXA, vWA, LWA - LWB, vA, vW, vM)
    a(f"""
    s_bfe_u32 s40, s3, 0x20001
    s_and_b32 s41, s3, 1
    s_mul_i32 s42, s40, {16*768}
    s_lshl_b32 s43, s41, 7
    s_add_u32 s42, s42, s43
    v_mul_u32_u24 v8, {4*768}, v{vG4}
    v_lshl_add_u32 v8, v{vI}, 3, v8
    v_add_u32 v8, s42, v8
    s_cmp_eq_u32 s40, 3
    s_cselect_b64 exec, 0xffff, -1
    """)
    for r in range(4):
        t = 64 + 8 * r
        a(f"""
        v_mul_f32 v{vM+r}, s53, v{vM+r}
        v_mul_f32 v{vM+4+r}, s53, v{vM+4+r}
        v_and_b32 v{t}, 0xffff0000, v{vM+r}
        v_and_b32 v{t+1}, 0xffff0000, v{vM+4+r}
        v_sub_f32 v{vM+r}, v{vM+r}, v{t}
        v_sub_f32 v{vM+4+r}, v{vM+4+r}, v{t+1}
        v_cvt_pk_bf16_f32 v{t}, v{t}, v{vM+r}
        v_cvt_pk_bf16_f32 v{t+1}, v{t+1}, v{vM+4+r}
        v_cvt_f64_f32 {vr(t+2,2)}, v{vM+8+r}
        v_cvt_f64_f32 {vr(t+4,2)}, v{vM+12+r}
        ds_write_b64 v8, {vr(t,2)} offset:{NODE+768*r}
        ds_write_b64 v8, {vr(t+2,2)} offset:{NODE+768*r+256}
        ds_write_b64 v8, {vr(t+4,2)} offset:{NODE+768*r+512}
        """)
        if r == 0:
            a("s_cbranch_scc1 L_nojob2")
    vT = 2
    a(f"""
    L_nojob2:
    s_mov_b64 exec, -1
    L_poll:
    buffer_load_dword v{vT}, v{vTA}, {sr(sWS)}, 0 offen {SC}
    buffer_load_dword v{vT+1}, v{vTA}, {sr(sWS)}, s76 offen {SC}
    buffer_load_dword v{vT+2}, v{vTA}, {sr(sWS)}, s77 offen {SC}
    buffer_load_dword v{vT+3}, v{vTA}, {sr(sWS)}, s78 offen {SC}
    s_add_u32 s62, s62, 1
    s_bitcmp1_b32 s62, 20
    s_cbranch_scc1 L_end
    s_waitcnt vmcnt(0)
    v_min_u32 v8, v{vT}, v{vT+1}
    v_min3_u32 v8, v8, v{vT+2}, v{vT+3}
    v_cmp_eq_u32 vcc, 0, v8
    s_cbranch_vccnz L_poll
    """)
    stamp()
    a(f"""
    L_window:
    v_add_u32 v8, s60, v{vI}
    v_lshlrev_b32 v9, 18, v8
    v_add_u32 v9, {8<<16}, v9
    v_add_u32 v10, {64<<16}, v9
    """)
    for u in range(4):
        a(f"v_cmp_le_u32 s[{44+2*u}:{45+2*u}], v9, v{vT+u}\nv_cmp_le_u32 s[{52+2*u}:{53+2*u}], v10, v{vT+u}")
    vRk, vRe, vRa, vRp = 64, 72, 88, 96
    a(f"""
    L_round:
    v_add_u32 v8, s60, v{vI}
    v_mul_u32_u24 v9, {SL}, v{vG4}
    v_add_lshl_u32 v8, v8, v9, 2
    """)
    for u in range(4):
        a(f"v_add_u32_sdwa v{12+u}, v8, v{vT+u} {sd} src1_sel:WORD_0\nv_lshlrev_b32 v{16+u}, 1, v{12+u}")
    for u in range(4):
        a(f"""
        s_mov_b64 exec, s[{52+2*u}:{53+2*u}]
        s_cbranch_execz L_n2_{u}
        buffer_load_dword v{vRk+4+u}, v{12+u}, {sr(sWS)}, s{80+u} offen offset:64 {SC}
        buffer_load_dwordx2 {vr(vRe+8+2*u,2)}, v{16+u}, {sr(sWS)}, s{84+u} offen offset:128 {SC}
        L_n2_{u}:
        """)
    a("s_mov_b64 exec, -1")
    for u in range(4):
        a(f"buffer_load_dword v{vRk+u}, v{12+u}, {sr(sWS)}, s{80+u} offen {SC}")
    for u in range(4):
        a(f"buffer_load_dwordx2 {vr(vRe+2*u,2)}, v{16+u}, {sr(sWS)}, s{84+u} offen {SC}")
    m2 = ((1 << 49) - 1) & ~((1 << PF1) - 1)
    npf = 1 if m2 and not opt.get("nopf2") else 0
    if npf:
        a(f"""
        s_mov_b32 exec_lo, {hex(m2 & 0xffffffff)}
        s_mov_b32 exec_hi, {hex(m2 >> 32)}
        buffer_load_dword v55, v54, {sr(sWS)}, s88 offen {SC}
        s_mov_b64 exec, -1
        """)
    a(f"""
    v_mov_b32 v8, {NPB*512}
    v_mov_b32 v9, {NODE}
    v_lshlrev_b32 v10, 3, v0
    v_cmp_gt_u32 vcc, 800, v0
    s_and_saveexec_b64 s[42:43], vcc
    ds_write_b64 v10, v[8:9] offset:{GD}
    v_cmp_gt_u32 vcc, 8, v0
    s_and_b64 exec, exec, vcc
    s_cbranch_execz L_nodum
    v_mov_b32 v8, {ZOFF}
    v_lshlrev_b32 v9, 2, v0
    v_add_u32 v9, {OFF + NPB*512}, v9
    ds_write_b32 v9, v8
    v_mov_b64 v[8:9], 0
    v_add_u32 v10, {EA + NPB*1024}, v10
    ds_write_b64 v10, v[8:9]
    L_nodum:
    s_mov_b64 exec, -1
    v_mov_b32 v8, 4
    v_mov_b32 v9, 0xfc
    v_max_u32 v10, v{vT}, v{vT+1}
    v_max3_u32 v10, v10, v{vT+2}, v{vT+3}
    s_lshl_b32 s5, s60, 18
    s_add_u32 s5, s5, {(128+8)<<16}
    v_cmp_le_u32 s[90:91], s5, v10
    s_mov_b32 s43, {EA}
    s_movk_i32 s42, 0x200
    """)
    order = [4, 5, 6, 7, 0, 1, 2, 3]

    def slot_rank(j):
        a(f"""
        v_and_b32_sdwa v{vRa+j}, v{vRk+j}, v9 dst_sel:DWORD dst_unused:UNUSED_PAD src0_sel:BYTE_3 src1_sel:DWORD
        ds_add_rtn_u32 v{vRp+j}, v{vRa+j}, v8 offset:{CN2}
        v_lshlrev_b32 v{vRk+j}, 18, v{vRk+j}
        v_lshrrev_b32 v{vRk+j}, 15, v{vRk+j}
        """)

    def slot_put(j):
        m = f"s[{44+2*j}:{45+2*j}]"
        a(f"""
        v_cmpx_gt_u32 vcc, s42, v{vRp+j}
        v_lshl_add_u32 v{vRp+j}, v{vRa+j}, 7, v{vRp+j}
        s_andn2_b64 {m}, {m}, vcc
        v_lshl_add_u32 v{vRa+j}, v{vRp+j}, 1, s43
        ds_write_b32 v{vRp+j}, v{vRk+j} offset:{OFF}
        ds_write_b64 v{vRa+j}, {vr(vRe+2*j,2)}
        s_or_b64 s[90:91], s[90:91], {m}
        """)

    for u in range(4):
        a(f"s_mov_b64 exec, s[{44+2*u}:{45+2*u}]\ns_waitcnt vmcnt({7-u+npf})")
        slot_rank(u)
    for u in range(4):
        a(f"s_mov_b64 exec, s[{52+2*u}:{53+2*u}]\ns_cbranch_execz L_r2_{u}")
        slot_rank(4 + u)
        a(f"L_r2_{u}:")
    a("s_waitcnt lgkmcnt(0)")
    for u in range(4):
        a(f"s_mov_b64 exec, s[{52+2*u}:{53+2*u}]\ns_cbranch_execz L_p2_{u}")
        slot_put(4 + u)
        a(f"L_p2_{u}:")
    for u in range(4):
        a(f"s_mov_b64 exec, s[{44+2*u}:{45+2*u}]\ns_waitcnt vmcnt({3-u+npf})")
        slot_put(u)
    a(f"""
    s_mov_b64 exec, -1
    s_cbranch_scc0 L_nomore
    ds_write_b32 v8, v8 offset:{MORE-4}
    L_nomore:
    v_lshlrev_b32 v10, 2, v1
    s_lshl_b32 s5, s3, 5
    v_lshl_add_u32 v12, v1, 9, s5
    v_mul_u32_u24 v13, 768, v1
    v_add_u32 v13, {NODE}, v13
    v_mov_b32 v{vAH}, v120
    v_mov_b32 v{vAM}, v121
    s_waitcnt lgkmcnt(0)
    s_barrier
    """)
    stamp()
    a(f"""
    ds_read_b32 v11, v10 offset:{CN2}
    s_waitcnt lgkmcnt(0)
    v_min_u32 v11, s42, v11
    v_cmp_lt_u32 vcc, s5, v11
    s_bcnt1_i32_b64 s6, vcc
    s_cbranch_scc0 L_nolev
    s_lshl_b32 s6, s6, 3
    v_mov_b32 v14, s6
    s_mov_b64 exec, 1
    ds_add_rtn_u32 v14, v10, v14 offset:{GC}
    s_mov_b64 exec, -1
    v_mbcnt_lo_u32_b32 v15, vcc_lo, 0
    v_mbcnt_hi_u32_b32 v15, vcc_hi, v15
    s_waitcnt lgkmcnt(0)
    v_readfirstlane_b32 s6, v14
    s_mov_b64 exec, vcc
    s_nop 0
    v_lshl_add_u32 v15, v15, 3, s6
    ds_write_b64 v15, v[12:13] offset:{GD}
    s_mov_b64 exec, -1
    L_nolev:
    s_sub_u32 s6, s3, 9
    s_cbranch_scc1 L_nopad
    s_lshl_b32 s6, s6, 2
    v_add_u32 v14, 28, v11
    v_and_b32 v14, 0xffffffe0, v14
    v_add_u32 v11, s6, v11
    v_cmpx_lt_u32 vcc, v11, v14
    v_lshl_add_u32 v11, v1, 9, v11
    v_mov_b32 v14, {ZOFF}
    ds_write_b32 v11, v14 offset:{OFF}
    v_lshl_add_u32 v11, v11, 1, s43
    v_mov_b64 v[14:15], 0
    ds_write_b64 v11, v[14:15]
    s_mov_b64 exec, -1
    L_nopad:
    v_mov_b32 v10, 0
    s_waitcnt lgkmcnt(0)
    s_barrier
    """)
    stamp()
    vGA, vGB, vH, vDD, vOF = 64, 80, 96, 104 + 0, 16
    vH, vDD = 32, 96
    vNA = (24, 25)
    vG2, vGM, vAE = 26, 28, 29
    vP, vNn, vRc, vF, vSS = 8, 10, 12, 112, 14
    vL4 = 30

    def gather(g, r, ofs=vOF):
        if opt.get("nog"):
            return
        if safe:
            a(f"v_lshl_add_u32 v{ofs+r}, v{ofs+r}, 5, v{vL4}")
        a(f"buffer_load_dword v{g+2*r}, v{ofs+r}, {sr(sTB)}, 0 offen")
        a(f"buffer_load_dword v{g+2*r+1}, v{ofs+r}, {sr(sTB)}, 0 offen offset:{128 if safe else 4}")

    a(f"""
    ds_read_b32 v11, v10 offset:{GC}
    ds_read_b64 v[8:9], v{vAH}
    ds_read_b32 v{vGM}, v{vAM}
    ds_read2_b32 {vr(vG2,2)}, v{vAH} offset0:65 offset1:128
    ds_read_b32 v13, v{vAH} offset:256
    v_lshrrev_b32 v{vL4}, 1, v{vN8}
    v_mov_b64 {vr(vSS,2)}, 0
    s_waitcnt lgkmcnt(3)
    ds_read_b128 {vr(vOF,4)}, v8 offset:{OFF}
    ds_read_b128 {vr(vOF+4,4)}, v8 offset:{OFF+16}
    v_readfirstlane_b32 s40, v11
    v_add_u32 v{vNA[0]}, v9, v{vN8}
    s_add_u32 s40, s40, 8
    s_lshr_b32 s40, s40, 4
    s_sub_u32 s41, s40, s3
    s_cbranch_scc1 L_mdone
    s_add_u32 s41, s41, 15
    s_lshr_b32 s41, s41, 4
    s_cbranch_scc0 L_mdone
    s_cmp_eq_u32 s61, 0
    s_cbranch_scc0 L_slow
    s_waitcnt lgkmcnt(2)
    ds_read_b128 {vr(vH,4)}, v13 offset:{OFF}
    ds_read_b128 {vr(vH+4,4)}, v13 offset:{OFF+16}
    v_mad_u32_u24 v{vAE}, v{vGM}, v{vEM}, v{vEC}
    ds_read_b64 {vr(vBO+2,2)}, v{vNA[0]}
    ds_read_b64 {vr(vEA,2)}, v{vAE}
    ds_read_b32 v{vGM}, v{vAM} offset:256
    v_add_u32 v{vAH}, 512, v{vAH}
    v_add_u32 v{vAM}, 512, v{vAM}
    s_setprio 1
    s_waitcnt lgkmcnt(5)
    """)
    for r in range(8):
        gather(vGA, r)
    a(f"""
    ds_read_b128 {vr(vOF,4)}, v{vG2+1} offset:{OFF}
    ds_read_b128 {vr(vOF+4,4)}, v{vG2+1} offset:{OFF+16}
    s_cmp_lt_u32 s41, 2
    s_cbranch_scc1 L_tail0
    s_waitcnt lgkmcnt(5)
    """)
    for r in range(8):
        gather(vGB, r, vH)
    a("s_waitcnt lgkmcnt(0)\ns_cmp_lt_u32 s41, 3\ns_cbranch_scc1 L_tail0")

    T = lambda r: vr(vDD + 2 * r, 2)
    H = lambda r: vr(vH + 2 * r, 2)
    P, Nn = vr(vP, 2), vr(vNn, 2)

    def ex(r):
        a(f"v_exp_f32 v{vDD+2*r}, v{vDD+2*r}\nv_exp_f32 v{vDD+2*r+1}, v{vDD+2*r+1}")

    def head(g):
        a(f"v_mfma_f32_32x32x16_bf16 {vr(vDD,16)}, {vr(vEA,4)}, {vr(vBO,4)}, {vr(g,16)}")
        for r in range(8):
            a(f"v_lshlrev_b64 {vr(vH+2*r,2)}, 16, {vr(g+2*r,2)}")

    def fin(na):
        a(f"""
        v_cvt_f64_f32 {vr(vF,2)}, v{vNn}
        v_cvt_f64_f32 {vr(vF+2,2)}, v{vNn+1}
        ds_add_f64 v{na}, {vr(vF,2)} offset:256
        ds_add_f64 v{na}, {vr(vF+2,2)} offset:512
        """)

    def unit(par, tail):
        g = (vGA, vGB)[par]
        na, nb = vNA[par], vNA[1 - par]
        if tail:
            a(f"""
            s_setprio 0
            s_cmp_lt_u32 s41, 2
            s_cbranch_scc0 L_tw{par}
            s_waitcnt vmcnt(0)
            L_tw{par}:
            s_waitcnt vmcnt(16) lgkmcnt(2)
            """)
        else:
            a("s_waitcnt vmcnt(16) lgkmcnt(3)")
        head(g)
        a(f"""
        v_add_u32 v{nb}, v{vG2}, v{vN8}
        v_mad_u32_u24 v{vAE}, v{vGM}, v{vEM}, v{vEC}
        ds_read_b64 {vr(vBO+2,2)}, v{nb}
        ds_read_b64 {vr(vEA,2)}, v{vAE}
        """)
        if not tail:
            a(f"ds_read2_b32 {vr(vG2,2)}, v{vAH} offset0:{1+64*par} offset1:{64+64*par}")
            a(f"ds_read_b32 v{vGM}, v{vAM} offset:{256*par}")
            if par == 1:
                a(f"v_add_u32 v{vAH}, 512, v{vAH}\nv_add_u32 v{vAM}, 512, v{vAM}")
        ex(0)
        if not tail:
            gather(g, 0)
        ex(1)
        a(f"v_pk_add_f32 {P}, {T(0)}, 1.0 op_sel_hi:[1,0]")
        if not tail:
            gather(g, 1)
        ex(2)
        a(f"v_pk_fma_f32 {Nn}, {H(0)}, {T(1)}, {H(0)}")
        a(f"v_pk_fma_f32 {Nn}, {H(1)}, {P}, {Nn}")
        a(f"v_pk_fma_f32 {P}, {P}, {T(1)}, {P}")
        for r in range(2, 8):
            if not tail:
                if r == 4:
                    a(f"s_waitcnt lgkmcnt(1)\nds_read_b128 {vr(vOF,4)}, v{vG2+1} offset:{OFF}")
                gather(g, r)
                if r == 7:
                    a(f"ds_read_b128 {vr(vOF+4,4)}, v{vG2+1} offset:{OFF+16}")
            if r < 7:
                ex(r + 1)
            a(f"v_pk_fma_f32 {Nn}, {Nn}, {T(r)}, {Nn}")
            a(f"v_pk_fma_f32 {Nn}, {H(r)}, {P}, {Nn}")
            a(f"v_pk_fma_f32 {P}, {P}, {T(r)}, {P}")
        a(f"""
        v_rcp_f32 v{vRc}, v{vP}
        v_rcp_f32 v{vRc+1}, v{vP+1}
        v_pk_add_f32 {vr(vSS,2)}, {vr(vSS,2)}, {P}
        v_pk_mul_f32 {Nn}, {Nn}, {vr(vRc,2)}
        s_sub_u32 s41, s41, 1
        """)
        a("s_cmp_eq_u32 s41, 0" if tail else "s_cmp_lt_u32 s41, 3")
        fin(na)

    a("L_fast:")
    unit(0, False)
    a("s_cbranch_scc1 L_tail1")
    unit(1, False)
    a("s_cbranch_scc0 L_fast")
    a("L_tail0:")
    unit(0, True)
    a("s_cbranch_scc1 L_mdone")
    a("L_tail1:")
    unit(1, True)
    a("s_cbranch_scc0 L_tail0")
    a(f"""
    L_mdone:
    v_add_f32 v{vSS}, v{vSS}, v{vSS+1}
    s_waitcnt lgkmcnt(0)
    v_mov_b32 v16, {MORE}
    ds_read_b32 v17, v16
    v_cmp_ngt_f32 vcc, 0x7e000000, v{vSS}
    s_cbranch_vccz L_sok
    ds_write_b32 v16, v16 offset:4
    L_sok:
    v_lshrrev_b32 v8, 4, v0
    v_mul_u32_u24 v9, 768, v8
    v_lshl_add_u32 v9, v{vI}, 5, v9
    v_lshlrev_b32 v10, 3, v0
    s_waitcnt lgkmcnt(0)
    v_readfirstlane_b32 s5, v17
    """)
    stamp()
    a(f"""
    s_barrier
    s_cmp_eq_u32 s5, 0
    s_cbranch_scc0 L_again
    """)
    stamp()
    a(f"""
    v_cmp_gt_u32 vcc, {NPB*16}, v0
    s_and_saveexec_b64 s[6:7], vcc
    s_cbranch_execz L_noout
    ds_read_b128 v[32:35], v9 offset:{NODE+256}
    ds_read_b128 v[36:39], v9 offset:{NODE+272}
    s_waitcnt lgkmcnt(0)
    """)
    for i in range(4):
        a(f"v_cvt_f32_f64 v{24+i}, {vr(32+2*i,2)}")
    for i in range(4):
        a(f"v_mul_f32 v{28+i}, {NLOG2E}, v{24+i}")
    for i in range(4):
        a(f"v_exp_f32 v{28+i}, v{28+i}")
    a("v_add_f32 v18, v24, v25\nv_add_f32 v19, v26, v27")
    for i in range(4):
        a(f"v_add_f32 v{28+i}, 1.0, v{28+i}")
    for i in range(4):
        a(f"v_rcp_f32 v{28+i}, v{28+i}")
    a("v_add_f32 v18, v18, v19\nv_mov_b32 v19, 0x207")
    for i in range(4):
        a(f"v_mul_f32 v{28+i}, v{28+i}, v{24+i}")
    a(f"""
    v_cvt_pk_bf16_f32 v28, v28, v29
    v_cvt_pk_bf16_f32 v29, v30, v31
    buffer_store_dwordx2 v[28:29], v10, {sr(sO)}, s63 offen
    v_cmp_class_f32 vcc, v18, v19
    s_cbranch_vccz L_noout
    ds_write_b32 v16, v16 offset:4
    L_noout:
    s_mov_b64 exec, -1
    s_cmp_eq_u32 s61, 0
    s_cbranch_scc0 L_fin
    s_waitcnt lgkmcnt(0)
    s_barrier
    ds_read_b32 v17, v16 offset:4
    s_waitcnt lgkmcnt(0)
    v_readfirstlane_b32 s5, v17
    s_cmp_eq_u32 s5, {"s5" if opt.get("nog") else 0}
    s_cbranch_scc0 L_redo
    L_fin:
    """)
    if opt.get("stamps"):
        a("s_waitcnt vmcnt(0)")
        stamp()
        a(f"""
        s_lshl_b32 s5, s2, 4
        s_add_u32 s5, s5, s3
        s_lshl_b32 s5, s5, 6
        s_add_u32 s5, s5, {WS_DBG}
        s_mov_b64 exec, 0xffff
        v_lshlrev_b32 v2, 2, v1
        buffer_store_dword v127, v2, {sr(sWS)}, s5 offen
        """)
    a(f"""
    L_end:
    s_endpgm
    """)
    a(f"""
    L_redo:
    s_mov_b32 s61, 1
    s_mov_b32 s53, {NLOG2E}
    v_lshlrev_b32 v10, 2, v1
    v_mov_b32 v11, 0
    s_waitcnt vmcnt(0)
    s_barrier
    ds_write_b32 v10, v11 offset:{CN2}
    ds_write_b32 v10, v11 offset:{GC}
    s_waitcnt lgkmcnt(0)
    s_barrier
    s_branch L_restart
    L_again:
    v_lshlrev_b32 v10, 2, v1
    v_mov_b64 v[12:13], 0
    ds_write_b32 v10, v12 offset:{CN2}
    ds_write_b64 v12, v[12:13] offset:{GC}
    s_or_b64 s[90:91], s[44:45], s[46:47]
    """)
    for j in range(2, 8):
        a(f"s_or_b64 s[90:91], s[90:91], s[{44+2*j}:{45+2*j}]")
    a(f"""
    s_waitcnt lgkmcnt(0)
    s_barrier
    s_cbranch_scc1 L_round
    s_add_u32 s60, s60, 32
    s_min_u32 s60, s60, {SL}
    s_branch L_window
    L_slow:
    ds_read_b64 v[8:9], v{vAH}
    ds_read_b32 v{vGM}, v{vAM}
    s_waitcnt lgkmcnt(0)
    ds_read_b128 {vr(vOF,4)}, v8 offset:{OFF}
    ds_read_b128 {vr(vOF+4,4)}, v8 offset:{OFF+16}
    v_add_u32 v{vNA[0]}, v9, v{vN8}
    v_mad_u32_u24 v{vAE}, v{vGM}, v{vEM}, v{vEC}
    ds_read_b64 {vr(vBO+2,2)}, v{vNA[0]}
    ds_read_b64 {vr(vEA,2)}, v{vAE}
    v_add_u32 v{vAH}, 256, v{vAH}
    v_add_u32 v{vAM}, 256, v{vAM}
    s_waitcnt lgkmcnt(0)
    """)
    for r in range(8):
        gather(vGA, r)
    a("s_waitcnt vmcnt(0)")
    head(vGA)
    a(f"s_nop 3\nv_mov_b64 {Nn}, 0")
    for r in range(8):
        ex(r)
        a(f"s_nop 0\nv_pk_add_f32 {T(r)}, {T(r)}, 1.0 op_sel_hi:[1,0]")
        a(f"v_rcp_f32 v{vDD+2*r}, v{vDD+2*r}\nv_rcp_f32 v{vDD+2*r+1}, v{vDD+2*r+1}\ns_nop 0")
        a(f"v_pk_fma_f32 {Nn}, {H(r)}, {T(r)}, {Nn}")
    a("s_sub_u32 s41, s41, 1\ns_cmp_eq_u32 s41, 0")
    fin(vNA[0])
    a("s_cbranch_scc0 L_slow\ns_branch L_mdone")
    return a.text()


def kd(name, vgpr):
    return f""".p2align 6
.amdhsa_kernel {name}
  .amdhsa_next_free_vgpr {vgpr}
  .amdhsa_next_free_sgpr 96
  .amdhsa_accum_offset {vgpr}
  .amdhsa_group_segment_fixed_size 0
  .amdhsa_kernarg_size 80
  .amdhsa_user_sgpr_count 2
  .amdhsa_user_sgpr_kernarg_segment_ptr 1
  .amdhsa_system_sgpr_workgroup_id_x 1
.end_amdhsa_kernel
"""


def gen(opt):
    t = kernel(opt)
    ref = open(f"cdna_kernels/{NAME}.s.ref").read().split("\n")
    out = "\n".join(ref[:11]) + "\n"
    out += f"; @launch grid=(256,1,1) block=(1024,1,1) lds={LDS}\n"
    out += '.amdgcn_target "amdgcn-amd-amdhsa--gfx950"\n.text\n'
    nm = NAME + "_kernel"
    out += f".globl {nm}\n.p2align 8\n.type {nm},@function\n" + t
    out += '.section .rodata,"a"\n' + kd(nm, 128)
    return out


if __name__ == "__main__":
    opt = {}
    for x in sys.argv[2:]:
        k, _, v = x.partition("=")
        opt[k] = int(v) if v else 1
    open(sys.argv[1], "w").write(gen(opt))
```

```python
import sys

NAME = "gather_scatter__edge_featured_mpnn_egc__graph"
N, E = 12500, 800000
NPB = 49
SL = 3136
WS_TB = 0
WS_T = 4 << 20
WS_K = 5 << 20
WS_E = 9 << 20
WS_DBG = 32 << 20
WS_SIZE = 64 << 20
NLOG2E = "0xbfb8aa3b"
OOB = 0x40000000

CN2 = 0
GC, MORE, FL = 256, 260, 264
CNT, BASE = 512, 1536
NODE = 2560
GD = NODE + NPB * 768
OFF = GD + 6400
EA = OFF + 25344
LWA = EA + 50240
LX = LWA + 16384
LDS = LX + 8192
KEYS, EAIN, TBS, LWB = 40192, 53504, 80128, 96512
ZOFF = N * 8


class Asm:
    def __init__(self):
        self.l = []

    def __call__(self, s):
        for x in s.split("\n"):
            x = x.strip()
            if x:
                self.l.append(("" if x.endswith(":") else "    ") + x)

    def text(self):
        return "\n".join(self.l) + "\n"


def vr(a, n):
    return f"v[{a}:{a+n-1}]"


def sr(a, n=4):
    return f"s[{a}:{a+n-1}]"


def scan64(a, v):
    for sh in (1, 2, 4, 8):
        a(f"s_nop 1\nv_add_u32_dpp v{v}, v{v}, v{v} row_shr:{sh} row_mask:0xf bank_mask:0xf bound_ctrl:0")
    a(f"s_nop 1\nv_add_u32_dpp v{v}, v{v}, v{v} row_bcast:15 row_mask:0xa bank_mask:0xf")
    a(f"s_nop 1\nv_add_u32_dpp v{v}, v{v}, v{v} row_bcast:31 row_mask:0xc bank_mask:0xf")


def gemm_job(a, vXA, vWA, wofs, vA, vB, vD):
    a(f"ds_read_b128 {vr(vA,4)}, v{vXA}\nds_read_b128 {vr(vA+4,4)}, v{vXA} offset:64")
    idx = 0
    for M in range(2):
        for t in range(2):
            for s in range(2):
                for j2 in range(2):
                    a(f"ds_read_b64_tr_b16 {vr(vB+2*idx,2)}, v{vWA} offset:{wofs+M*8192+s*4096+j2*512+t*64}")
                    idx += 1
    for q in range(4):
        a(f"s_waitcnt lgkmcnt({12-4*q})")
        a(f"v_mfma_f32_16x16x32_bf16 {vr(vD+4*q,4)}, {vr(vA,4)}, {vr(vB+8*q,4)}, 0")
        a(f"v_mfma_f32_16x16x32_bf16 {vr(vD+4*q,4)}, {vr(vA+4,4)}, {vr(vB+8*q+4,4)}, {vr(vD+4*q,4)}")


def kernel(opt):
    a = Asm()
    safe = opt.get("safe")
    nst = [0]

    def stamp():
        if opt.get("stamps"):
            a(f"s_memrealtime s[94:95]\ns_waitcnt lgkmcnt(0)\nv_writelane_b32 v127, s94, {nst[0]}")
            nst[0] += 1

    sDST, sSRC, sEA, sX, sWB, sWA, sG, sWS, sTB, sO, sDB = 8, 12, 16, 20, 24, 28, 32, 36, 64, 68, 72
    SC = "sc1"
    a(f"""
    {NAME}_kernel:
    s_cmp_ge_u32 s2, 256
    s_cbranch_scc1 L_end
    s_load_dwordx2 s[{sX}:{sX+1}], s[0:1], 0
    s_load_dwordx2 s[{sG}:{sG+1}], s[0:1], 48
    s_load_dwordx2 s[{sWB}:{sWB+1}], s[0:1], 40
    s_load_dwordx2 s[{sDST}:{sDST+1}], s[0:1], 24
    s_load_dwordx2 s[{sSRC}:{sSRC+1}], s[0:1], 16
    s_load_dwordx2 s[{sEA}:{sEA+1}], s[0:1], 8
    s_load_dwordx2 s[{sWA}:{sWA+1}], s[0:1], 32
    s_load_dwordx2 s[{sWS}:{sWS+1}], s[0:1], 72
    s_load_dwordx2 s[{sO}:{sO+1}], s[0:1], 56
    s_load_dwordx2 s[{sDB}:{sDB+1}], s[0:1], 64
    """)
    if opt.get("stamps"):
        a("s_memrealtime s[92:93]")
    a(f"""
    v_readfirstlane_b32 s3, v0
    v_and_b32 v1, 63, v0
    v_lshlrev_b32 v2, 2, v0
    v_mov_b32 v40, 0
    ds_write_b32 v2, v40
    s_and_b32 s4, s2, 7
    s_lshl_b32 s4, s4, 5
    s_lshr_b32 s5, s2, 3
    s_add_u32 s4, s4, s5
    s_lshr_b32 s3, s3, 6
    """)
    for s, sz in ((sX, N * 128), (sWB, 16384), (sDST, E * 4), (sSRC, E * 4), (sEA, E * 8), (sWA, 8192),
                  (sG, 132 * 128), (sWS, WS_SIZE if opt.get('stamps') else 16 << 20), (sO, N * 128), (sDB, 256)):
        a(f"s_mov_b32 s{s+2}, {sz}\ns_mov_b32 s{s+3}, 0x20000")
    a(f"""
    s_mov_b32 s{sTB+2}, {WS_T}
    s_mov_b32 s{sTB+3}, {"0x20000" if safe else "0xc00000"}
    s_cmp_lt_u32 s2, 255
    s_movk_i32 s5, 784
    s_cselect_b32 s5, s5, 80
    v_cmp_gt_u32 s[44:45], s5, v0
    v_lshlrev_b32 v4, 4, v0
    v_lshlrev_b32 v7, 4, v1
    s_mul_i32 s6, s2, {SL*4}
    s_lshl_b32 s7, s3, 10
    v_cndmask_b32 v5, 2.0, v4, s[44:45]
    s_mul_i32 s63, s4, {NPB*128}
    s_add_u32 s42, s63, s7
    s_add_u32 m0, s7, {LX}
    s_xor_b32 s43, s7, 8192
    s_cmp_lt_u32 s3, 7
    s_waitcnt lgkmcnt(0)
    s_cbranch_scc0 L_nox
    buffer_load_dwordx4 v7, {sr(sX)}, s42 offen lds
    L_nox:
    {"s_add_u32 s%d, s%d, %d" % (sWS, sWS, opt["wsoff"] << 20) if opt.get("wsoff") else ""}
    {"s_addc_u32 s%d, s%d, 0" % (sWS+1, sWS+1) if opt.get("wsoff") else ""}
    s_add_u32 m0, s7, {LWB}
    s_cmp_lt_u32 s3, 8
    s_cselect_b32 s{sWB}, s{sG}, s{sWB}
    s_cselect_b32 s{sWB+1}, s{sG+1}, s{sWB+1}
    s_cselect_b32 s{sWA}, s{sG}, s{sWA}
    s_cselect_b32 s{sWA+1}, s{sG+1}, s{sWA+1}
    buffer_load_dwordx4 v7, {sr(sWB)}, s43 offen lds
    buffer_load_dwordx4 v[8:11], v5, {sr(sDST)}, s6 offen
    """)
    if opt.get("stamps"):
        a("v_writelane_b32 v127, s92, 0")
        nst[0] = 1
    a(f"""
    s_lshl_b32 s42, s2, 12
    s_add_u32 s42, s42, s7
    s_add_u32 s42, s42, {WS_T - 12*1024}
    s_cmp_lt_u32 s2, 64
    s_cselect_b32 s42, s42, {OOB}
    s_cmp_ge_u32 s3, 12
    s_cselect_b32 s42, s42, {OOB}
    v_add_u32 v6, s42, v7
    v_mov_b32 v41, 0
    v_mov_b64 v[42:43], 0
    s_barrier
    buffer_store_dwordx4 v[40:43], v6, {sr(sWS)}, 0 offen {SC}
    buffer_load_dwordx4 v[12:15], v5, {sr(sSRC)}, s6 offen
    s_add_u32 m0, s7, {EAIN}
    s_lshl_b32 s42, s6, 1
    s_add_u32 s42, s42, s7
    buffer_load_dwordx4 v7, {sr(sEA)}, s42 offen lds
    s_add_u32 m0, s7, {LWA}
    s_and_b32 s43, s7, 8191
    v_lshlrev_b32 v6, 1, v1
    buffer_load_dwordx4 v7, {sr(sWA)}, s43 offen lds
    s_movk_i32 s43, 0x4000
    """)
    vC = 120
    for k in range(4):
        a(f"buffer_load_ushort v{vC+k}, v6, {sr(sG)}, s43 offen offset:{128*k}")
    a(f"""
    s_cmp_lt_u32 s3, 9
    s_cbranch_scc0 L_noe
    s_add_u32 m0, s7, {EAIN+16384}
    s_add_u32 s42, s42, 16384
    s_nop 0
    buffer_load_dwordx4 v7, {sr(sEA)}, s42 offen lds
    L_noe:
    """)
    vXA, vWA, vG4, vI = 124, 125, 126, 6
    a(f"""
    s_mov_b32 s{sTB}, s{sWS}
    s_or_b32 s{sTB+1}, s{sWS+1}, {0 if safe else 0x80000000}
    s_bfe_u32 s40, s3, 0x20001
    s_and_b32 s41, s3, 1
    v_and_b32 v{vI}, 15, v1
    v_lshrrev_b32 v{vG4}, 4, v1
    s_lshl_b32 s42, s40, 11
    s_add_u32 s42, s42, {LX}
    v_lshlrev_b32 v{vXA}, 7, v{vI}
    v_lshl_add_u32 v{vXA}, v{vG4}, 4, v{vXA}
    v_add_u32 v{vXA}, s42, v{vXA}
    v_lshrrev_b32 v{vWA}, 2, v{vI}
    v_lshl_add_u32 v{vWA}, v{vG4}, 3, v{vWA}
    v_lshlrev_b32 v{vWA}, 7, v{vWA}
    v_and_b32 v2, 3, v1
    v_lshl_add_u32 v{vWA}, v2, 3, v{vWA}
    s_lshl_b32 s42, s41, 5
    s_add_u32 s42, s42, {LWB}
    v_add_u32 v{vWA}, s42, v{vWA}
    s_lshl_b32 s42, s40, 12
    s_lshl_b32 s43, s41, 6
    s_add_u32 s42, s42, s43
    s_add_u32 s42, s42, {TBS}
    v_lshlrev_b32 v2, 10, v{vG4}
    v_lshl_add_u32 v2, v{vI}, 2, v2
    v_add_u32 v2, s42, v2
    v_lshlrev_b32 v28, 16, v0
    v_mov_b32 v3, 4
    v_mov_b32 v29, 0x21800000
    s_mov_b32 s52, -{NPB}
    s_mov_b32 s53, {NLOG2E}
    s_movk_i32 s54, 0x4000
    s_mov_b32 s55, 0x8000
    s_mov_b32 s56, 0xc000
    s_mov_b32 s61, 0
    s_waitcnt vmcnt(9)
    s_barrier
    """)
    stamp()
    vA, vW, vM = 64, 72, 104
    a("s_cmp_lt_u32 s3, 8\ns_cbranch_scc1 L_nojob1")
    gemm_job(a, vXA, vWA, 0, vA, vW, vM)
    sd = "dst_sel:DWORD dst_unused:UNUSED_PAD src0_sel:DWORD"
    a("s_nop 1")
    for r in range(4):
        a(f"v_fma_f32 v{vM+r}, v{vM+r}, s53, v29")
    for r in range(4):
        a(f"v_fma_f32 v{vM+4+r}, v{vM+4+r}, s53, v29")
    for r in range(4):
        a(f"v_cvt_pk_bf16_f32 v{64+r}, v{vM+8+r}, v{vM+8+r}")
    for r in range(4):
        a(f"v_add_f32 v{vM+12+r}, 0, v{vM+12+r}")
    for r in range(4):
        a(f"v_sub_u32_sdwa v{vM+r}, v{vM+r}, v{64+r} clamp {sd} src1_sel:WORD_0")
    for r in range(4):
        a(f"v_cvt_pk_bf16_f32 v{vM+r}, v{vM+8+r}, v{vM+r}")
    for r in range(4):
        a(f"v_sub_u32_sdwa v{vM+12+r}, v{vM+12+r}, v{vM+r} clamp {sd} src1_sel:WORD_1")
    for r in range(4):
        a(f"v_cvt_pk_bf16_f32 v{64+r}, v{vM+12+r}, v{vM+12+r}")
    for r in range(4):
        a(f"v_sub_u32_sdwa v{vM+4+r}, v{vM+4+r}, v{64+r} clamp {sd} src1_sel:WORD_0")
    for r in range(4):
        a(f"v_cvt_pk_bf16_f32 v{vM+4+r}, v{vM+12+r}, v{vM+4+r}")
        a(f"ds_write2_b32 v2, v{vM+r}, v{vM+4+r} offset0:{64*r} offset1:{64*r+32}")
    vD, vS, vB, vR, vL = 8, 12, 16, 20, 24
    a(f"""
    L_nojob1:
    s_mov_b64 exec, s[44:45]
    s_cbranch_execz L_norank
    s_waitcnt vmcnt(8)
    """)
    for k in range(4):
        a(f"""
        v_mul_u32_u24 v{vB+k}, 21400, v{vD+k}
        v_lshrrev_b32 v{vB+k}, 20, v{vB+k}
        v_mad_i32_i24 v{vL+k}, v{vB+k}, s52, v{vD+k}
        v_lshlrev_b32 v{vB+k}, 2, v{vB+k}
        ds_add_rtn_u32 v{vR+k}, v{vB+k}, v3 offset:{CNT}
        """)
    for k in range(4):
        a(f"v_lshl_or_b32 v{vL+k}, v{vL+k}, 26, v28")
    a(f"""
    L_norank:
    s_mov_b64 exec, -1
    s_cmp_lt_u32 s3, 9
    s_cbranch_scc1 L_w2
    s_waitcnt vmcnt(6)
    L_w2:
    s_waitcnt vmcnt(7)
    v_or_b32 v{vS}, v{vS}, v{vL}
    v_or3_b32 v{vS+1}, v{vS+1}, v{vL+1}, s54
    v_or3_b32 v{vS+2}, v{vS+2}, v{vL+2}, s55
    v_or3_b32 v{vS+3}, v{vS+3}, v{vL+3}, s56
    v_add_u32 v30, {TBS - 3072}, v4
    s_cmp_lt_u32 s3, 3
    s_waitcnt lgkmcnt(0)
    s_barrier
    """)
    if opt.get("stamps"):
        stamp()
        a("s_cmp_lt_u32 s3, 3")
    a(f"""
    s_cbranch_scc1 L_notb
    ds_read_b128 v[32:35], v30
    v_cmp_gt_u32 s[46:47], {784+192}, v0
    s_lshl_b32 s42, s63, 1
    v_subrev_u32 v30, 3072, v4
    v_cndmask_b32 v30, 2.0, v30, s[46:47]
    s_waitcnt lgkmcnt(0)
    buffer_store_dwordx4 v[32:35], v30, {sr(sWS)}, s42 offen {SC}
    s_branch L_noscan
    L_notb:
    s_lshl_b32 s42, s2, 2
    s_cmp_eq_u32 s3, 1
    s_cselect_b32 s42, s42, 0x1000
    v_lshl_add_u32 v31, v1, 10, s42
    buffer_store_dword v3, v31, {sr(sDB)}, 0 offen {SC}
    s_cmp_eq_u32 s3, 0
    s_cbranch_scc0 L_noscan
    ds_read_b128 v[32:35], v7 offset:{CNT}
    s_waitcnt lgkmcnt(0)
    v_add_u32 v44, v32, v33
    v_add_u32 v45, v44, v34
    v_add_u32 v46, v45, v35
    v_mov_b32 v36, v46
    """.replace(f"v_cmp_gt_u32 s[46:47], {784+192}, v0", f"s_movk_i32 s43, {784+192}\nv_cmp_gt_u32 s[46:47], s43, v0"))
    scan64(a, 36)
    a(f"""
    v_sub_u32 v36, v36, v46
    v_add_u32 v36, 0x40000, v36
    v_add_u32 v37, v36, v32
    v_add_u32 v38, v36, v44
    v_add_u32 v39, v36, v45
    v_lshl_add_u32 v36, v32, 16, v36
    v_lshl_add_u32 v37, v33, 16, v37
    v_lshl_add_u32 v38, v34, 16, v38
    v_lshl_add_u32 v39, v35, 16, v39
    ds_write_b128 v7, v[36:39] offset:{BASE}
    s_waitcnt lgkmcnt(0)
    L_noscan:
    s_barrier
    """)
    stamp()
    a("s_mov_b64 exec, s[44:45]\ns_cbranch_execz L_nosc")
    for k in range(4):
        a(f"ds_read_u16 v{vB+k}, v{vB+k} offset:{BASE}")
    for k in range(4):
        a(f"""
        s_waitcnt lgkmcnt(3)
        v_add_u32 v{vB+k}, v{vB+k}, v{vR+k}
        ds_write_b32 v{vB+k}, v{vS+k} offset:{KEYS}
        """)
    vBO, vEA = 60, 56
    a(f"""
    L_nosc:
    s_mov_b64 exec, -1
    v_lshlrev_b32 v2, 3, v0
    s_mul_i32 s42, s2, {SL*8}
    s_add_u32 s42, s42, {WS_E}
    s_add_u32 s43, s6, {WS_K}
    s_add_u32 s5, s42, 16384
    s_waitcnt vmcnt(1) lgkmcnt(0)
    s_barrier
    """)
    stamp()
    a(f"""
    ds_read_b64 v[8:9], v2 offset:{KEYS}
    ds_read_b64 v[10:11], v2 offset:{KEYS+8192}
    ds_read_b128 v[20:23], v4 offset:{KEYS-3072}
    v_cmp_gt_u32 vcc, {1568-1024}, v0
    s_waitcnt lgkmcnt(2)
    """)
    for k in range(2):
        a(f"v_lshrrev_b32 v{8+k}, 11, v{8+k}\nv_and_b32 v{8+k}, 0x7ff8, v{8+k}\nds_read_b64 {vr(12+2*k,2)}, v{8+k} offset:{EAIN}")
    a(f"""
    s_cmp_lt_u32 s3, 3
    s_cbranch_scc1 L_nok
    s_waitcnt lgkmcnt(2)
    buffer_store_dwordx4 v[20:23], v30, {sr(sWS)}, s43 offen {SC}
    L_nok:
    s_and_saveexec_b64 s[48:49], vcc
    s_cbranch_execz L_noe2
    s_waitcnt lgkmcnt(2)
    """)
    for k in range(2, 4):
        a(f"v_lshrrev_b32 v{8+k}, 11, v{8+k}\nv_and_b32 v{8+k}, 0x7ff8, v{8+k}\nds_read_b64 {vr(12+2*k,2)}, v{8+k} offset:{EAIN}")
    a(f"""
    s_waitcnt lgkmcnt(0)
    buffer_store_dwordx4 v[16:19], v4, {sr(sWS)}, s5 offen {SC}
    L_noe2:
    s_mov_b64 exec, -1
    s_waitcnt lgkmcnt(0)
    buffer_store_dwordx4 v[12:15], v4, {sr(sWS)}, s42 offen {SC}
    """)
    stamp()
    vAH, vAM, vEM, vEC, vN8 = 48, 49, 50, 51, 52
    vTA = 53
    for k in range(4):
        a(f"v_lshlrev_b32 v{vC+k}, 16, v{vC+k}\nv_mul_f32 v{vC+k}, s53, v{vC+k}")
    a(f"""
    v_cvt_pk_bf16_f32 v{vBO}, v{vC}, v{vC+1}
    v_cvt_pk_bf16_f32 v{vBO+1}, v{vC+2}, v{vC+3}
    v_lshrrev_b32 v24, 5, v1
    v_bfe_u32 v25, v1, 2, 1
    v_and_b32 v26, 1, v1
    v_and_b32 v{vN8}, 31, v1
    v_cmp_eq_u32 vcc, v25, v24
    v_mov_b32 v27, 0x3f803f80
    v_lshrrev_b32 v28, 3, v{vN8}
    v_cndmask_b32 v27, 0, v27, vcc
    v_cmp_eq_u32 vcc, 0, v26
    v_bfe_u32 v29, v1, 1, 1
    v_lshl_add_u32 v28, v28, 1, v29
    v_cndmask_b32 v{vEA+2}, 0, v27, vcc
    v_cndmask_b32 v{vEA+3}, v27, 0, vcc
    v_cmp_eq_u32 vcc, v26, v24
    v_lshlrev_b32 v28, 3, v28
    v_add_u32 v28, {EA}, v28
    v_mov_b32 v29, {EA + NPB*1024}
    v_cndmask_b32 v{vEC}, v29, v28, vcc
    v_cndmask_b32 v{vEM}, 0, 2, vcc
    v_lshlrev_b32 v{vN8}, 3, v{vN8}
    s_lshl_b32 s5, s3, 4
    s_add_u32 s5, s5, {GD}
    v_lshl_add_u32 v120, v24, 3, s5
    v_lshl_add_u32 v121, v25, 3, s5
    s_lshl_b32 s5, s3, 14
    s_lshl_b32 s42, s4, 2
    s_add_u32 s5, s5, s42
    s_add_u32 s5, s5, {WS_T}
    v_lshl_add_u32 v{vTA}, v{vG4}, 10, s5
    s_movk_i32 s76, 0x1000
    s_movk_i32 s77, 0x2000
    s_movk_i32 s78, 0x3000
    s_mul_i32 s5, s3, {16*SL*4}
    s_add_u32 s80, s5, {WS_K}
    s_lshl_b32 s5, s5, 1
    s_add_u32 s84, s5, {WS_E}
    """)
    for u in range(1, 4):
        a(f"s_add_u32 s{80+u}, s80, {u*4*SL*4}\ns_add_u32 s{84+u}, s84, {u*4*SL*8}")
    a(f"""
    s_lshr_b32 s5, s2, 3
    s_lshl_b32 s5, s5, 4
    s_add_u32 s5, s5, s3
    s_mul_i32 s88, s5, {49*128}
    v_lshlrev_b32 v54, 7, v1
    s_mov_b32 s62, 0
    """)
    PF1 = opt.get("pf1", 20)
    early = opt.get("pfpos", 0) == 1

    def pf(lo, hi):
        m = ((1 << hi) - 1) & ~((1 << lo) - 1)
        if m:
            a(f"""
            s_mov_b32 exec_lo, {hex(m & 0xffffffff)}
            s_mov_b32 exec_hi, {hex(m >> 32)}
            buffer_load_dword v55, v54, {sr(sWS)}, s88 offen {SC}
            s_mov_b64 exec, -1
            """)
        return 1 if m else 0
    a(f"""
    s_cmp_eq_u32 s3, 0
    s_cbranch_scc0 L_nodbg
    v_lshlrev_b32 v24, 2, v1
    L_dbg:
    buffer_load_dword v25, v24, {sr(sDB)}, 0 offen {SC}
    s_add_u32 s62, s62, 1
    s_bitcmp1_b32 s62, 20
    s_cbranch_scc1 L_end
    s_waitcnt vmcnt(0)
    v_cmp_eq_u32 vcc, 0, v25
    s_cbranch_vccnz L_dbg
    L_nodbg:
    """)
    npf = pf(0, PF1) if early else 0
    a(f"s_waitcnt vmcnt({npf})\ns_barrier")
    stamp()
    a(f"""
    s_cmp_eq_u32 s3, 0
    s_cbranch_scc0 L_not
    s_lshl_b32 s42, s2, 10
    s_add_u32 s42, s42, {WS_T}
    buffer_store_dwordx4 v[36:39], v7, {sr(sWS)}, s42 offen {SC}
    L_not:
    """)
    if not early:
        pf(0, PF1)
    a(f"""
    L_restart:
    s_mov_b32 s60, 0
    s_cmp_lt_u32 s3, 8
    s_cbranch_scc1 L_nojob2
    """)
    gemm_job(a, vXA, vWA, LWA - LWB, vA, vW, vM)
    a(f"""
    s_bfe_u32 s40, s3, 0x20001
    s_and_b32 s41, s3, 1
    s_mul_i32 s42, s40, {16*768}
    s_lshl_b32 s43, s41, 7
    s_add_u32 s42, s42, s43
    v_mul_u32_u24 v8, {4*768}, v{vG4}
    v_lshl_add_u32 v8, v{vI}, 3, v8
    v_add_u32 v8, s42, v8
    s_cmp_eq_u32 s40, 3
    s_cselect_b64 exec, 0xffff, -1
    """)
    for r in range(4):
        t = 64 + 8 * r
        a(f"""
        v_mul_f32 v{vM+r}, s53, v{vM+r}
        v_mul_f32 v{vM+4+r}, s53, v{vM+4+r}
        v_and_b32 v{t}, 0xffff0000, v{vM+r}
        v_and_b32 v{t+1}, 0xffff0000, v{vM+4+r}
        v_sub_f32 v{vM+r}, v{vM+r}, v{t}
        v_sub_f32 v{vM+4+r}, v{vM+4+r}, v{t+1}
        v_cvt_pk_bf16_f32 v{t}, v{t}, v{vM+r}
        v_cvt_pk_bf16_f32 v{t+1}, v{t+1}, v{vM+4+r}
        v_cvt_f64_f32 {vr(t+2,2)}, v{vM+8+r}
        v_cvt_f64_f32 {vr(t+4,2)}, v{vM+12+r}
        ds_write_b64 v8, {vr(t,2)} offset:{NODE+768*r}
        ds_write_b64 v8, {vr(t+2,2)} offset:{NODE+768*r+256}
        ds_write_b64 v8, {vr(t+4,2)} offset:{NODE+768*r+512}
        """)
        if r == 0:
            a("s_cbranch_scc1 L_nojob2")
    vT = 2
    a(f"""
    L_nojob2:
    s_mov_b64 exec, -1
    L_poll:
    buffer_load_dword v{vT}, v{vTA}, {sr(sWS)}, 0 offen {SC}
    buffer_load_dword v{vT+1}, v{vTA}, {sr(sWS)}, s76 offen {SC}
    buffer_load_dword v{vT+2}, v{vTA}, {sr(sWS)}, s77 offen {SC}
    buffer_load_dword v{vT+3}, v{vTA}, {sr(sWS)}, s78 offen {SC}
    s_add_u32 s62, s62, 1
    s_bitcmp1_b32 s62, 20
    s_cbranch_scc1 L_end
    s_waitcnt vmcnt(0)
    v_min_u32 v8, v{vT}, v{vT+1}
    v_min3_u32 v8, v8, v{vT+2}, v{vT+3}
    v_cmp_eq_u32 vcc, 0, v8
    s_cbranch_vccnz L_poll
    """)
    stamp()
    a(f"""
    L_window:
    v_add_u32 v8, s60, v{vI}
    v_lshlrev_b32 v9, 18, v8
    v_add_u32 v9, {8<<16}, v9
    v_add_u32 v10, {64<<16}, v9
    """)
    for u in range(4):
        a(f"v_cmp_le_u32 s[{44+2*u}:{45+2*u}], v9, v{vT+u}\nv_cmp_le_u32 s[{52+2*u}:{53+2*u}], v10, v{vT+u}")
    vRk, vRe, vRa, vRp = 64, 72, 88, 96
    a(f"""
    L_round:
    v_add_u32 v8, s60, v{vI}
    v_mul_u32_u24 v9, {SL}, v{vG4}
    v_add_lshl_u32 v8, v8, v9, 2
    """)
    for u in range(4):
        a(f"v_add_u32_sdwa v{12+u}, v8, v{vT+u} {sd} src1_sel:WORD_0\nv_lshlrev_b32 v{16+u}, 1, v{12+u}")
    for u in range(4):
        a(f"""
        s_mov_b64 exec, s[{52+2*u}:{53+2*u}]
        s_cbranch_execz L_n2_{u}
        buffer_load_dword v{vRk+4+u}, v{12+u}, {sr(sWS)}, s{80+u} offen offset:64 {SC}
        buffer_load_dwordx2 {vr(vRe+8+2*u,2)}, v{16+u}, {sr(sWS)}, s{84+u} offen offset:128 {SC}
        L_n2_{u}:
        """)
    a("s_mov_b64 exec, -1")
    for u in range(4):
        a(f"buffer_load_dword v{vRk+u}, v{12+u}, {sr(sWS)}, s{80+u} offen {SC}")
    for u in range(4):
        a(f"buffer_load_dwordx2 {vr(vRe+2*u,2)}, v{16+u}, {sr(sWS)}, s{84+u} offen {SC}")
    PF2 = opt.get("pf2", 49)
    npf = pf(PF1, PF2)
    a(f"""
    v_mov_b32 v8, {NPB*512}
    v_mov_b32 v9, {NODE}
    v_lshlrev_b32 v10, 3, v0
    v_cmp_gt_u32 vcc, 800, v0
    s_and_saveexec_b64 s[42:43], vcc
    ds_write_b64 v10, v[8:9] offset:{GD}
    v_cmp_gt_u32 vcc, 8, v0
    s_and_b64 exec, exec, vcc
    s_cbranch_execz L_nodum
    v_mov_b32 v8, {ZOFF}
    v_lshlrev_b32 v9, 2, v0
    v_add_u32 v9, {OFF + NPB*512}, v9
    ds_write_b32 v9, v8
    v_mov_b64 v[8:9], 0
    v_add_u32 v10, {EA + NPB*1024}, v10
    ds_write_b64 v10, v[8:9]
    L_nodum:
    s_mov_b64 exec, -1
    v_mov_b32 v8, 4
    v_mov_b32 v9, 0xfc
    v_max_u32 v10, v{vT}, v{vT+1}
    v_max3_u32 v10, v10, v{vT+2}, v{vT+3}
    s_lshl_b32 s5, s60, 18
    s_add_u32 s5, s5, {(128+8)<<16}
    v_cmp_le_u32 s[90:91], s5, v10
    s_mov_b32 s43, {EA}
    s_movk_i32 s42, 0x200
    """)
    order = [4, 5, 6, 7, 0, 1, 2, 3]

    def slot_rank(j):
        a(f"""
        v_and_b32_sdwa v{vRa+j}, v{vRk+j}, v9 dst_sel:DWORD dst_unused:UNUSED_PAD src0_sel:BYTE_3 src1_sel:DWORD
        ds_add_rtn_u32 v{vRp+j}, v{vRa+j}, v8 offset:{CN2}
        v_lshlrev_b32 v{vRk+j}, 18, v{vRk+j}
        v_lshrrev_b32 v{vRk+j}, 15, v{vRk+j}
        """)

    def slot_put(j):
        m = f"s[{44+2*j}:{45+2*j}]"
        a(f"""
        v_cmpx_gt_u32 vcc, s42, v{vRp+j}
        v_lshl_add_u32 v{vRp+j}, v{vRa+j}, 7, v{vRp+j}
        s_andn2_b64 {m}, {m}, vcc
        v_lshl_add_u32 v{vRa+j}, v{vRp+j}, 1, s43
        ds_write_b32 v{vRp+j}, v{vRk+j} offset:{OFF}
        ds_write_b64 v{vRa+j}, {vr(vRe+2*j,2)}
        s_or_b64 s[90:91], s[90:91], {m}
        """)

    for u in range(4):
        a(f"s_mov_b64 exec, s[{44+2*u}:{45+2*u}]\ns_waitcnt vmcnt({7-u+npf})")
        slot_rank(u)
    for u in range(4):
        a(f"s_mov_b64 exec, s[{52+2*u}:{53+2*u}]\ns_cbranch_execz L_r2_{u}")
        slot_rank(4 + u)
        a(f"L_r2_{u}:")
    a("s_waitcnt lgkmcnt(0)")
    for u in range(4):
        a(f"s_mov_b64 exec, s[{52+2*u}:{53+2*u}]\ns_cbranch_execz L_p2_{u}")
        slot_put(4 + u)
        a(f"L_p2_{u}:")
    for u in range(4):
        a(f"s_mov_b64 exec, s[{44+2*u}:{45+2*u}]\ns_waitcnt vmcnt({3-u+npf})")
        slot_put(u)
    a(f"""
    s_mov_b64 exec, -1
    s_cbranch_scc0 L_nomore
    ds_write_b32 v8, v8 offset:{MORE-4}
    L_nomore:
    v_lshlrev_b32 v10, 2, v1
    s_lshl_b32 s5, s3, 5
    v_lshl_add_u32 v12, v1, 9, s5
    v_mul_u32_u24 v13, 768, v1
    v_add_u32 v13, {NODE}, v13
    v_mov_b32 v{vAH}, v120
    v_mov_b32 v{vAM}, v121
    """)
    pf(max(PF1, PF2), opt.get("pf3", 0))
    a("s_waitcnt lgkmcnt(0)\ns_barrier")
    stamp()
    a(f"""
    ds_read_b32 v11, v10 offset:{CN2}
    s_waitcnt lgkmcnt(0)
    v_min_u32 v11, s42, v11
    v_cmp_lt_u32 vcc, s5, v11
    s_bcnt1_i32_b64 s6, vcc
    s_cbranch_scc0 L_nolev
    s_lshl_b32 s6, s6, 3
    v_mov_b32 v14, s6
    s_mov_b64 exec, 1
    ds_add_rtn_u32 v14, v10, v14 offset:{GC}
    s_mov_b64 exec, -1
    v_mbcnt_lo_u32_b32 v15, vcc_lo, 0
    v_mbcnt_hi_u32_b32 v15, vcc_hi, v15
    s_waitcnt lgkmcnt(0)
    v_readfirstlane_b32 s6, v14
    s_mov_b64 exec, vcc
    s_nop 0
    v_lshl_add_u32 v15, v15, 3, s6
    ds_write_b64 v15, v[12:13] offset:{GD}
    s_mov_b64 exec, -1
    L_nolev:
    s_sub_u32 s6, s3, 9
    s_cbranch_scc1 L_nopad
    s_lshl_b32 s6, s6, 2
    v_add_u32 v14, 28, v11
    v_and_b32 v14, 0xffffffe0, v14
    v_add_u32 v11, s6, v11
    v_cmpx_lt_u32 vcc, v11, v14
    v_lshl_add_u32 v11, v1, 9, v11
    v_mov_b32 v14, {ZOFF}
    ds_write_b32 v11, v14 offset:{OFF}
    v_lshl_add_u32 v11, v11, 1, s43
    v_mov_b64 v[14:15], 0
    ds_write_b64 v11, v[14:15]
    s_mov_b64 exec, -1
    L_nopad:
    v_mov_b32 v10, 0
    s_waitcnt lgkmcnt(0)
    s_barrier
    """)
    stamp()
    vGA, vGB, vH, vDD, vOF = 64, 80, 96, 104 + 0, 16
    vH, vDD = 32, 96
    vNA = (24, 25)
    vG2, vGM, vAE = 26, 28, 29
    vP, vNn, vRc, vF, vSS = 8, 10, 12, 112, 14
    vL4 = 30

    def gather(g, r, ofs=vOF):
        if opt.get("nog"):
            return
        if safe:
            a(f"v_lshl_add_u32 v{ofs+r}, v{ofs+r}, 5, v{vL4}")
        a(f"buffer_load_dword v{g+2*r}, v{ofs+r}, {sr(sTB)}, 0 offen")
        a(f"buffer_load_dword v{g+2*r+1}, v{ofs+r}, {sr(sTB)}, 0 offen offset:{128 if safe else 4}")

    a(f"""
    ds_read_b32 v11, v10 offset:{GC}
    ds_read_b64 v[8:9], v{vAH}
    ds_read_b32 v{vGM}, v{vAM}
    ds_read2_b32 {vr(vG2,2)}, v{vAH} offset0:65 offset1:128
    ds_read_b32 v13, v{vAH} offset:256
    v_lshrrev_b32 v{vL4}, 1, v{vN8}
    v_mov_b64 {vr(vSS,2)}, 0
    s_waitcnt lgkmcnt(3)
    ds_read_b128 {vr(vOF,4)}, v8 offset:{OFF}
    ds_read_b128 {vr(vOF+4,4)}, v8 offset:{OFF+16}
    v_readfirstlane_b32 s40, v11
    v_add_u32 v{vNA[0]}, v9, v{vN8}
    s_add_u32 s40, s40, 8
    s_lshr_b32 s40, s40, 4
    s_sub_u32 s41, s40, s3
    s_cbranch_scc1 L_mdone
    s_add_u32 s41, s41, 15
    s_lshr_b32 s41, s41, 4
    s_cbranch_scc0 L_mdone
    s_cmp_eq_u32 s61, 0
    s_cbranch_scc0 L_slow
    s_waitcnt lgkmcnt(2)
    ds_read_b128 {vr(vH,4)}, v13 offset:{OFF}
    ds_read_b128 {vr(vH+4,4)}, v13 offset:{OFF+16}
    v_mad_u32_u24 v{vAE}, v{vGM}, v{vEM}, v{vEC}
    ds_read_b64 {vr(vBO+2,2)}, v{vNA[0]}
    ds_read_b64 {vr(vEA,2)}, v{vAE}
    ds_read_b32 v{vGM}, v{vAM} offset:256
    v_add_u32 v{vAH}, 512, v{vAH}
    v_add_u32 v{vAM}, 512, v{vAM}
    s_setprio 1
    s_waitcnt lgkmcnt(5)
    """)
    for r in range(8):
        gather(vGA, r)
    a(f"""
    ds_read_b128 {vr(vOF,4)}, v{vG2+1} offset:{OFF}
    ds_read_b128 {vr(vOF+4,4)}, v{vG2+1} offset:{OFF+16}
    s_cmp_lt_u32 s41, 2
    s_cbranch_scc1 L_tail0
    s_waitcnt lgkmcnt(5)
    """)
    for r in range(8):
        gather(vGB, r, vH)
    a("s_waitcnt lgkmcnt(0)\ns_cmp_lt_u32 s41, 3\ns_cbranch_scc1 L_tail0")

    T = lambda r: vr(vDD + 2 * r, 2)
    H = lambda r: vr(vH + 2 * r, 2)
    P, Nn = vr(vP, 2), vr(vNn, 2)

    def ex(r):
        a(f"v_exp_f32 v{vDD+2*r}, v{vDD+2*r}\nv_exp_f32 v{vDD+2*r+1}, v{vDD+2*r+1}")

    def head(g):
        a(f"v_mfma_f32_32x32x16_bf16 {vr(vDD,16)}, {vr(vEA,4)}, {vr(vBO,4)}, {vr(g,16)}")
        for r in range(8):
            a(f"v_lshlrev_b64 {vr(vH+2*r,2)}, 16, {vr(g+2*r,2)}")

    def fin(na):
        a(f"""
        v_cvt_f64_f32 {vr(vF,2)}, v{vNn}
        v_cvt_f64_f32 {vr(vF+2,2)}, v{vNn+1}
        ds_add_f64 v{na}, {vr(vF,2)} offset:256
        ds_add_f64 v{na}, {vr(vF+2,2)} offset:512
        """)

    def unit(par, tail):
        g = (vGA, vGB)[par]
        na, nb = vNA[par], vNA[1 - par]
        if tail:
            a(f"""
            s_setprio 0
            s_cmp_lt_u32 s41, 2
            s_cbranch_scc0 L_tw{par}
            s_waitcnt vmcnt(0)
            L_tw{par}:
            s_waitcnt vmcnt(16) lgkmcnt(2)
            """)
        else:
            a("s_waitcnt vmcnt(16) lgkmcnt(3)")
        head(g)
        a(f"""
        v_add_u32 v{nb}, v{vG2}, v{vN8}
        v_mad_u32_u24 v{vAE}, v{vGM}, v{vEM}, v{vEC}
        ds_read_b64 {vr(vBO+2,2)}, v{nb}
        ds_read_b64 {vr(vEA,2)}, v{vAE}
        """)
        if not tail:
            a(f"ds_read2_b32 {vr(vG2,2)}, v{vAH} offset0:{1+64*par} offset1:{64+64*par}")
            a(f"ds_read_b32 v{vGM}, v{vAM} offset:{256*par}")
            if par == 1:
                a(f"v_add_u32 v{vAH}, 512, v{vAH}\nv_add_u32 v{vAM}, 512, v{vAM}")
        ex(0)
        if not tail:
            gather(g, 0)
        ex(1)
        a(f"v_pk_add_f32 {P}, {T(0)}, 1.0 op_sel_hi:[1,0]")
        if not tail:
            gather(g, 1)
        ex(2)
        a(f"v_pk_fma_f32 {Nn}, {H(0)}, {T(1)}, {H(0)}")
        a(f"v_pk_fma_f32 {Nn}, {H(1)}, {P}, {Nn}")
        a(f"v_pk_fma_f32 {P}, {P}, {T(1)}, {P}")
        for r in range(2, 8):
            if not tail:
                if r == 4:
                    a(f"s_waitcnt lgkmcnt(1)\nds_read_b128 {vr(vOF,4)}, v{vG2+1} offset:{OFF}")
                gather(g, r)
                if r == 7:
                    a(f"ds_read_b128 {vr(vOF+4,4)}, v{vG2+1} offset:{OFF+16}")
            if r < 7:
                ex(r + 1)
            a(f"v_pk_fma_f32 {Nn}, {Nn}, {T(r)}, {Nn}")
            a(f"v_pk_fma_f32 {Nn}, {H(r)}, {P}, {Nn}")
            a(f"v_pk_fma_f32 {P}, {P}, {T(r)}, {P}")
        a(f"""
        v_rcp_f32 v{vRc}, v{vP}
        v_rcp_f32 v{vRc+1}, v{vP+1}
        v_pk_add_f32 {vr(vSS,2)}, {vr(vSS,2)}, {P}
        v_pk_mul_f32 {Nn}, {Nn}, {vr(vRc,2)}
        s_sub_u32 s41, s41, 1
        """)
        a("s_cmp_eq_u32 s41, 0" if tail else "s_cmp_lt_u32 s41, 3")
        fin(na)

    a("L_fast:")
    unit(0, False)
    a("s_cbranch_scc1 L_tail1")
    unit(1, False)
    a("s_cbranch_scc0 L_fast")
    a("L_tail0:")
    unit(0, True)
    a("s_cbranch_scc1 L_mdone")
    a("L_tail1:")
    unit(1, True)
    a("s_cbranch_scc0 L_tail0")
    a(f"""
    L_mdone:
    v_add_f32 v{vSS}, v{vSS}, v{vSS+1}
    s_waitcnt lgkmcnt(0)
    v_mov_b32 v16, {MORE}
    ds_read_b32 v17, v16
    v_cmp_ngt_f32 vcc, 0x7e000000, v{vSS}
    s_cbranch_vccz L_sok
    ds_write_b32 v16, v16 offset:4
    L_sok:
    v_lshrrev_b32 v8, 4, v0
    v_mul_u32_u24 v9, 768, v8
    v_lshl_add_u32 v9, v{vI}, 5, v9
    v_lshlrev_b32 v10, 3, v0
    s_waitcnt lgkmcnt(0)
    v_readfirstlane_b32 s5, v17
    """)
    stamp()
    a(f"""
    s_barrier
    s_cmp_eq_u32 s5, 0
    s_cbranch_scc0 L_again
    """)
    stamp()
    a(f"""
    v_cmp_gt_u32 vcc, {NPB*16}, v0
    s_and_saveexec_b64 s[6:7], vcc
    s_cbranch_execz L_noout
    ds_read_b128 v[32:35], v9 offset:{NODE+256}
    ds_read_b128 v[36:39], v9 offset:{NODE+272}
    s_waitcnt lgkmcnt(0)
    """)
    for i in range(4):
        a(f"v_cvt_f32_f64 v{24+i}, {vr(32+2*i,2)}")
    for i in range(4):
        a(f"v_mul_f32 v{28+i}, {NLOG2E}, v{24+i}")
    for i in range(4):
        a(f"v_exp_f32 v{28+i}, v{28+i}")
    a("v_add_f32 v18, v24, v25\nv_add_f32 v19, v26, v27")
    for i in range(4):
        a(f"v_add_f32 v{28+i}, 1.0, v{28+i}")
    for i in range(4):
        a(f"v_rcp_f32 v{28+i}, v{28+i}")
    a("v_add_f32 v18, v18, v19\nv_mov_b32 v19, 0x207")
    for i in range(4):
        a(f"v_mul_f32 v{28+i}, v{28+i}, v{24+i}")
    a(f"""
    v_cvt_pk_bf16_f32 v28, v28, v29
    v_cvt_pk_bf16_f32 v29, v30, v31
    buffer_store_dwordx2 v[28:29], v10, {sr(sO)}, s63 offen
    v_cmp_class_f32 vcc, v18, v19
    s_cbranch_vccz L_noout
    ds_write_b32 v16, v16 offset:4
    L_noout:
    s_mov_b64 exec, -1
    s_cmp_eq_u32 s61, 0
    s_cbranch_scc0 L_fin
    s_waitcnt lgkmcnt(0)
    s_barrier
    ds_read_b32 v17, v16 offset:4
    s_waitcnt lgkmcnt(0)
    v_readfirstlane_b32 s5, v17
    s_cmp_eq_u32 s5, {"s5" if opt.get("nog") else 0}
    s_cbranch_scc0 L_redo
    L_fin:
    """)
    if opt.get("stamps"):
        a("s_waitcnt vmcnt(0)")
        stamp()
        a(f"""
        s_lshl_b32 s5, s2, 4
        s_add_u32 s5, s5, s3
        s_lshl_b32 s5, s5, 6
        s_add_u32 s5, s5, {WS_DBG}
        s_mov_b64 exec, 0xffff
        v_lshlrev_b32 v2, 2, v1
        buffer_store_dword v127, v2, {sr(sWS)}, s5 offen
        """)
    a(f"""
    L_end:
    s_endpgm
    """)
    a(f"""
    L_redo:
    s_mov_b32 s61, 1
    s_mov_b32 s53, {NLOG2E}
    v_lshlrev_b32 v10, 2, v1
    v_mov_b32 v11, 0
    s_waitcnt vmcnt(0)
    s_barrier
    ds_write_b32 v10, v11 offset:{CN2}
    ds_write_b32 v10, v11 offset:{GC}
    s_waitcnt lgkmcnt(0)
    s_barrier
    s_branch L_restart
    L_again:
    v_lshlrev_b32 v10, 2, v1
    v_mov_b64 v[12:13], 0
    ds_write_b32 v10, v12 offset:{CN2}
    ds_write_b64 v12, v[12:13] offset:{GC}
    s_or_b64 s[90:91], s[44:45], s[46:47]
    """)
    for j in range(2, 8):
        a(f"s_or_b64 s[90:91], s[90:91], s[{44+2*j}:{45+2*j}]")
    a(f"""
    s_waitcnt lgkmcnt(0)
    s_barrier
    s_cbranch_scc1 L_round
    s_add_u32 s60, s60, 32
    s_min_u32 s60, s60, {SL}
    s_branch L_window
    L_slow:
    ds_read_b64 v[8:9], v{vAH}
    ds_read_b32 v{vGM}, v{vAM}
    s_waitcnt lgkmcnt(0)
    ds_read_b128 {vr(vOF,4)}, v8 offset:{OFF}
    ds_read_b128 {vr(vOF+4,4)}, v8 offset:{OFF+16}
    v_add_u32 v{vNA[0]}, v9, v{vN8}
    v_mad_u32_u24 v{vAE}, v{vGM}, v{vEM}, v{vEC}
    ds_read_b64 {vr(vBO+2,2)}, v{vNA[0]}
    ds_read_b64 {vr(vEA,2)}, v{vAE}
    v_add_u32 v{vAH}, 256, v{vAH}
    v_add_u32 v{vAM}, 256, v{vAM}
    s_waitcnt lgkmcnt(0)
    """)
    for r in range(8):
        gather(vGA, r)
    a("s_waitcnt vmcnt(0)")
    head(vGA)
    a(f"s_nop 3\nv_mov_b64 {Nn}, 0")
    for r in range(8):
        ex(r)
        a(f"s_nop 0\nv_pk_add_f32 {T(r)}, {T(r)}, 1.0 op_sel_hi:[1,0]")
        a(f"v_rcp_f32 v{vDD+2*r}, v{vDD+2*r}\nv_rcp_f32 v{vDD+2*r+1}, v{vDD+2*r+1}\ns_nop 0")
        a(f"v_pk_fma_f32 {Nn}, {H(r)}, {T(r)}, {Nn}")
    a("s_sub_u32 s41, s41, 1\ns_cmp_eq_u32 s41, 0")
    fin(vNA[0])
    a("s_cbranch_scc0 L_slow\ns_branch L_mdone")
    return a.text()


def kd(name, vgpr):
    return f""".p2align 6
.amdhsa_kernel {name}
  .amdhsa_next_free_vgpr {vgpr}
  .amdhsa_next_free_sgpr 96
  .amdhsa_accum_offset {vgpr}
  .amdhsa_group_segment_fixed_size 0
  .amdhsa_kernarg_size 80
  .amdhsa_user_sgpr_count 2
  .amdhsa_user_sgpr_kernarg_segment_ptr 1
  .amdhsa_system_sgpr_workgroup_id_x 1
.end_amdhsa_kernel
"""


def gen(opt):
    t = kernel(opt)
    ref = open(f"cdna_kernels/{NAME}.s.ref").read().split("\n")
    out = "\n".join(ref[:11]) + "\n"
    out += f"; @launch grid=(256,1,1) block=(1024,1,1) lds={LDS}\n"
    out += '.amdgcn_target "amdgcn-amd-amdhsa--gfx950"\n.text\n'
    nm = NAME + "_kernel"
    out += f".globl {nm}\n.p2align 8\n.type {nm},@function\n" + t
    out += '.section .rodata,"a"\n' + kd(nm, 128)
    return out


if __name__ == "__main__":
    opt = {}
    for x in sys.argv[2:]:
        k, _, v = x.partition("=")
        opt[k] = int(v) if v else 1
    open(sys.argv[1], "w").write(gen(opt))
```

```python
import sys

NAME = "gather_scatter__edge_featured_mpnn_egc__graph"
N, E = 12500, 800000
NPB = 49
SL = 3136
WS_TB = 0
WS_T = 4 << 20
WS_K = 5 << 20
WS_E = 9 << 20
WS_DBG = 32 << 20
WS_SIZE = 64 << 20
NLOG2E = "0xbfb8aa3b"
OOB = 0x40000000

CN2 = 0
GC, MORE, FL = 256, 260, 264
CNT, BASE = 512, 1536
NODE = 2560
GD = NODE + NPB * 768
OFF = GD + 6400
EA = OFF + 25344
LWA = EA + 50240
LX = LWA + 16384
LDS = LX + 8192
KEYS, EAIN, TBS, LWB = 40192, 53504, 80128, 96512
ZOFF = N * 8


class Asm:
    def __init__(self):
        self.l = []

    def __call__(self, s):
        for x in s.split("\n"):
            x = x.strip()
            if x:
                self.l.append(("" if x.endswith(":") else "    ") + x)

    def text(self):
        return "\n".join(self.l) + "\n"


def vr(a, n):
    return f"v[{a}:{a+n-1}]"


def sr(a, n=4):
    return f"s[{a}:{a+n-1}]"


def scan64(a, v):
    for sh in (1, 2, 4, 8):
        a(f"s_nop 1\nv_add_u32_dpp v{v}, v{v}, v{v} row_shr:{sh} row_mask:0xf bank_mask:0xf bound_ctrl:0")
    a(f"s_nop 1\nv_add_u32_dpp v{v}, v{v}, v{v} row_bcast:15 row_mask:0xa bank_mask:0xf")
    a(f"s_nop 1\nv_add_u32_dpp v{v}, v{v}, v{v} row_bcast:31 row_mask:0xc bank_mask:0xf")


def gemm_job(a, vXA, vWA, wofs, vA, vB, vD):
    a(f"ds_read_b128 {vr(vA,4)}, v{vXA}\nds_read_b128 {vr(vA+4,4)}, v{vXA} offset:64")
    idx = 0
    for M in range(2):
        for t in range(2):
            for s in range(2):
                for j2 in range(2):
                    a(f"ds_read_b64_tr_b16 {vr(vB+2*idx,2)}, v{vWA} offset:{wofs+M*8192+s*4096+j2*512+t*64}")
                    idx += 1
    for q in range(4):
        a(f"s_waitcnt lgkmcnt({12-4*q})")
        a(f"v_mfma_f32_16x16x32_bf16 {vr(vD+4*q,4)}, {vr(vA,4)}, {vr(vB+8*q,4)}, 0")
        a(f"v_mfma_f32_16x16x32_bf16 {vr(vD+4*q,4)}, {vr(vA+4,4)}, {vr(vB+8*q+4,4)}, {vr(vD+4*q,4)}")


def kernel(opt):
    a = Asm()
    safe = opt.get("safe")
    nst = [0]

    def stamp():
        if opt.get("stamps"):
            a(f"s_memrealtime s[94:95]\ns_waitcnt lgkmcnt(0)\nv_writelane_b32 v127, s94, {nst[0]}")
            nst[0] += 1

    sDST, sSRC, sEA, sX, sWB, sWA, sG, sWS, sTB, sO, sDB = 8, 12, 16, 20, 24, 28, 32, 36, 64, 68, 72
    SC = "sc1"
    a(f"""
    {NAME}_kernel:
    s_cmp_ge_u32 s2, 256
    s_cbranch_scc1 L_end
    s_load_dwordx2 s[{sX}:{sX+1}], s[0:1], 0
    s_load_dwordx2 s[{sG}:{sG+1}], s[0:1], 48
    s_load_dwordx2 s[{sWB}:{sWB+1}], s[0:1], 40
    s_load_dwordx2 s[{sDST}:{sDST+1}], s[0:1], 24
    s_load_dwordx2 s[{sSRC}:{sSRC+1}], s[0:1], 16
    s_load_dwordx2 s[{sEA}:{sEA+1}], s[0:1], 8
    s_load_dwordx2 s[{sWA}:{sWA+1}], s[0:1], 32
    s_load_dwordx2 s[{sWS}:{sWS+1}], s[0:1], 72
    s_load_dwordx2 s[{sO}:{sO+1}], s[0:1], 56
    s_load_dwordx2 s[{sDB}:{sDB+1}], s[0:1], 64
    """)
    if opt.get("stamps"):
        a("s_memrealtime s[92:93]")
    a(f"""
    v_readfirstlane_b32 s3, v0
    """)
    if opt.get("codewarm"):
        a(f"""
        s_getpc_b64 s[90:91]
        v_lshlrev_b32 v54, 7, v0
        s_cmp_eq_u32 s3, 0
        s_cbranch_scc0 L_now0
        global_load_dword v54, v54, s[90:91]
        L_now0:
        """)
    a(f"""
    v_and_b32 v1, 63, v0
    v_lshlrev_b32 v2, 2, v0
    v_mov_b32 v40, 0
    ds_write_b32 v2, v40
    s_and_b32 s4, s2, 7
    s_lshl_b32 s4, s4, 5
    s_lshr_b32 s5, s2, 3
    s_add_u32 s4, s4, s5
    s_lshr_b32 s3, s3, 6
    """)
    for s, sz in ((sX, N * 128), (sWB, 16384), (sDST, E * 4), (sSRC, E * 4), (sEA, E * 8), (sWA, 8192),
                  (sG, 132 * 128), (sWS, WS_SIZE if opt.get('stamps') else 16 << 20), (sO, N * 128), (sDB, 256)):
        a(f"s_mov_b32 s{s+2}, {sz}\ns_mov_b32 s{s+3}, 0x20000")
    a(f"""
    s_mov_b32 s{sTB+2}, {WS_T}
    s_mov_b32 s{sTB+3}, {"0x20000" if safe else "0xc00000"}
    s_cmp_lt_u32 s2, 255
    s_movk_i32 s5, 784
    s_cselect_b32 s5, s5, 80
    v_cmp_gt_u32 s[44:45], s5, v0
    v_lshlrev_b32 v4, 4, v0
    v_lshlrev_b32 v7, 4, v1
    s_mul_i32 s6, s2, {SL*4}
    s_lshl_b32 s7, s3, 10
    v_cndmask_b32 v5, 2.0, v4, s[44:45]
    s_mul_i32 s63, s4, {NPB*128}
    s_add_u32 s42, s63, s7
    s_add_u32 m0, s7, {LX}
    s_xor_b32 s43, s7, 8192
    s_cmp_lt_u32 s3, 7
    s_waitcnt lgkmcnt(0)
    s_cbranch_scc0 L_nox
    buffer_load_dwordx4 v7, {sr(sX)}, s42 offen lds
    L_nox:
    """)
    if opt.get("tlbwarm"):
        a(f"""
        s_cmp_eq_u32 s3, 7
        s_cbranch_scc0 L_now1
        v_lshlrev_b32 v55, {opt["tlbwarm"]}, v1
        buffer_load_dword v55, v55, {sr(sWS)}, 0 offen offset:1920 {SC}
        buffer_load_dword v54, v7, {sr(sO)}, s63 offen {SC}
        L_now1:
        """)
    a(f"""
    {"s_add_u32 s%d, s%d, %d" % (sWS, sWS, opt["wsoff"] << 20) if opt.get("wsoff") else ""}
    {"s_addc_u32 s%d, s%d, 0" % (sWS+1, sWS+1) if opt.get("wsoff") else ""}
    s_add_u32 m0, s7, {LWB}
    s_cmp_lt_u32 s3, 8
    s_cselect_b32 s{sWB}, s{sG}, s{sWB}
    s_cselect_b32 s{sWB+1}, s{sG+1}, s{sWB+1}
    s_cselect_b32 s{sWA}, s{sG}, s{sWA}
    s_cselect_b32 s{sWA+1}, s{sG+1}, s{sWA+1}
    buffer_load_dwordx4 v7, {sr(sWB)}, s43 offen lds
    buffer_load_dwordx4 v[8:11], v5, {sr(sDST)}, s6 offen
    """)
    if opt.get("stamps"):
        a("v_writelane_b32 v127, s92, 0")
        nst[0] = 1
    a(f"""
    s_lshl_b32 s42, s2, 12
    s_add_u32 s42, s42, s7
    s_add_u32 s42, s42, {WS_T - 12*1024}
    s_cmp_lt_u32 s2, 64
    s_cselect_b32 s42, s42, {OOB}
    s_cmp_ge_u32 s3, 12
    s_cselect_b32 s42, s42, {OOB}
    v_add_u32 v6, s42, v7
    v_mov_b32 v41, 0
    v_mov_b64 v[42:43], 0
    s_barrier
    buffer_store_dwordx4 v[40:43], v6, {sr(sWS)}, 0 offen {SC}
    buffer_load_dwordx4 v[12:15], v5, {sr(sSRC)}, s6 offen
    s_add_u32 m0, s7, {EAIN}
    s_lshl_b32 s42, s6, 1
    s_add_u32 s42, s42, s7
    buffer_load_dwordx4 v7, {sr(sEA)}, s42 offen lds
    s_add_u32 m0, s7, {LWA}
    s_and_b32 s43, s7, 8191
    v_lshlrev_b32 v6, 1, v1
    buffer_load_dwordx4 v7, {sr(sWA)}, s43 offen lds
    s_movk_i32 s43, 0x4000
    """)
    vC = 120
    for k in range(4):
        a(f"buffer_load_ushort v{vC+k}, v6, {sr(sG)}, s43 offen offset:{128*k}")
    a(f"""
    s_cmp_lt_u32 s3, 9
    s_cbranch_scc0 L_noe
    s_add_u32 m0, s7, {EAIN+16384}
    s_add_u32 s42, s42, 16384
    s_nop 0
    buffer_load_dwordx4 v7, {sr(sEA)}, s42 offen lds
    L_noe:
    """)
    vXA, vWA, vG4, vI = 124, 125, 126, 6
    a(f"""
    s_mov_b32 s{sTB}, s{sWS}
    s_or_b32 s{sTB+1}, s{sWS+1}, {0 if safe else 0x80000000}
    s_bfe_u32 s40, s3, 0x20001
    s_and_b32 s41, s3, 1
    v_and_b32 v{vI}, 15, v1
    v_lshrrev_b32 v{vG4}, 4, v1
    s_lshl_b32 s42, s40, 11
    s_add_u32 s42, s42, {LX}
    v_lshlrev_b32 v{vXA}, 7, v{vI}
    v_lshl_add_u32 v{vXA}, v{vG4}, 4, v{vXA}
    v_add_u32 v{vXA}, s42, v{vXA}
    v_lshrrev_b32 v{vWA}, 2, v{vI}
    v_lshl_add_u32 v{vWA}, v{vG4}, 3, v{vWA}
    v_lshlrev_b32 v{vWA}, 7, v{vWA}
    v_and_b32 v2, 3, v1
    v_lshl_add_u32 v{vWA}, v2, 3, v{vWA}
    s_lshl_b32 s42, s41, 5
    s_add_u32 s42, s42, {LWB}
    v_add_u32 v{vWA}, s42, v{vWA}
    s_lshl_b32 s42, s40, 12
    s_lshl_b32 s43, s41, 6
    s_add_u32 s42, s42, s43
    s_add_u32 s42, s42, {TBS}
    v_lshlrev_b32 v2, 10, v{vG4}
    v_lshl_add_u32 v2, v{vI}, 2, v2
    v_add_u32 v2, s42, v2
    v_lshlrev_b32 v28, 16, v0
    v_mov_b32 v3, 4
    v_mov_b32 v29, 0x21800000
    s_mov_b32 s52, -{NPB}
    s_mov_b32 s53, {NLOG2E}
    s_movk_i32 s54, 0x4000
    s_mov_b32 s55, 0x8000
    s_mov_b32 s56, 0xc000
    s_mov_b32 s61, 0
    s_waitcnt vmcnt(9)
    s_barrier
    """)
    stamp()
    vA, vW, vM = 64, 72, 104
    a("s_cmp_lt_u32 s3, 8\ns_cbranch_scc1 L_nojob1")
    gemm_job(a, vXA, vWA, 0, vA, vW, vM)
    sd = "dst_sel:DWORD dst_unused:UNUSED_PAD src0_sel:DWORD"
    a("s_nop 1")
    for r in range(4):
        a(f"v_fma_f32 v{vM+r}, v{vM+r}, s53, v29")
    for r in range(4):
        a(f"v_fma_f32 v{vM+4+r}, v{vM+4+r}, s53, v29")
    for r in range(4):
        a(f"v_cvt_pk_bf16_f32 v{64+r}, v{vM+8+r}, v{vM+8+r}")
    for r in range(4):
        a(f"v_add_f32 v{vM+12+r}, 0, v{vM+12+r}")
    for r in range(4):
        a(f"v_sub_u32_sdwa v{vM+r}, v{vM+r}, v{64+r} clamp {sd} src1_sel:WORD_0")
    for r in range(4):
        a(f"v_cvt_pk_bf16_f32 v{vM+r}, v{vM+8+r}, v{vM+r}")
    for r in range(4):
        a(f"v_sub_u32_sdwa v{vM+12+r}, v{vM+12+r}, v{vM+r} clamp {sd} src1_sel:WORD_1")
    for r in range(4):
        a(f"v_cvt_pk_bf16_f32 v{64+r}, v{vM+12+r}, v{vM+12+r}")
    for r in range(4):
        a(f"v_sub_u32_sdwa v{vM+4+r}, v{vM+4+r}, v{64+r} clamp {sd} src1_sel:WORD_0")
    for r in range(4):
        a(f"v_cvt_pk_bf16_f32 v{vM+4+r}, v{vM+12+r}, v{vM+4+r}")
        a(f"ds_write2_b32 v2, v{vM+r}, v{vM+4+r} offset0:{64*r} offset1:{64*r+32}")
    vD, vS, vB, vR, vL = 8, 12, 16, 20, 24
    a(f"""
    L_nojob1:
    s_mov_b64 exec, s[44:45]
    s_cbranch_execz L_norank
    s_waitcnt vmcnt(8)
    """)
    for k in range(4):
        a(f"""
        v_mul_u32_u24 v{vB+k}, 21400, v{vD+k}
        v_lshrrev_b32 v{vB+k}, 20, v{vB+k}
        v_mad_i32_i24 v{vL+k}, v{vB+k}, s52, v{vD+k}
        v_lshlrev_b32 v{vB+k}, 2, v{vB+k}
        ds_add_rtn_u32 v{vR+k}, v{vB+k}, v3 offset:{CNT}
        """)
    for k in range(4):
        a(f"v_lshl_or_b32 v{vL+k}, v{vL+k}, 26, v28")
    a(f"""
    L_norank:
    s_mov_b64 exec, -1
    s_cmp_lt_u32 s3, 9
    s_cbranch_scc1 L_w2
    s_waitcnt vmcnt(6)
    L_w2:
    s_waitcnt vmcnt(7)
    v_or_b32 v{vS}, v{vS}, v{vL}
    v_or3_b32 v{vS+1}, v{vS+1}, v{vL+1}, s54
    v_or3_b32 v{vS+2}, v{vS+2}, v{vL+2}, s55
    v_or3_b32 v{vS+3}, v{vS+3}, v{vL+3}, s56
    v_add_u32 v30, {TBS - 3072}, v4
    s_cmp_lt_u32 s3, 3
    s_waitcnt lgkmcnt(0)
    s_barrier
    """)
    if opt.get("stamps"):
        stamp()
        a("s_cmp_lt_u32 s3, 3")
    a(f"""
    s_cbranch_scc1 L_notb
    ds_read_b128 v[32:35], v30
    v_cmp_gt_u32 s[46:47], {784+192}, v0
    s_lshl_b32 s42, s63, 1
    v_subrev_u32 v30, 3072, v4
    v_cndmask_b32 v30, 2.0, v30, s[46:47]
    s_waitcnt lgkmcnt(0)
    buffer_store_dwordx4 v[32:35], v30, {sr(sWS)}, s42 offen {SC}
    s_branch L_noscan
    L_notb:
    s_lshl_b32 s42, s2, 2
    s_cmp_eq_u32 s3, 1
    s_cselect_b32 s42, s42, 0x1000
    v_lshl_add_u32 v31, v1, 10, s42
    buffer_store_dword v3, v31, {sr(sDB)}, 0 offen {SC}
    s_cmp_eq_u32 s3, 0
    s_cbranch_scc0 L_noscan
    ds_read_b128 v[32:35], v7 offset:{CNT}
    s_waitcnt lgkmcnt(0)
    v_add_u32 v44, v32, v33
    v_add_u32 v45, v44, v34
    v_add_u32 v46, v45, v35
    v_mov_b32 v36, v46
    """.replace(f"v_cmp_gt_u32 s[46:47], {784+192}, v0", f"s_movk_i32 s43, {784+192}\nv_cmp_gt_u32 s[46:47], s43, v0"))
    scan64(a, 36)
    a(f"""
    v_sub_u32 v36, v36, v46
    v_add_u32 v36, 0x40000, v36
    v_add_u32 v37, v36, v32
    v_add_u32 v38, v36, v44
    v_add_u32 v39, v36, v45
    v_lshl_add_u32 v36, v32, 16, v36
    v_lshl_add_u32 v37, v33, 16, v37
    v_lshl_add_u32 v38, v34, 16, v38
    v_lshl_add_u32 v39, v35, 16, v39
    ds_write_b128 v7, v[36:39] offset:{BASE}
    s_waitcnt lgkmcnt(0)
    L_noscan:
    s_barrier
    """)
    stamp()
    a("s_mov_b64 exec, s[44:45]\ns_cbranch_execz L_nosc")
    for k in range(4):
        a(f"ds_read_u16 v{vB+k}, v{vB+k} offset:{BASE}")
    for k in range(4):
        a(f"""
        s_waitcnt lgkmcnt(3)
        v_add_u32 v{vB+k}, v{vB+k}, v{vR+k}
        ds_write_b32 v{vB+k}, v{vS+k} offset:{KEYS}
        """)
    vBO, vEA = 60, 56
    a(f"""
    L_nosc:
    s_mov_b64 exec, -1
    v_lshlrev_b32 v2, 3, v0
    s_mul_i32 s42, s2, {SL*8}
    s_add_u32 s42, s42, {WS_E}
    s_add_u32 s43, s6, {WS_K}
    s_add_u32 s5, s42, 16384
    s_waitcnt vmcnt(1) lgkmcnt(0)
    s_barrier
    """)
    stamp()
    a(f"""
    ds_read_b64 v[8:9], v2 offset:{KEYS}
    ds_read_b64 v[10:11], v2 offset:{KEYS+8192}
    ds_read_b128 v[20:23], v4 offset:{KEYS-3072}
    v_cmp_gt_u32 vcc, {1568-1024}, v0
    s_waitcnt lgkmcnt(2)
    """)
    for k in range(2):
        a(f"v_lshrrev_b32 v{8+k}, 11, v{8+k}\nv_and_b32 v{8+k}, 0x7ff8, v{8+k}\nds_read_b64 {vr(12+2*k,2)}, v{8+k} offset:{EAIN}")
    a(f"""
    s_cmp_lt_u32 s3, 3
    s_cbranch_scc1 L_nok
    s_waitcnt lgkmcnt(2)
    buffer_store_dwordx4 v[20:23], v30, {sr(sWS)}, s43 offen {SC}
    L_nok:
    s_and_saveexec_b64 s[48:49], vcc
    s_cbranch_execz L_noe2
    s_waitcnt lgkmcnt(2)
    """)
    for k in range(2, 4):
        a(f"v_lshrrev_b32 v{8+k}, 11, v{8+k}\nv_and_b32 v{8+k}, 0x7ff8, v{8+k}\nds_read_b64 {vr(12+2*k,2)}, v{8+k} offset:{EAIN}")
    a(f"""
    s_waitcnt lgkmcnt(0)
    buffer_store_dwordx4 v[16:19], v4, {sr(sWS)}, s5 offen {SC}
    L_noe2:
    s_mov_b64 exec, -1
    s_waitcnt lgkmcnt(0)
    buffer_store_dwordx4 v[12:15], v4, {sr(sWS)}, s42 offen {SC}
    """)
    stamp()
    vAH, vAM, vEM, vEC, vN8 = 48, 49, 50, 51, 52
    vTA = 53
    for k in range(4):
        a(f"v_lshlrev_b32 v{vC+k}, 16, v{vC+k}\nv_mul_f32 v{vC+k}, s53, v{vC+k}")
    a(f"""
    v_cvt_pk_bf16_f32 v{vBO}, v{vC}, v{vC+1}
    v_cvt_pk_bf16_f32 v{vBO+1}, v{vC+2}, v{vC+3}
    v_lshrrev_b32 v24, 5, v1
    v_bfe_u32 v25, v1, 2, 1
    v_and_b32 v26, 1, v1
    v_and_b32 v{vN8}, 31, v1
    v_cmp_eq_u32 vcc, v25, v24
    v_mov_b32 v27, 0x3f803f80
    v_lshrrev_b32 v28, 3, v{vN8}
    v_cndmask_b32 v27, 0, v27, vcc
    v_cmp_eq_u32 vcc, 0, v26
    v_bfe_u32 v29, v1, 1, 1
    v_lshl_add_u32 v28, v28, 1, v29
    v_cndmask_b32 v{vEA+2}, 0, v27, vcc
    v_cndmask_b32 v{vEA+3}, v27, 0, vcc
    v_cmp_eq_u32 vcc, v26, v24
    v_lshlrev_b32 v28, 3, v28
    v_add_u32 v28, {EA}, v28
    v_mov_b32 v29, {EA + NPB*1024}
    v_cndmask_b32 v{vEC}, v29, v28, vcc
    v_cndmask_b32 v{vEM}, 0, 2, vcc
    v_lshlrev_b32 v{vN8}, 3, v{vN8}
    s_lshl_b32 s5, s3, 4
    s_add_u32 s5, s5, {GD}
    v_lshl_add_u32 v120, v24, 3, s5
    v_lshl_add_u32 v121, v25, 3, s5
    s_lshl_b32 s5, s3, 14
    s_lshl_b32 s42, s4, 2
    s_add_u32 s5, s5, s42
    s_add_u32 s5, s5, {WS_T}
    v_lshl_add_u32 v{vTA}, v{vG4}, 10, s5
    s_movk_i32 s76, 0x1000
    s_movk_i32 s77, 0x2000
    s_movk_i32 s78, 0x3000
    s_mul_i32 s5, s3, {16*SL*4}
    s_add_u32 s80, s5, {WS_K}
    s_lshl_b32 s5, s5, 1
    s_add_u32 s84, s5, {WS_E}
    """)
    for u in range(1, 4):
        a(f"s_add_u32 s{80+u}, s80, {u*4*SL*4}\ns_add_u32 s{84+u}, s84, {u*4*SL*8}")
    a(f"""
    s_lshr_b32 s5, s2, 3
    s_lshl_b32 s5, s5, 4
    s_add_u32 s5, s5, s3
    s_mul_i32 s88, s5, {49*128}
    v_lshlrev_b32 v54, 7, v1
    s_mov_b32 s62, 0
    """)
    PF1 = opt.get("pf1", 20)
    early = opt.get("pfpos", 0) == 1

    def pf(lo, hi):
        m = ((1 << hi) - 1) & ~((1 << lo) - 1)
        if m:
            a(f"""
            s_mov_b32 exec_lo, {hex(m & 0xffffffff)}
            s_mov_b32 exec_hi, {hex(m >> 32)}
            buffer_load_dword v55, v54, {sr(sWS)}, s88 offen {SC}
            s_mov_b64 exec, -1
            """)
        return 1 if m else 0
    a(f"""
    s_cmp_eq_u32 s3, 0
    s_cbranch_scc0 L_nodbg
    v_lshlrev_b32 v24, 2, v1
    L_dbg:
    buffer_load_dword v25, v24, {sr(sDB)}, 0 offen {SC}
    s_add_u32 s62, s62, 1
    s_bitcmp1_b32 s62, 20
    s_cbranch_scc1 L_end
    s_waitcnt vmcnt(0)
    v_cmp_eq_u32 vcc, 0, v25
    s_cbranch_vccnz L_dbg
    L_nodbg:
    """)
    npf = pf(0, PF1) if early else 0
    a(f"s_waitcnt vmcnt({npf})\ns_barrier")
    stamp()
    a(f"""
    s_cmp_eq_u32 s3, 0
    s_cbranch_scc0 L_not
    s_lshl_b32 s42, s2, 10
    s_add_u32 s42, s42, {WS_T}
    buffer_store_dwordx4 v[36:39], v7, {sr(sWS)}, s42 offen {SC}
    L_not:
    """)
    if not early:
        pf(0, PF1)
    a(f"""
    L_restart:
    s_mov_b32 s60, 0
    s_cmp_lt_u32 s3, 8
    s_cbranch_scc1 L_nojob2
    """)
    gemm_job(a, vXA, vWA, LWA - LWB, vA, vW, vM)
    a(f"""
    s_bfe_u32 s40, s3, 0x20001
    s_and_b32 s41, s3, 1
    s_mul_i32 s42, s40, {16*768}
    s_lshl_b32 s43, s41, 7
    s_add_u32 s42, s42, s43
    v_mul_u32_u24 v8, {4*768}, v{vG4}
    v_lshl_add_u32 v8, v{vI}, 3, v8
    v_add_u32 v8, s42, v8
    s_cmp_eq_u32 s40, 3
    s_cselect_b64 exec, 0xffff, -1
    """)
    for r in range(4):
        t = 64 + 8 * r
        a(f"""
        v_mul_f32 v{vM+r}, s53, v{vM+r}
        v_mul_f32 v{vM+4+r}, s53, v{vM+4+r}
        v_and_b32 v{t}, 0xffff0000, v{vM+r}
        v_and_b32 v{t+1}, 0xffff0000, v{vM+4+r}
        v_sub_f32 v{vM+r}, v{vM+r}, v{t}
        v_sub_f32 v{vM+4+r}, v{vM+4+r}, v{t+1}
        v_cvt_pk_bf16_f32 v{t}, v{t}, v{vM+r}
        v_cvt_pk_bf16_f32 v{t+1}, v{t+1}, v{vM+4+r}
        v_cvt_f64_f32 {vr(t+2,2)}, v{vM+8+r}
        v_cvt_f64_f32 {vr(t+4,2)}, v{vM+12+r}
        ds_write_b64 v8, {vr(t,2)} offset:{NODE+768*r}
        ds_write_b64 v8, {vr(t+2,2)} offset:{NODE+768*r+256}
        ds_write_b64 v8, {vr(t+4,2)} offset:{NODE+768*r+512}
        """)
        if r == 0:
            a("s_cbranch_scc1 L_nojob2")
    vT = 2
    a(f"""
    L_nojob2:
    s_mov_b64 exec, -1
    L_poll:
    buffer_load_dword v{vT}, v{vTA}, {sr(sWS)}, 0 offen {SC}
    buffer_load_dword v{vT+1}, v{vTA}, {sr(sWS)}, s76 offen {SC}
    buffer_load_dword v{vT+2}, v{vTA}, {sr(sWS)}, s77 offen {SC}
    buffer_load_dword v{vT+3}, v{vTA}, {sr(sWS)}, s78 offen {SC}
    s_add_u32 s62, s62, 1
    s_bitcmp1_b32 s62, 20
    s_cbranch_scc1 L_end
    s_waitcnt vmcnt(0)
    v_min_u32 v8, v{vT}, v{vT+1}
    v_min3_u32 v8, v8, v{vT+2}, v{vT+3}
    v_cmp_eq_u32 vcc, 0, v8
    s_cbranch_vccnz L_poll
    """)
    stamp()
    a(f"""
    L_window:
    v_add_u32 v8, s60, v{vI}
    v_lshlrev_b32 v9, 18, v8
    v_add_u32 v9, {8<<16}, v9
    v_add_u32 v10, {64<<16}, v9
    """)
    for u in range(4):
        a(f"v_cmp_le_u32 s[{44+2*u}:{45+2*u}], v9, v{vT+u}\nv_cmp_le_u32 s[{52+2*u}:{53+2*u}], v10, v{vT+u}")
    vRk, vRe, vRa, vRp = 64, 72, 88, 96
    a(f"""
    L_round:
    v_add_u32 v8, s60, v{vI}
    v_mul_u32_u24 v9, {SL}, v{vG4}
    v_add_lshl_u32 v8, v8, v9, 2
    """)
    for u in range(4):
        a(f"v_add_u32_sdwa v{12+u}, v8, v{vT+u} {sd} src1_sel:WORD_0\nv_lshlrev_b32 v{16+u}, 1, v{12+u}")
    for u in range(4):
        a(f"""
        s_mov_b64 exec, s[{52+2*u}:{53+2*u}]
        s_cbranch_execz L_n2_{u}
        buffer_load_dword v{vRk+4+u}, v{12+u}, {sr(sWS)}, s{80+u} offen offset:64 {SC}
        buffer_load_dwordx2 {vr(vRe+8+2*u,2)}, v{16+u}, {sr(sWS)}, s{84+u} offen offset:128 {SC}
        L_n2_{u}:
        """)
    a("s_mov_b64 exec, -1")
    for u in range(4):
        a(f"buffer_load_dword v{vRk+u}, v{12+u}, {sr(sWS)}, s{80+u} offen {SC}")
    for u in range(4):
        a(f"buffer_load_dwordx2 {vr(vRe+2*u,2)}, v{16+u}, {sr(sWS)}, s{84+u} offen {SC}")
    PF2 = opt.get("pf2", 49)
    npf = pf(PF1, PF2)
    a(f"""
    v_mov_b32 v8, {NPB*512}
    v_mov_b32 v9, {NODE}
    v_lshlrev_b32 v10, 3, v0
    v_cmp_gt_u32 vcc, 800, v0
    s_and_saveexec_b64 s[42:43], vcc
    ds_write_b64 v10, v[8:9] offset:{GD}
    v_cmp_gt_u32 vcc, 8, v0
    s_and_b64 exec, exec, vcc
    s_cbranch_execz L_nodum
    v_mov_b32 v8, {ZOFF}
    v_lshlrev_b32 v9, 2, v0
    v_add_u32 v9, {OFF + NPB*512}, v9
    ds_write_b32 v9, v8
    v_mov_b64 v[8:9], 0
    v_add_u32 v10, {EA + NPB*1024}, v10
    ds_write_b64 v10, v[8:9]
    L_nodum:
    s_mov_b64 exec, -1
    v_mov_b32 v8, 4
    v_mov_b32 v9, 0xfc
    v_max_u32 v10, v{vT}, v{vT+1}
    v_max3_u32 v10, v10, v{vT+2}, v{vT+3}
    s_lshl_b32 s5, s60, 18
    s_add_u32 s5, s5, {(128+8)<<16}
    v_cmp_le_u32 s[90:91], s5, v10
    s_mov_b32 s43, {EA}
    s_movk_i32 s42, 0x200
    """)
    order = [4, 5, 6, 7, 0, 1, 2, 3]

    def slot_rank(j):
        a(f"""
        v_and_b32_sdwa v{vRa+j}, v{vRk+j}, v9 dst_sel:DWORD dst_unused:UNUSED_PAD src0_sel:BYTE_3 src1_sel:DWORD
        ds_add_rtn_u32 v{vRp+j}, v{vRa+j}, v8 offset:{CN2}
        v_lshlrev_b32 v{vRk+j}, 18, v{vRk+j}
        v_lshrrev_b32 v{vRk+j}, 15, v{vRk+j}
        """)

    def slot_put(j):
        m = f"s[{44+2*j}:{45+2*j}]"
        a(f"""
        v_cmpx_gt_u32 vcc, s42, v{vRp+j}
        v_lshl_add_u32 v{vRp+j}, v{vRa+j}, 7, v{vRp+j}
        s_andn2_b64 {m}, {m}, vcc
        v_lshl_add_u32 v{vRa+j}, v{vRp+j}, 1, s43
        ds_write_b32 v{vRp+j}, v{vRk+j} offset:{OFF}
        ds_write_b64 v{vRa+j}, {vr(vRe+2*j,2)}
        s_or_b64 s[90:91], s[90:91], {m}
        """)

    for u in range(4):
        a(f"s_mov_b64 exec, s[{44+2*u}:{45+2*u}]\ns_waitcnt vmcnt({7-u+npf})")
        slot_rank(u)
    for u in range(4):
        a(f"s_mov_b64 exec, s[{52+2*u}:{53+2*u}]\ns_cbranch_execz L_r2_{u}")
        slot_rank(4 + u)
        a(f"L_r2_{u}:")
    a("s_waitcnt lgkmcnt(0)")
    for u in range(4):
        a(f"s_mov_b64 exec, s[{52+2*u}:{53+2*u}]\ns_cbranch_execz L_p2_{u}")
        slot_put(4 + u)
        a(f"L_p2_{u}:")
    for u in range(4):
        a(f"s_mov_b64 exec, s[{44+2*u}:{45+2*u}]\ns_waitcnt vmcnt({3-u+npf})")
        slot_put(u)
    a(f"""
    s_mov_b64 exec, -1
    s_cbranch_scc0 L_nomore
    ds_write_b32 v8, v8 offset:{MORE-4}
    L_nomore:
    v_lshlrev_b32 v10, 2, v1
    s_lshl_b32 s5, s3, 5
    v_lshl_add_u32 v12, v1, 9, s5
    v_mul_u32_u24 v13, 768, v1
    v_add_u32 v13, {NODE}, v13
    v_mov_b32 v{vAH}, v120
    v_mov_b32 v{vAM}, v121
    """)
    pf(max(PF1, PF2), opt.get("pf3", 0))
    a("s_waitcnt lgkmcnt(0)\ns_barrier")
    stamp()
    a(f"""
    ds_read_b32 v11, v10 offset:{CN2}
    s_waitcnt lgkmcnt(0)
    v_min_u32 v11, s42, v11
    v_cmp_lt_u32 vcc, s5, v11
    s_bcnt1_i32_b64 s6, vcc
    s_cbranch_scc0 L_nolev
    s_lshl_b32 s6, s6, 3
    v_mov_b32 v14, s6
    s_mov_b64 exec, 1
    ds_add_rtn_u32 v14, v10, v14 offset:{GC}
    s_mov_b64 exec, -1
    v_mbcnt_lo_u32_b32 v15, vcc_lo, 0
    v_mbcnt_hi_u32_b32 v15, vcc_hi, v15
    s_waitcnt lgkmcnt(0)
    v_readfirstlane_b32 s6, v14
    s_mov_b64 exec, vcc
    s_nop 0
    v_lshl_add_u32 v15, v15, 3, s6
    ds_write_b64 v15, v[12:13] offset:{GD}
    s_mov_b64 exec, -1
    L_nolev:
    s_sub_u32 s6, s3, 9
    s_cbranch_scc1 L_nopad
    s_lshl_b32 s6, s6, 2
    v_add_u32 v14, 28, v11
    v_and_b32 v14, 0xffffffe0, v14
    v_add_u32 v11, s6, v11
    v_cmpx_lt_u32 vcc, v11, v14
    v_lshl_add_u32 v11, v1, 9, v11
    v_mov_b32 v14, {ZOFF}
    ds_write_b32 v11, v14 offset:{OFF}
    v_lshl_add_u32 v11, v11, 1, s43
    v_mov_b64 v[14:15], 0
    ds_write_b64 v11, v[14:15]
    s_mov_b64 exec, -1
    L_nopad:
    v_mov_b32 v10, 0
    s_waitcnt lgkmcnt(0)
    s_barrier
    """)
    stamp()
    vGA, vGB, vH, vDD, vOF = 64, 80, 96, 104 + 0, 16
    vH, vDD = 32, 96
    vNA = (24, 25)
    vG2, vGM, vAE = 26, 28, 29
    vP, vNn, vRc, vF, vSS = 8, 10, 12, 112, 14
    vL4 = 30

    def gather(g, r, ofs=vOF):
        if opt.get("nog"):
            return
        if safe:
            a(f"v_lshl_add_u32 v{ofs+r}, v{ofs+r}, 5, v{vL4}")
        a(f"buffer_load_dword v{g+2*r}, v{ofs+r}, {sr(sTB)}, 0 offen")
        a(f"buffer_load_dword v{g+2*r+1}, v{ofs+r}, {sr(sTB)}, 0 offen offset:{128 if safe else 4}")

    a(f"""
    ds_read_b32 v11, v10 offset:{GC}
    ds_read_b64 v[8:9], v{vAH}
    ds_read_b32 v{vGM}, v{vAM}
    ds_read2_b32 {vr(vG2,2)}, v{vAH} offset0:65 offset1:128
    ds_read_b32 v13, v{vAH} offset:256
    v_lshrrev_b32 v{vL4}, 1, v{vN8}
    v_mov_b64 {vr(vSS,2)}, 0
    s_waitcnt lgkmcnt(3)
    ds_read_b128 {vr(vOF,4)}, v8 offset:{OFF}
    ds_read_b128 {vr(vOF+4,4)}, v8 offset:{OFF+16}
    v_readfirstlane_b32 s40, v11
    v_add_u32 v{vNA[0]}, v9, v{vN8}
    s_add_u32 s40, s40, 8
    s_lshr_b32 s40, s40, 4
    s_sub_u32 s41, s40, s3
    s_cbranch_scc1 L_mdone
    s_add_u32 s41, s41, 15
    s_lshr_b32 s41, s41, 4
    s_cbranch_scc0 L_mdone
    s_cmp_eq_u32 s61, 0
    s_cbranch_scc0 L_slow
    s_waitcnt lgkmcnt(2)
    ds_read_b128 {vr(vH,4)}, v13 offset:{OFF}
    ds_read_b128 {vr(vH+4,4)}, v13 offset:{OFF+16}
    v_mad_u32_u24 v{vAE}, v{vGM}, v{vEM}, v{vEC}
    ds_read_b64 {vr(vBO+2,2)}, v{vNA[0]}
    ds_read_b64 {vr(vEA,2)}, v{vAE}
    ds_read_b32 v{vGM}, v{vAM} offset:256
    v_add_u32 v{vAH}, 512, v{vAH}
    v_add_u32 v{vAM}, 512, v{vAM}
    s_setprio 1
    s_waitcnt lgkmcnt(5)
    """)
    for r in range(8):
        gather(vGA, r)
    a(f"""
    ds_read_b128 {vr(vOF,4)}, v{vG2+1} offset:{OFF}
    ds_read_b128 {vr(vOF+4,4)}, v{vG2+1} offset:{OFF+16}
    s_cmp_lt_u32 s41, 2
    s_cbranch_scc1 L_tail0
    s_waitcnt lgkmcnt(5)
    """)
    for r in range(8):
        gather(vGB, r, vH)
    a("s_waitcnt lgkmcnt(0)\ns_cmp_lt_u32 s41, 3\ns_cbranch_scc1 L_tail0")

    T = lambda r: vr(vDD + 2 * r, 2)
    H = lambda r: vr(vH + 2 * r, 2)
    P, Nn = vr(vP, 2), vr(vNn, 2)

    def ex(r):
        a(f"v_exp_f32 v{vDD+2*r}, v{vDD+2*r}\nv_exp_f32 v{vDD+2*r+1}, v{vDD+2*r+1}")

    def head(g):
        a(f"v_mfma_f32_32x32x16_bf16 {vr(vDD,16)}, {vr(vEA,4)}, {vr(vBO,4)}, {vr(g,16)}")
        for r in range(8):
            a(f"v_lshlrev_b64 {vr(vH+2*r,2)}, 16, {vr(g+2*r,2)}")

    def fin(na):
        a(f"""
        v_cvt_f64_f32 {vr(vF,2)}, v{vNn}
        v_cvt_f64_f32 {vr(vF+2,2)}, v{vNn+1}
        ds_add_f64 v{na}, {vr(vF,2)} offset:256
        ds_add_f64 v{na}, {vr(vF+2,2)} offset:512
        """)

    def unit(par, tail):
        g = (vGA, vGB)[par]
        na, nb = vNA[par], vNA[1 - par]
        if tail:
            a(f"""
            s_setprio 0
            s_cmp_lt_u32 s41, 2
            s_cbranch_scc0 L_tw{par}
            s_waitcnt vmcnt(0)
            L_tw{par}:
            s_waitcnt vmcnt(16) lgkmcnt(2)
            """)
        else:
            a("s_waitcnt vmcnt(16) lgkmcnt(3)")
        head(g)
        a(f"""
        v_add_u32 v{nb}, v{vG2}, v{vN8}
        v_mad_u32_u24 v{vAE}, v{vGM}, v{vEM}, v{vEC}
        ds_read_b64 {vr(vBO+2,2)}, v{nb}
        ds_read_b64 {vr(vEA,2)}, v{vAE}
        """)
        if not tail:
            a(f"ds_read2_b32 {vr(vG2,2)}, v{vAH} offset0:{1+64*par} offset1:{64+64*par}")
            a(f"ds_read_b32 v{vGM}, v{vAM} offset:{256*par}")
            if par == 1:
                a(f"v_add_u32 v{vAH}, 512, v{vAH}\nv_add_u32 v{vAM}, 512, v{vAM}")
        ex(0)
        if not tail:
            gather(g, 0)
        ex(1)
        a(f"v_pk_add_f32 {P}, {T(0)}, 1.0 op_sel_hi:[1,0]")
        if not tail:
            gather(g, 1)
        ex(2)
        a(f"v_pk_fma_f32 {Nn}, {H(0)}, {T(1)}, {H(0)}")
        a(f"v_pk_fma_f32 {Nn}, {H(1)}, {P}, {Nn}")
        a(f"v_pk_fma_f32 {P}, {P}, {T(1)}, {P}")
        for r in range(2, 8):
            if not tail:
                if r == 4:
                    a(f"s_waitcnt lgkmcnt(1)\nds_read_b128 {vr(vOF,4)}, v{vG2+1} offset:{OFF}")
                gather(g, r)
                if r == 7:
                    a(f"ds_read_b128 {vr(vOF+4,4)}, v{vG2+1} offset:{OFF+16}")
            if r < 7:
                ex(r + 1)
            a(f"v_pk_fma_f32 {Nn}, {Nn}, {T(r)}, {Nn}")
            a(f"v_pk_fma_f32 {Nn}, {H(r)}, {P}, {Nn}")
            a(f"v_pk_fma_f32 {P}, {P}, {T(r)}, {P}")
        a(f"""
        v_rcp_f32 v{vRc}, v{vP}
        v_rcp_f32 v{vRc+1}, v{vP+1}
        v_pk_add_f32 {vr(vSS,2)}, {vr(vSS,2)}, {P}
        v_pk_mul_f32 {Nn}, {Nn}, {vr(vRc,2)}
        s_sub_u32 s41, s41, 1
        """)
        a("s_cmp_eq_u32 s41, 0" if tail else "s_cmp_lt_u32 s41, 3")
        fin(na)

    a("L_fast:")
    unit(0, False)
    a("s_cbranch_scc1 L_tail1")
    unit(1, False)
    a("s_cbranch_scc0 L_fast")
    a("L_tail0:")
    unit(0, True)
    a("s_cbranch_scc1 L_mdone")
    a("L_tail1:")
    unit(1, True)
    a("s_cbranch_scc0 L_tail0")
    a(f"""
    L_mdone:
    v_add_f32 v{vSS}, v{vSS}, v{vSS+1}
    s_waitcnt lgkmcnt(0)
    v_mov_b32 v16, {MORE}
    ds_read_b32 v17, v16
    v_cmp_ngt_f32 vcc, 0x7e000000, v{vSS}
    s_cbranch_vccz L_sok
    ds_write_b32 v16, v16 offset:4
    L_sok:
    v_lshrrev_b32 v8, 4, v0
    v_mul_u32_u24 v9, 768, v8
    v_lshl_add_u32 v9, v{vI}, 5, v9
    v_lshlrev_b32 v10, 3, v0
    s_waitcnt lgkmcnt(0)
    v_readfirstlane_b32 s5, v17
    """)
    stamp()
    a(f"""
    s_barrier
    s_cmp_eq_u32 s5, 0
    s_cbranch_scc0 L_again
    """)
    stamp()
    a(f"""
    v_cmp_gt_u32 vcc, {NPB*16}, v0
    s_and_saveexec_b64 s[6:7], vcc
    s_cbranch_execz L_noout
    ds_read_b128 v[32:35], v9 offset:{NODE+256}
    ds_read_b128 v[36:39], v9 offset:{NODE+272}
    s_waitcnt lgkmcnt(0)
    """)
    for i in range(4):
        a(f"v_cvt_f32_f64 v{24+i}, {vr(32+2*i,2)}")
    for i in range(4):
        a(f"v_mul_f32 v{28+i}, {NLOG2E}, v{24+i}")
    for i in range(4):
        a(f"v_exp_f32 v{28+i}, v{28+i}")
    a("v_add_f32 v18, v24, v25\nv_add_f32 v19, v26, v27")
    for i in range(4):
        a(f"v_add_f32 v{28+i}, 1.0, v{28+i}")
    for i in range(4):
        a(f"v_rcp_f32 v{28+i}, v{28+i}")
    a("v_add_f32 v18, v18, v19\nv_mov_b32 v19, 0x207")
    for i in range(4):
        a(f"v_mul_f32 v{28+i}, v{28+i}, v{24+i}")
    a(f"""
    v_cvt_pk_bf16_f32 v28, v28, v29
    v_cvt_pk_bf16_f32 v29, v30, v31
    buffer_store_dwordx2 v[28:29], v10, {sr(sO)}, s63 offen
    v_cmp_class_f32 vcc, v18, v19
    s_cbranch_vccz L_noout
    ds_write_b32 v16, v16 offset:4
    L_noout:
    s_mov_b64 exec, -1
    s_cmp_eq_u32 s61, 0
    s_cbranch_scc0 L_fin
    s_waitcnt lgkmcnt(0)
    s_barrier
    ds_read_b32 v17, v16 offset:4
    s_waitcnt lgkmcnt(0)
    v_readfirstlane_b32 s5, v17
    s_cmp_eq_u32 s5, {"s5" if opt.get("nog") else 0}
    s_cbranch_scc0 L_redo
    L_fin:
    """)
    if opt.get("stamps"):
        a("s_waitcnt vmcnt(0)")
        stamp()
        a(f"""
        s_lshl_b32 s5, s2, 4
        s_add_u32 s5, s5, s3
        s_lshl_b32 s5, s5, 6
        s_add_u32 s5, s5, {WS_DBG}
        s_mov_b64 exec, 0xffff
        v_lshlrev_b32 v2, 2, v1
        buffer_store_dword v127, v2, {sr(sWS)}, s5 offen
        """)
    a(f"""
    L_end:
    s_endpgm
    """)
    a(f"""
    L_redo:
    s_mov_b32 s61, 1
    s_mov_b32 s53, {NLOG2E}
    v_lshlrev_b32 v10, 2, v1
    v_mov_b32 v11, 0
    s_waitcnt vmcnt(0)
    s_barrier
    ds_write_b32 v10, v11 offset:{CN2}
    ds_write_b32 v10, v11 offset:{GC}
    s_waitcnt lgkmcnt(0)
    s_barrier
    s_branch L_restart
    L_again:
    v_lshlrev_b32 v10, 2, v1
    v_mov_b64 v[12:13], 0
    ds_write_b32 v10, v12 offset:{CN2}
    ds_write_b64 v12, v[12:13] offset:{GC}
    s_or_b64 s[90:91], s[44:45], s[46:47]
    """)
    for j in range(2, 8):
        a(f"s_or_b64 s[90:91], s[90:91], s[{44+2*j}:{45+2*j}]")
    a(f"""
    s_waitcnt lgkmcnt(0)
    s_barrier
    s_cbranch_scc1 L_round
    s_add_u32 s60, s60, 32
    s_min_u32 s60, s60, {SL}
    s_branch L_window
    L_slow:
    ds_read_b64 v[8:9], v{vAH}
    ds_read_b32 v{vGM}, v{vAM}
    s_waitcnt lgkmcnt(0)
    ds_read_b128 {vr(vOF,4)}, v8 offset:{OFF}
    ds_read_b128 {vr(vOF+4,4)}, v8 offset:{OFF+16}
    v_add_u32 v{vNA[0]}, v9, v{vN8}
    v_mad_u32_u24 v{vAE}, v{vGM}, v{vEM}, v{vEC}
    ds_read_b64 {vr(vBO+2,2)}, v{vNA[0]}
    ds_read_b64 {vr(vEA,2)}, v{vAE}
    v_add_u32 v{vAH}, 256, v{vAH}
    v_add_u32 v{vAM}, 256, v{vAM}
    s_waitcnt lgkmcnt(0)
    """)
    for r in range(8):
        gather(vGA, r)
    a("s_waitcnt vmcnt(0)")
    head(vGA)
    a(f"s_nop 3\nv_mov_b64 {Nn}, 0")
    for r in range(8):
        ex(r)
        a(f"s_nop 0\nv_pk_add_f32 {T(r)}, {T(r)}, 1.0 op_sel_hi:[1,0]")
        a(f"v_rcp_f32 v{vDD+2*r}, v{vDD+2*r}\nv_rcp_f32 v{vDD+2*r+1}, v{vDD+2*r+1}\ns_nop 0")
        a(f"v_pk_fma_f32 {Nn}, {H(r)}, {T(r)}, {Nn}")
    a("s_sub_u32 s41, s41, 1\ns_cmp_eq_u32 s41, 0")
    fin(vNA[0])
    a("s_cbranch_scc0 L_slow\ns_branch L_mdone")
    return a.text()


def kd(name, vgpr):
    return f""".p2align 6
.amdhsa_kernel {name}
  .amdhsa_next_free_vgpr {vgpr}
  .amdhsa_next_free_sgpr 96
  .amdhsa_accum_offset {vgpr}
  .amdhsa_group_segment_fixed_size 0
  .amdhsa_kernarg_size 80
  .amdhsa_user_sgpr_count 2
  .amdhsa_user_sgpr_kernarg_segment_ptr 1
  .amdhsa_system_sgpr_workgroup_id_x 1
.end_amdhsa_kernel
"""


def gen(opt):
    t = kernel(opt)
    ref = open(f"cdna_kernels/{NAME}.s.ref").read().split("\n")
    out = "\n".join(ref[:11]) + "\n"
    out += f"; @launch grid=(256,1,1) block=(1024,1,1) lds={LDS}\n"
    out += '.amdgcn_target "amdgcn-amd-amdhsa--gfx950"\n.text\n'
    nm = NAME + "_kernel"
    out += f".globl {nm}\n.p2align 8\n.type {nm},@function\n" + t
    out += '.section .rodata,"a"\n' + kd(nm, 128)
    return out


if __name__ == "__main__":
    opt = {}
    for x in sys.argv[2:]:
        k, _, v = x.partition("=")
        opt[k] = int(v) if v else 1
    open(sys.argv[1], "w").write(gen(opt))
```

```python
import sys

NAME = "gather_scatter__edge_featured_mpnn_egc__graph"
N, E = 12500, 800000
NPB = 49
SL = 3136
WS_TB = 0
WS_T = 4 << 20
WS_K = 5 << 20
WS_E = 9 << 20
WS_DBG = 32 << 20
WS_SIZE = 64 << 20
NLOG2E = "0xbfb8aa3b"
OOB = 0x40000000

CN2 = 0
GC, MORE, FL = 256, 260, 264
CNT, BASE = 512, 1536
NODE = 2560
GD = NODE + NPB * 768
OFF = GD + 6400
BS = 528
EA = OFF + 26112
LWA = EA + 51840
LX = LWA + 16384
LDS = LX + 8192
KEYS, EAIN, TBS, LWB = 40192, 53504, 80128, 96512
ZOFF = N * 8


class Asm:
    def __init__(self):
        self.l = []

    def __call__(self, s):
        for x in s.split("\n"):
            x = x.strip()
            if x:
                self.l.append(("" if x.endswith(":") else "    ") + x)

    def text(self):
        return "\n".join(self.l) + "\n"


def vr(a, n):
    return f"v[{a}:{a+n-1}]"


def sr(a, n=4):
    return f"s[{a}:{a+n-1}]"


def scan64(a, v):
    for sh in (1, 2, 4, 8):
        a(f"s_nop 1\nv_add_u32_dpp v{v}, v{v}, v{v} row_shr:{sh} row_mask:0xf bank_mask:0xf bound_ctrl:0")
    a(f"s_nop 1\nv_add_u32_dpp v{v}, v{v}, v{v} row_bcast:15 row_mask:0xa bank_mask:0xf")
    a(f"s_nop 1\nv_add_u32_dpp v{v}, v{v}, v{v} row_bcast:31 row_mask:0xc bank_mask:0xf")


def gemm_job(a, vXA, vWA, wofs, vA, vB, vD):
    a(f"v_xor_b32 v{vD}, 64, v{vXA}\nv_xor_b32 v{vD+1}, 64, v{vWA}")
    a(f"ds_read_b128 {vr(vA,4)}, v{vXA}\nds_read_b128 {vr(vA+4,4)}, v{vD}")
    idx = 0
    for M in range(2):
        for t in range(2):
            for s in range(2):
                for j2 in range(2):
                    a(f"ds_read_b64_tr_b16 {vr(vB+2*idx,2)}, v{vD+1 if t else vWA} offset:{wofs+M*8192+s*4096+j2*512}")
                    idx += 1
    for q in range(4):
        a(f"s_waitcnt lgkmcnt({12-4*q})")
        a(f"v_mfma_f32_16x16x32_bf16 {vr(vD+4*q,4)}, {vr(vA,4)}, {vr(vB+8*q,4)}, 0")
        a(f"v_mfma_f32_16x16x32_bf16 {vr(vD+4*q,4)}, {vr(vA+4,4)}, {vr(vB+8*q+4,4)}, {vr(vD+4*q,4)}")


def kernel(opt):
    a = Asm()
    for k, v in (("boost", 1), ("b1", 4), ("b0", 1), ("pf1", 0), ("pf2", 0), ("pf3", 16), ("pf4", 0), ("rpf", 1)):
        opt.setdefault(k, v)
    safe = opt.get("safe")
    XC = opt.get("xc", 1)
    PS = 8 if XC else 1
    nst = [0]

    def stamp():
        if opt.get("stamps"):
            a(f"s_memrealtime s[94:95]\ns_waitcnt lgkmcnt(0)\nv_writelane_b32 v127, s94, {nst[0]}")
            nst[0] += 1

    sDST, sSRC, sEA, sX, sWB, sWA, sG, sWS, sTB, sO, sDB = 8, 12, 16, 20, 24, 28, 32, 36, 64, 68, 72
    SC = "sc1"
    a(f"""
    {NAME}_kernel:
    s_cmp_ge_u32 s2, 256
    s_cbranch_scc1 L_end
    s_load_dwordx2 s[{sX}:{sX+1}], s[0:1], 0
    s_load_dwordx2 s[{sG}:{sG+1}], s[0:1], 48
    s_load_dwordx2 s[{sWB}:{sWB+1}], s[0:1], 40
    s_load_dwordx2 s[{sDST}:{sDST+1}], s[0:1], 24
    s_load_dwordx2 s[{sSRC}:{sSRC+1}], s[0:1], 16
    s_load_dwordx2 s[{sEA}:{sEA+1}], s[0:1], 8
    s_load_dwordx2 s[{sWA}:{sWA+1}], s[0:1], 32
    s_load_dwordx2 s[{sWS}:{sWS+1}], s[0:1], 72
    s_load_dwordx2 s[{sO}:{sO+1}], s[0:1], 56
    s_load_dwordx2 s[{sDB}:{sDB+1}], s[0:1], 64
    """)
    if opt.get("stamps"):
        a("s_memrealtime s[92:93]")
    a(f"""
    v_readfirstlane_b32 s3, v0
    """)
    if opt.get("codewarm"):
        a(f"""
        s_getpc_b64 s[90:91]
        v_lshlrev_b32 v54, 7, v0
        s_cmp_eq_u32 s3, 0
        s_cbranch_scc0 L_now0
        global_load_dword v54, v54, s[90:91]
        L_now0:
        """)
    a(f"""
    v_and_b32 v1, 63, v0
    v_lshlrev_b32 v2, 2, v0
    v_mov_b32 v40, 0
    ds_write_b32 v2, v40
    s_and_b32 s4, s2, 7
    s_lshl_b32 s4, s4, 5
    s_lshr_b32 s5, s2, 3
    s_add_u32 s4, s4, s5
    s_lshr_b32 s3, s3, 6
    """)
    for s, sz in ((sX, N * 128), (sWB, 16384), (sDST, E * 4), (sSRC, E * 4), (sEA, E * 8), (sWA, 8192),
                  (sG, 132 * 128), (sWS, WS_SIZE if opt.get('stamps') else 16 << 20), (sO, N * 128), (sDB, 256)):
        a(f"s_mov_b32 s{s+2}, {sz}\ns_mov_b32 s{s+3}, 0x20000")
    a(f"""
    s_mov_b32 s{sTB+2}, {WS_T}
    s_mov_b32 s{sTB+3}, {"0x20000" if safe else "0xc00000"}
    s_cmp_lt_u32 s2, 255
    s_movk_i32 s5, 784
    s_cselect_b32 s5, s5, 80
    v_cmp_gt_u32 s[44:45], s5, v0
    v_lshlrev_b32 v4, 4, v0
    v_lshlrev_b32 v7, 4, v1
    s_mul_i32 s6, s2, {SL*4}
    s_lshl_b32 s7, s3, 10
    v_cndmask_b32 v5, 2.0, v4, s[44:45]
    v_and_b32 v31, 0x70, v0
    v_xor_b32 v31, v31, v7
    v_and_b32 v32, 16, v0
    v_and_b32 v33, 64, v0
    v_lshl_or_b32 v32, v32, 1, v33
    v_xor_b32 v47, v32, v7
    s_mul_i32 s63, s4, {NPB*128}
    s_add_u32 s42, s63, s7
    s_add_u32 m0, s7, {LX}
    s_xor_b32 s43, s7, 8192
    s_cmp_lt_u32 s3, 7
    s_waitcnt lgkmcnt(0)
    s_cbranch_scc0 L_nox
    buffer_load_dwordx4 v31, {sr(sX)}, s42 offen lds
    L_nox:
    s_add_u32 m0, s7, {LWB}
    s_cmp_lt_u32 s3, 8
    s_cselect_b32 s{sWB}, s{sG}, s{sWB}
    s_cselect_b32 s{sWB+1}, s{sG+1}, s{sWB+1}
    s_cselect_b32 s{sWA}, s{sG}, s{sWA}
    s_cselect_b32 s{sWA+1}, s{sG+1}, s{sWA+1}
    buffer_load_dwordx4 v47, {sr(sWB)}, s43 offen lds
    buffer_load_dwordx4 v[8:11], v5, {sr(sDST)}, s6 offen
    """)
    if opt.get("stamps"):
        a("v_writelane_b32 v127, s92, 0\ns_memrealtime s[94:95]\ns_waitcnt lgkmcnt(0)\nv_writelane_b32 v127, s94, 13")
        nst[0] = 1
    vXA, vWA, vG4, vI = 124, 125, 126, 6
    vC = 120
    consts1 = f"""
    s_mov_b32 s{sTB}, s{sWS}
    s_or_b32 s{sTB+1}, s{sWS+1}, {0 if safe else 0x80000000}
    s_bfe_u32 s40, s3, 0x20001
    s_and_b32 s41, s3, 1
    v_and_b32 v{vI}, 15, v1
    v_lshrrev_b32 v{vG4}, 4, v1
    s_lshl_b32 s42, s40, 11
    s_add_u32 s42, s42, {LX}
    v_lshrrev_b32 v2, 1, v{vI}
    v_xor_b32 v2, v2, v{vG4}
    v_lshlrev_b32 v2, 4, v2
    v_lshl_add_u32 v{vXA}, v{vI}, 7, v2
    v_add_u32 v{vXA}, s42, v{vXA}
    v_lshrrev_b32 v{vWA}, 2, v{vI}
    v_lshl_add_u32 v{vWA}, v{vG4}, 3, v{vWA}
    v_bfe_u32 v2, v1, 3, 2
    v_xor_b32 v2, s41, v2
    v_lshl_add_u32 v{vWA}, v{vWA}, 2, v2
    v_and_b32 v2, 3, v1
    v_lshl_add_u32 v{vWA}, v{vWA}, 2, v2
    v_lshlrev_b32 v{vWA}, 3, v{vWA}
    v_add_u32 v{vWA}, {LWB}, v{vWA}
    s_lshl_b32 s42, s40, 12
    s_lshl_b32 s43, s41, 6
    s_add_u32 s42, s42, s43
    s_add_u32 s42, s42, {TBS}
    v_lshlrev_b32 v2, 10, v{vG4}
    v_lshl_add_u32 v2, v{vI}, 2, v2
    v_add_u32 v2, s42, v2
    v_lshlrev_b32 v28, 16, v0
    v_mov_b32 v3, 4
    v_mov_b32 v29, 0x21800000
    v_subrev_u32 v30, 3072, v4
    s_movk_i32 s43, {784*16}
    v_cmp_gt_u32 vcc, s43, v30
    s_mov_b32 s52, -{NPB}
    s_mov_b32 s53, {NLOG2E}
    v_cndmask_b32 v30, 2.0, v30, vcc
    s_movk_i32 s54, 0x4000
    s_mov_b32 s55, 0x8000
    s_mov_b32 s56, 0xc000
    s_mov_b32 s61, 0
    """
    if opt.get("c1", 1):
        a(consts1)
    a(f"""
    s_lshl_b32 s79, s2, 10
    s_add_u32 s79, s79, {WS_T}
    s_lshl_b32 s42, s7, 4
    s_add_u32 s42, s42, s79
    s_cmp_lt_u32 s2, 16
    s_cselect_b32 s42, s42, {OOB}
    v_add_u32 v33, s42, v7
    v_mov_b32 v41, 0
    v_mov_b64 v[42:43], 0
    s_barrier
    buffer_store_dwordx4 v[40:43], v33, {sr(sWS)}, 0 offen {SC}
    buffer_load_dwordx4 v[12:15], v5, {sr(sSRC)}, s6 offen
    """)
    EM = opt.get("em", 1)

    def ea_dma():
        a(f"""
        s_add_u32 m0, s7, {EAIN}
        s_lshl_b32 s42, s6, 1
        s_add_u32 s42, s42, s7
        buffer_load_dwordx4 v7, {sr(sEA)}, s42 offen lds
        s_cmp_lt_u32 s3, 9
        s_cbranch_scc0 L_noe
        s_add_u32 m0, s7, {EAIN+16384}
        s_add_u32 s42, s42, 16384
        s_nop 0
        buffer_load_dwordx4 v7, {sr(sEA)}, s42 offen lds
        L_noe:
        """)
    if EM == 0:
        ea_dma()
    if EM == 2:
        a(f"""
        s_sub_u32 s43, s7, {13*1024}
        s_cbranch_scc1 L_noe
        s_lshl_b32 s42, s6, 1
        L_eal:
        s_add_u32 m0, s43, {EAIN}
        s_add_u32 s5, s42, s43
        s_add_u32 s43, s43, 3072
        buffer_load_dwordx4 v7, {sr(sEA)}, s5 offen lds
        s_cmp_lt_u32 s43, {25*1024}
        s_cbranch_scc1 L_eal
        L_noe:
        """)
    if not opt.get("c1", 1):
        a(consts1)
    vD, vS, vB, vR, vL = 8, 12, 16, 20, 24
    a(f"""
    s_cmp_lt_u32 s3, {13 if EM == 2 else 9}
    s_cbranch_scc{0 if EM == 2 else 1} L_w1
    s_waitcnt vmcnt({(3, 2, 2)[EM]})
    L_w1:
    s_waitcnt vmcnt({(4, 2, 10)[EM]})
    """)
    if opt.get("stamps"):
        a("s_memrealtime s[94:95]\ns_waitcnt lgkmcnt(0)\nv_writelane_b32 v127, s94, 5")
    a(f"""
    s_mov_b64 exec, s[44:45]
    s_cbranch_execz L_norank
    """)
    for k in range(4):
        a(f"""
        v_mul_u32_u24 v{vB+k}, 21400, v{vD+k}
        v_lshrrev_b32 v{vL+k}, 20, v{vB+k}
        v_lshlrev_b32 v{vB+k}, 2, v{vL+k}
        ds_add_rtn_u32 v{vR+k}, v{vB+k}, v3 offset:{CNT}
        """)
    a(f"""
    L_norank:
    s_mov_b64 exec, -1
    """)
    if EM == 1:
        ea_dma()
    a(f"""
    s_waitcnt lgkmcnt(0)
    s_barrier
    """)
    stamp()
    vA, vW, vM = 64, 72, 104
    sd = "dst_sel:DWORD dst_unused:UNUSED_PAD src0_sel:DWORD"
    a(f"""
    s_cmp_eq_u32 s3, 0
    s_cbranch_scc0 L_noscan
    ds_read_b128 v[32:35], v7 offset:{CNT}
    s_waitcnt lgkmcnt(0)
    v_add_u32 v44, v32, v33
    v_add_u32 v45, v44, v34
    v_add_u32 v46, v45, v35
    v_mov_b32 v36, v46
    """)
    scan64(a, 36)
    a(f"""
    v_sub_u32 v36, v36, v46
    v_add_u32 v36, 0x40000, v36
    v_add_u32 v37, v36, v32
    v_add_u32 v38, v36, v44
    v_add_u32 v39, v36, v45
    v_lshl_add_u32 v36, v32, 16, v36
    v_lshl_add_u32 v37, v33, 16, v37
    v_lshl_add_u32 v38, v34, 16, v38
    v_lshl_add_u32 v39, v35, 16, v39
    ds_write_b128 v7, v[36:39] offset:{BASE}
    L_noscan:
    s_cmp_lt_u32 s3, 8
    s_cbranch_scc1 L_nojob1
    """)
    gemm_job(a, vXA, vWA, 0, vA, vW, vM)
    a("s_nop 1")
    for r in range(4):
        a(f"v_fma_f32 v{vM+r}, v{vM+r}, s53, v29")
    for r in range(4):
        a(f"v_fma_f32 v{vM+4+r}, v{vM+4+r}, s53, v29")
    for r in range(4):
        a(f"v_cvt_pk_bf16_f32 v{64+r}, v{vM+8+r}, v{vM+8+r}")
    for r in range(4):
        a(f"v_add_f32 v{vM+12+r}, 0, v{vM+12+r}")
    for r in range(4):
        a(f"v_sub_u32_sdwa v{vM+r}, v{vM+r}, v{64+r} clamp {sd} src1_sel:WORD_0")
    for r in range(4):
        a(f"v_cvt_pk_bf16_f32 v{vM+r}, v{vM+8+r}, v{vM+r}")
    for r in range(4):
        a(f"v_sub_u32_sdwa v{vM+12+r}, v{vM+12+r}, v{vM+r} clamp {sd} src1_sel:WORD_1")
    for r in range(4):
        a(f"v_cvt_pk_bf16_f32 v{64+r}, v{vM+12+r}, v{vM+12+r}")
    for r in range(4):
        a(f"v_sub_u32_sdwa v{vM+4+r}, v{vM+4+r}, v{64+r} clamp {sd} src1_sel:WORD_0")
    for r in range(4):
        a(f"v_cvt_pk_bf16_f32 v{vM+4+r}, v{vM+12+r}, v{vM+4+r}")
        a(f"ds_write2_b32 v2, v{vM+r}, v{vM+4+r} offset0:{64*r} offset1:{64*r+32}")
    a("L_nojob1:")
    for k in range(4):
        a(f"v_mad_i32_i24 v{vL+k}, v{vL+k}, s52, v{vD+k}\nv_lshl_or_b32 v{vL+k}, v{vL+k}, 26, v28")
    a(f"""
    v_add_u32 v31, {TBS - 3072}, v4
    s_cmp_lt_u32 s3, {13 if EM == 2 else 9}
    s_cbranch_scc{0 if EM == 2 else 1} L_w2
    s_waitcnt vmcnt({0 if EM == 2 else 1})
    L_w2:
    s_waitcnt vmcnt({8 if EM == 2 else 2})
    v_or_b32 v{vS}, v{vS}, v{vL}
    v_or3_b32 v{vS+1}, v{vS+1}, v{vL+1}, s54
    v_or3_b32 v{vS+2}, v{vS+2}, v{vL+2}, s55
    v_or3_b32 v{vS+3}, v{vS+3}, v{vL+3}, s56
    s_add_u32 m0, s7, {LWA}
    s_and_b32 s43, s7, 8191
    buffer_load_dwordx4 v47, {sr(sWA)}, s43 offen lds
    v_lshlrev_b32 v47, 1, v1
    """)
    for k in range(4):
        a(f"buffer_load_ushort v{vC+k}, v47, {sr(sG)}, s54 offen offset:{128*k}")
    a(f"""
    s_lshl_b32 s42, s63, 1
    s_waitcnt lgkmcnt(0)
    s_barrier
    """)
    stamp()
    a(f"ds_read_b128 v[32:35], v31\ns_mov_b64 exec, s[44:45]\ns_cbranch_execz L_nosc")
    for k in range(4):
        a(f"ds_read_u16 v{vB+k}, v{vB+k} offset:{BASE}")
    for k in range(4):
        a(f"""
        s_waitcnt lgkmcnt(3)
        v_add_u32 v{vB+k}, v{vB+k}, v{vR+k}
        ds_write_b32 v{vB+k}, v{vS+k} offset:{KEYS}
        """)
    vBO, vEA = 60, 56
    a(f"""
    L_nosc:
    s_mov_b64 exec, -1
    v_lshlrev_b32 v2, 3, v0
    s_cmp_eq_u32 s3, 1
    s_cbranch_scc1 L_sig
    s_waitcnt lgkmcnt(0)
    buffer_store_dwordx4 v[32:35], v30, {sr(sWS)}, s42 offen {SC}
    s_branch L_nosig
    L_sig:
    s_lshl_b32 s43, s2, 4
    v_lshl_add_u32 v31, v1, 10, s43
    buffer_store_dword v3, v31, {sr(sDB)}, 0 offen {SC}
    s_waitcnt lgkmcnt(0)
    L_nosig:
    s_mul_i32 s42, s2, {SL*8}
    s_add_u32 s42, s42, {WS_E}
    s_add_u32 s43, s6, {WS_K}
    s_add_u32 s5, s42, 16384
    s_barrier
    """)
    stamp()
    a(f"""
    ds_read_b128 v[20:23], v4 offset:{KEYS-3072}
    ds_read_b64 v[8:9], v2 offset:{KEYS}
    ds_read_b64 v[10:11], v2 offset:{KEYS+8192}
    v_cmp_gt_u32 vcc, {1568-1024}, v0
    s_waitcnt lgkmcnt(2)
    buffer_store_dwordx4 v[20:23], v30, {sr(sWS)}, s43 offen {SC}
    s_waitcnt lgkmcnt(0)
    """)
    for k in range(4):
        a(f"v_lshrrev_b32 v{8+k}, 11, v{8+k}\nv_and_b32 v{8+k}, 0x7ff8, v{8+k}")
    a("s_waitcnt vmcnt(2)\ns_barrier")
    stamp()
    a(f"""
    ds_read_b64 v[12:13], v8 offset:{EAIN}
    ds_read_b64 v[14:15], v9 offset:{EAIN}
    s_and_saveexec_b64 s[48:49], vcc
    s_cbranch_execz L_noe2
    ds_read_b64 v[16:17], v10 offset:{EAIN}
    ds_read_b64 v[18:19], v11 offset:{EAIN}
    s_waitcnt lgkmcnt(0)
    buffer_store_dwordx4 v[16:19], v4, {sr(sWS)}, s5 offen {SC}
    L_noe2:
    s_mov_b64 exec, -1
    s_waitcnt lgkmcnt(0)
    buffer_store_dwordx4 v[12:15], v4, {sr(sWS)}, s42 offen {SC}
    """)
    vAH, vAM, vEM, vEC, vN8 = 48, 49, 50, 51, 52
    vTA = 53
    for k in range(4):
        a(f"v_lshlrev_b32 v{vC+k}, 16, v{vC+k}\nv_mul_f32 v{vC+k}, s53, v{vC+k}")
    a(f"""
    v_cvt_pk_bf16_f32 v{vBO}, v{vC}, v{vC+1}
    v_cvt_pk_bf16_f32 v{vBO+1}, v{vC+2}, v{vC+3}
    v_lshrrev_b32 v24, 5, v1
    v_bfe_u32 v25, v1, 2, 1
    v_and_b32 v26, 1, v1
    v_and_b32 v{vN8}, 31, v1
    v_cmp_eq_u32 vcc, v25, v24
    v_mov_b32 v27, 0x3f803f80
    v_lshrrev_b32 v28, 3, v{vN8}
    v_cndmask_b32 v27, 0, v27, vcc
    v_cmp_eq_u32 vcc, 0, v26
    v_bfe_u32 v29, v1, 1, 1
    v_lshl_add_u32 v28, v28, 1, v29
    v_cndmask_b32 v{vEA+2}, 0, v27, vcc
    v_cndmask_b32 v{vEA+3}, v27, 0, vcc
    v_cmp_eq_u32 vcc, v26, v24
    v_lshlrev_b32 v28, 3, v28
    v_add_u32 v28, {EA}, v28
    v_mov_b32 v29, {EA + NPB*BS*2}
    v_cndmask_b32 v{vEC}, v29, v28, vcc
    v_cndmask_b32 v{vEM}, 0, 2, vcc
    v_lshlrev_b32 v{vN8}, 3, v{vN8}
    s_lshl_b32 s5, s3, 4
    s_add_u32 s5, s5, {GD}
    v_lshl_add_u32 v120, v24, 3, s5
    v_lshl_add_u32 v121, v25, 3, s5
    s_and_b32 s43, s3, 7
    s_lshr_b32 s5, s3, 3
    s_lshl_b32 s5, s5, 7
    s_add_u32 s43, s43, s5
    {"s_lshl_b32 s43, s3, 4" if not XC else ""}
    s_lshl_b32 s5, s43, 10
    s_lshl_b32 s42, s4, 2
    s_add_u32 s5, s5, s42
    s_add_u32 s5, s5, {WS_T}
    v_lshl_add_u32 v{vTA}, v{vG4}, {13 if XC else 10}, s5
    s_mov_b32 s76, {0x1000*PS}
    s_mov_b32 s77, {0x2000*PS}
    s_mov_b32 s78, {0x3000*PS}
    s_mul_i32 s5, s43, {SL*4}
    s_add_u32 s80, s5, {WS_K}
    s_lshl_b32 s5, s5, 1
    s_add_u32 s84, s5, {WS_E}
    """)
    for u in range(1, 4):
        a(f"s_add_u32 s{80+u}, s80, {u*4*SL*4*PS}\ns_add_u32 s{84+u}, s84, {u*4*SL*8*PS}")
    a(f"""
    s_lshr_b32 s5, s2, 3
    s_lshl_b32 s5, s5, 4
    s_add_u32 s5, s5, s3
    s_mul_i32 s88, s5, {49*128}
    v_lshlrev_b32 v54, 7, v1
    s_mov_b32 s62, 0
    s_and_b32 s24, s2, 0xf8
    s_lshr_b32 s25, s3, 1
    s_add_u32 s24, s24, s25
    s_mul_i32 s24, s24, {SL*4}
    s_and_b32 s25, s2, 7
    s_mul_i32 s25, s25, 1574
    s_add_u32 s24, s24, s25
    s_lshl_b32 s25, s24, 1
    s_and_b32 s26, s3, 1
    s_mul_i32 s27, s26, {7*128}
    s_add_u32 s24, s24, s27
    s_add_u32 s24, s24, {WS_K}
    s_andn2_b32 s24, s24, 127
    s_mul_i32 s27, s26, {13*128}
    s_add_u32 s25, s25, s27
    s_add_u32 s25, s25, {WS_E}
    s_andn2_b32 s25, s25, 127
    """)
    PF1 = opt.get("pf1", 20)
    early = opt.get("pfpos", 0) == 1

    def pf(lo, hi):
        m = ((1 << hi) - 1) & ~((1 << lo) - 1)
        if m:
            a(f"""
            s_mov_b32 exec_lo, {hex(m & 0xffffffff)}
            s_mov_b32 exec_hi, {hex(m >> 32)}
            buffer_load_dword v55, v54, {sr(sWS)}, s88 offen {SC}
            s_mov_b64 exec, -1
            """)
        return 1 if m else 0
    a(f"""
    L_restart:
    s_mov_b32 s60, 0
    s_cmp_lt_u32 s3, 8
    s_cbranch_scc1 L_nojob2
    """)
    gemm_job(a, vXA, vWA, LWA - LWB, vA, vW, vM)
    a(f"""
    s_bfe_u32 s40, s3, 0x20001
    s_and_b32 s41, s3, 1
    s_mul_i32 s42, s40, {16*768}
    s_lshl_b32 s43, s41, 7
    s_add_u32 s42, s42, s43
    v_mul_u32_u24 v8, {4*768}, v{vG4}
    v_lshl_add_u32 v8, v{vI}, 3, v8
    v_add_u32 v8, s42, v8
    s_cmp_eq_u32 s40, 3
    s_cselect_b64 exec, 0xffff, -1
    """)
    for r in range(4):
        t = 64 + 8 * r
        a(f"""
        v_mul_f32 v{vM+r}, s53, v{vM+r}
        v_mul_f32 v{vM+4+r}, s53, v{vM+4+r}
        v_and_b32 v{t}, 0xffff0000, v{vM+r}
        v_and_b32 v{t+1}, 0xffff0000, v{vM+4+r}
        v_sub_f32 v{vM+r}, v{vM+r}, v{t}
        v_sub_f32 v{vM+4+r}, v{vM+4+r}, v{t+1}
        v_cvt_pk_bf16_f32 v{t}, v{t}, v{vM+r}
        v_cvt_pk_bf16_f32 v{t+1}, v{t+1}, v{vM+4+r}
        v_cvt_f64_f32 {vr(t+2,2)}, v{vM+8+r}
        v_cvt_f64_f32 {vr(t+4,2)}, v{vM+12+r}
        ds_write_b64 v8, {vr(t,2)} offset:{NODE+768*r}
        ds_write_b64 v8, {vr(t+2,2)} offset:{NODE+768*r+256}
        ds_write_b64 v8, {vr(t+4,2)} offset:{NODE+768*r+512}
        """)
        if r == 0:
            a("s_cbranch_scc1 L_nojob2")
    vT = 2

    def prefill(tag):
        a(f"""
        v_mov_b32 v8, {NPB*BS}
        v_mov_b32 v9, {NODE}
        v_lshlrev_b32 v10, 3, v0
        v_cmp_gt_u32 vcc, 800, v0
        s_and_saveexec_b64 s[42:43], vcc
        ds_write_b64 v10, v[8:9] offset:{GD}
        v_cmp_gt_u32 vcc, 8, v0
        s_and_b64 exec, exec, vcc
        s_cbranch_execz L_nodum{tag}
        v_mov_b32 v8, {ZOFF}
        v_lshlrev_b32 v9, 2, v0
        v_add_u32 v9, {OFF + NPB*BS}, v9
        ds_write_b32 v9, v8
        v_mov_b64 v[8:9], 0
        v_add_u32 v10, {EA + NPB*BS*2}, v10
        ds_write_b64 v10, v[8:9]
        L_nodum{tag}:
        s_mov_b64 exec, -1
        v_mov_b32 v8, 4
        v_mov_b32 v9, 0xfc
        s_lshl_b32 s5, s60, 18
        s_add_u32 s5, s5, {(128+8)<<16}
        s_mov_b32 s43, {EA}
        s_movk_i32 s42, 0x200
        s_movk_i32 s89, {BS//4}
        v_add_u32 v22, s60, v{vI}
        v_lshlrev_b32 v20, 18, v22
        v_add_u32 v20, {8<<16}, v20
        v_add_u32 v21, {64<<16}, v20
        v_mul_u32_u24 v23, {SL*PS}, v{vG4}
        v_add_lshl_u32 v22, v22, v23, 2
        """)
    a(f"""
    L_nojob2:
    s_mov_b64 exec, -1
    s_cmp_eq_u32 s61, 0
    s_cbranch_scc0 L_pre
    s_cmp_eq_u32 s3, 0
    s_cbranch_scc0 L_not
    v_lshlrev_b32 v24, 4, v{vI}
    L_dbg:
    buffer_load_dword v25, v24, {sr(sDB)}, 0 offen {SC}
    s_add_u32 s62, s62, 1
    s_bitcmp1_b32 s62, 20
    s_cbranch_scc1 L_end
    s_waitcnt vmcnt(0)
    v_cmp_eq_u32 vcc, 0, v25
    s_cbranch_vccnz L_dbg
    L_not:
    s_waitcnt vmcnt(0)
    s_barrier
    """)
    nst[0] += 1
    stamp()
    a(f"""
    s_cmp_eq_u32 s3, 0
    s_cbranch_scc0 L_not2
    buffer_store_dwordx4 v[36:39], v7, {sr(sWS)}, s79 offen {SC}
    L_not2:
    """)
    RPF = opt.get("rpf", 0)
    if RPF:
        a(f"""
        s_mov_b64 exec, 0x7f
        buffer_load_dword v55, v54, {sr(sWS)}, s24 offen {SC}
        s_mov_b64 exec, -1
        """)
    pf(0, PF1)
    a("L_pre:")
    prefill("a")
    if RPF in (1, 2):
        a(f"""
        {"s_waitcnt vmcnt(0)" if RPF == 1 else ""}
        s_mov_b64 exec, 0x1fff
        buffer_load_dword v55, v54, {sr(sWS)}, s25 offen {SC}
        s_mov_b64 exec, -1
        """)
    a(f"""
    L_poll:
    buffer_load_dword v{vT}, v{vTA}, {sr(sWS)}, 0 offen {SC}
    buffer_load_dword v{vT+1}, v{vTA}, {sr(sWS)}, s76 offen {SC}
    buffer_load_dword v{vT+2}, v{vTA}, {sr(sWS)}, s77 offen {SC}
    buffer_load_dword v{vT+3}, v{vTA}, {sr(sWS)}, s78 offen {SC}
    s_add_u32 s62, s62, 1
    s_bitcmp1_b32 s62, 20
    s_cbranch_scc1 L_end
    s_waitcnt vmcnt(0)
    v_min_u32 v10, v{vT}, v{vT+1}
    v_min3_u32 v10, v10, v{vT+2}, v{vT+3}
    v_cmp_eq_u32 vcc, 0, v10
    s_cbranch_vccnz L_poll
    {"s_barrier" if opt.get("pbar") else ""}
    """)
    stamp()
    a(f"""
    L_window:
    """)
    for u in range(4):
        a(f"v_cmp_le_u32 s[{44+2*u}:{45+2*u}], v20, v{vT+u}\nv_cmp_le_u32 s[{52+2*u}:{53+2*u}], v21, v{vT+u}")
    vRk, vRe, vRa, vRp = 64, 80, 96, 72
    a(f"""
    L_round:
    """)
    for u in range(4):
        a(f"v_add_u32_sdwa v{12+u}, v22, v{vT+u} {sd} src1_sel:WORD_0\nv_lshlrev_b32 v{16+u}, 1, v{12+u}")
    for u in range(4):
        a(f"""
        s_mov_b64 exec, s[{52+2*u}:{53+2*u}]
        s_cbranch_execz L_n2_{u}
        buffer_load_dword v{vRk+4+u}, v{12+u}, {sr(sWS)}, s{80+u} offen offset:64 {SC}
        buffer_load_dwordx2 {vr(vRe+8+2*u,2)}, v{16+u}, {sr(sWS)}, s{84+u} offen offset:128 {SC}
        L_n2_{u}:
        """)
    a("s_mov_b64 exec, -1")
    MK = opt.get("mk", 1)
    for u in range(4):
        if MK:
            a(f"s_or_b64 exec, s[{44+2*u}:{45+2*u}], 1")
        a(f"buffer_load_dword v{vRk+u}, v{12+u}, {sr(sWS)}, s{80+u} offen {SC}")
        if MK == 2:
            a(f"buffer_load_dwordx2 {vr(vRe+2*u,2)}, v{16+u}, {sr(sWS)}, s{84+u} offen {SC}")
    if opt.get("kbar"):
        a("s_barrier")
    for u in range(4 if MK < 2 else 0):
        if MK:
            a(f"s_or_b64 exec, s[{44+2*u}:{45+2*u}], 1")
        a(f"buffer_load_dwordx2 {vr(vRe+2*u,2)}, v{16+u}, {sr(sWS)}, s{84+u} offen {SC}")
    a("s_mov_b64 exec, -1")
    PF2 = opt.get("pf2", 49)
    npf = pf(PF1, PF2)
    a(f"""
    v_max_u32 v10, v{vT}, v{vT+1}
    v_max3_u32 v10, v10, v{vT+2}, v{vT+3}
    v_cmp_le_u32 s[90:91], s5, v10
    """)
    order = [4, 5, 6, 7, 0, 1, 2, 3]

    def slot_rank(j):
        a(f"""
        v_and_b32_sdwa v{vRa+j}, v{vRk+j}, v9 dst_sel:DWORD dst_unused:UNUSED_PAD src0_sel:BYTE_3 src1_sel:DWORD
        ds_add_rtn_u32 v{vRp+j}, v{vRa+j}, v8 offset:{CN2}
        v_lshlrev_b32 v{vRk+j}, 18, v{vRk+j}
        v_lshrrev_b32 v{vRk+j}, 15, v{vRk+j}
        """)

    def slot_put(j):
        m = f"s[{44+2*j}:{45+2*j}]"
        a(f"""
        v_cmpx_gt_u32 vcc, s42, v{vRp+j}
        v_mad_u32_u24 v{vRp+j}, v{vRa+j}, s89, v{vRp+j}
        s_andn2_b64 {m}, {m}, exec
        ds_write_b32 v{vRp+j}, v{vRk+j} offset:{OFF}
        v_lshl_add_u32 v{vRa+j}, v{vRp+j}, 1, s43
        s_or_b64 s[90:91], s[90:91], {m}
        """)

    for u in range(4):
        a(f"s_mov_b64 exec, s[{44+2*u}:{45+2*u}]\ns_waitcnt vmcnt({(7-u if MK < 2 else 7-2*u)+npf})")
        slot_rank(u)
    for u in range(4):
        a(f"s_mov_b64 exec, s[{52+2*u}:{53+2*u}]\ns_cbranch_execz L_r2_{u}")
        slot_rank(4 + u)
        a(f"L_r2_{u}:")
    a("s_waitcnt lgkmcnt(0)")
    for u in range(4):
        a(f"s_mov_b64 exec, s[{52+2*u}:{53+2*u}]\ns_cbranch_execz L_p2_{u}")
        slot_put(4 + u)
        if opt.get("eal"):
            a(f"L_p2_{u}:\ns_mov_b64 s[{16+2*u}:{17+2*u}], exec")
        else:
            a(f"ds_write_b64 v{vRa+4+u}, {vr(vRe+8+2*u,2)}\nL_p2_{u}:")
    for u in range(4):
        a(f"s_mov_b64 exec, s[{44+2*u}:{45+2*u}]")
        slot_put(u)
        if opt.get("eal"):
            a(f"s_mov_b64 s[{8+2*u}:{9+2*u}], exec")
        else:
            a(f"s_waitcnt vmcnt({3-u+npf})\nds_write_b64 v{vRa+u}, {vr(vRe+2*u,2)}")
    a(f"""
    s_mov_b64 exec, -1
    s_cbranch_scc0 L_nomore
    ds_write_b32 v8, v8 offset:{MORE-4}
    L_nomore:
    v_lshlrev_b32 v10, 2, v1
    s_lshl_b32 s5, s3, 5
    v_mul_u32_u24 v16, {BS}, v1
    v_add_u32 v12, s5, v16
    v_mul_u32_u24 v13, 768, v1
    v_add_u32 v13, {NODE}, v13
    v_mov_b32 v{vAH}, v120
    v_mov_b32 v{vAM}, v121
    """)
    npf3 = pf(max(PF1, PF2), opt.get("pf3", 0))
    a("s_waitcnt lgkmcnt(0)\ns_barrier")
    stamp()
    npf3 += pf(max(PF1, PF2, opt.get("pf3", 0)), opt.get("pf4", 0))
    a(f"""
    ds_read_b32 v11, v10 offset:{CN2}
    s_waitcnt lgkmcnt(0)
    v_min_u32 v11, s42, v11
    v_cmp_lt_u32 vcc, s5, v11
    s_bcnt1_i32_b64 s6, vcc
    s_cbranch_scc0 L_nolev
    s_lshl_b32 s6, s6, 3
    v_mov_b32 v14, s6
    s_mov_b64 exec, 1
    ds_add_rtn_u32 v14, v10, v14 offset:{GC}
    s_mov_b64 exec, -1
    v_mbcnt_lo_u32_b32 v15, vcc_lo, 0
    v_mbcnt_hi_u32_b32 v15, vcc_hi, v15
    s_waitcnt lgkmcnt(0)
    v_readfirstlane_b32 s6, v14
    s_mov_b64 exec, vcc
    s_nop 0
    v_lshl_add_u32 v15, v15, 3, s6
    ds_write_b64 v15, v[12:13] offset:{GD}
    s_mov_b64 exec, -1
    L_nolev:
    s_sub_u32 s6, s3, 9
    s_cbranch_scc1 L_nopad
    s_lshl_b32 s6, s6, 2
    v_add_u32 v14, 28, v11
    v_and_b32 v14, 0xffffffe0, v14
    v_add_u32 v11, s6, v11
    v_cmpx_lt_u32 vcc, v11, v14
    v_add_u32 v11, v16, v11
    v_mov_b32 v14, {ZOFF}
    ds_write_b32 v11, v14 offset:{OFF}
    v_lshl_add_u32 v11, v11, 1, s43
    v_mov_b64 v[14:15], 0
    ds_write_b64 v11, v[14:15]
    s_mov_b64 exec, -1
    L_nopad:
    v_mov_b32 v10, 0
    """)
    for u in range(4 if opt.get("eal") else 0):
        a(f"s_mov_b64 exec, s[{8+2*u}:{9+2*u}]\ns_waitcnt vmcnt({3-u+npf+npf3})\nds_write_b64 v{vRa+u}, {vr(vRe+2*u,2)}")
        if u == 0:
            for w in range(4, 8):
                a(f"s_mov_b64 exec, s[{8+2*w}:{9+2*w}]\nds_write_b64 v{vRa+w}, {vr(vRe+2*w,2)}")
    a("s_mov_b64 exec, -1\ns_waitcnt lgkmcnt(0)\ns_barrier")
    stamp()
    if opt.get("stamps"):
        a("s_memtime s[94:95]\ns_waitcnt lgkmcnt(0)\nv_writelane_b32 v127, s94, 14")
    vGA, vGB, vH, vDD, vOF = 64, 80, 96, 104 + 0, 16
    vH, vDD = 32, 96
    vNA = (24, 25)
    vG2, vGM, vAE = 26, 28, 29
    vP, vNn, vRc, vF, vSS = 8, 10, 12, 112, 14
    vL4 = 30

    def gather(g, r, ofs=vOF):
        if opt.get("nog"):
            return
        if safe:
            a(f"v_lshl_add_u32 v{ofs+r}, v{ofs+r}, 5, v{vL4}")
        a(f"buffer_load_dword v{g+2*r}, v{ofs+r}, {sr(sTB)}, 0 offen")
        a(f"buffer_load_dword v{g+2*r+1}, v{ofs+r}, {sr(sTB)}, 0 offen offset:{128 if safe else 4}")

    a(f"""
    ds_read_b32 v11, v10 offset:{GC}
    ds_read_b64 v[8:9], v{vAH}
    ds_read_b32 v13, v{vAM}
    ds_read_b64 {vr(vG2,2)}, v{vAH} offset:256
    ds_read_b32 v{vGM}, v{vAM} offset:256
    v_lshrrev_b32 v{vL4}, 1, v{vN8}
    v_mov_b64 {vr(vSS,2)}, 0
    s_waitcnt lgkmcnt(3)
    ds_read_b128 {vr(vOF,4)}, v8 offset:{OFF}
    ds_read_b128 {vr(vOF+4,4)}, v8 offset:{OFF+16}
    v_readfirstlane_b32 s40, v11
    v_add_u32 v{vNA[0]}, v9, v{vN8}
    s_add_u32 s40, s40, 8
    s_lshr_b32 s40, s40, 4
    s_add_u32 s41, s40, 15
    s_sub_u32 s41, s41, s3
    s_lshr_b32 s41, s41, 4
    s_waitcnt lgkmcnt(0)
    """)
    for r in range(8):
        gather(vGA, r)
    a(f"""
    v_mad_u32_u24 v{vAE}, v13, v{vEM}, v{vEC}
    ds_read_b64 {vr(vBO+2,2)}, v{vNA[0]}
    ds_read_b64 {vr(vEA,2)}, v{vAE}
    ds_read_b128 {vr(vOF,4)}, v{vG2} offset:{OFF}
    ds_read_b128 {vr(vOF+4,4)}, v{vG2} offset:{OFF+16}
    s_cmp_eq_u32 s41, 0
    s_cbranch_scc1 L_mdone
    s_cmp_eq_u32 s61, 0
    s_cbranch_scc0 L_slow
    s_mov_b32 s40, {sum(1 << opt[k] for k in ("t2", "t1", "t0") if k in opt)}
    s_cmp_lt_u32 s41, 2
    s_waitcnt lgkmcnt(0)
    s_cbranch_scc1 L_tail0
    {"s_setprio 3" if "t0" in opt else ""}
    """)

    T = lambda r: vr(vDD + 2 * r, 2)
    H = lambda r: vr(vH + 2 * r, 2)
    P, Nn = vr(vP, 2), vr(vNn, 2)

    def ex(r):
        if opt.get("noex"):
            return
        a(f"v_exp_f32 v{vDD+2*r}, v{vDD+2*r}\nv_exp_f32 v{vDD+2*r+1}, v{vDD+2*r+1}")

    def head(g):
        a(f"v_mfma_f32_32x32x16_bf16 {vr(vDD,16)}, {vr(vEA,4)}, {vr(vBO,4)}, {vr(g,16)}")
        for r in range(8):
            a(f"v_lshlrev_b64 {vr(vH+2*r,2)}, 16, {vr(g+2*r,2)}")

    def fin(na):
        a(f"""
        v_cvt_f64_f32 {vr(vF,2)}, v{vNn}
        v_cvt_f64_f32 {vr(vF+2,2)}, v{vNn+1}
        ds_add_f64 v{na}, {vr(vF,2)} offset:256
        ds_add_f64 v{na}, {vr(vF+2,2)} offset:512
        """)

    sched = {0: [-1] * 8, 1: [-1, -1, 0, 0, 1, 1, 2, 2], 2: [0, 1, 2, 3, 4, 5, 6, 7], 3: [-1, -1, -1, -1, 0, 1, 2, 3]}[opt.get("gs", 0)]

    thr = [opt[k] for k in ("t2", "t1", "t0") if k in opt]

    def unit(par, tail):
        g = vGA
        na, nb = vNA[par], vNA[1 - par]

        def slot(k):
            if tail:
                return
            for r in range(8):
                if sched[r] == k:
                    gather(g, r)
            if k == max(max(sched), 2):
                a(f"""
                s_waitcnt lgkmcnt(1)
                ds_read_b128 {vr(vOF,4)}, v{vG2} offset:{OFF}
                ds_read_b128 {vr(vOF+4,4)}, v{vG2} offset:{OFF+16}
                """)
        boost = opt.get("boost")

        def unboost():
            if tail:
                a("s_setprio 0")
            else:
                a(f"s_setprio 2\ns_cmp_le_u32 s41, {opt['b1']}\ns_cbranch_scc1 L_bo{par}\nL_bob{par}:")
        if boost:
            a("s_setprio 3")
        a("s_waitcnt vmcnt(0) lgkmcnt(2)")
        head(g)
        if not tail:
            a(f"""
            v_add_u32 v{nb}, v{vG2+1}, v{vN8}
            v_mad_u32_u24 v{vAE}, v{vGM}, v{vEM}, v{vEC}
            """)
            if boost == 1:
                unboost()
            slot(-1)
            if boost == 2:
                unboost()
            a(f"""
            ds_read_b64 {vr(vBO+2,2)}, v{nb}
            ds_read_b64 {vr(vEA,2)}, v{vAE}
            ds_read_b64 {vr(vG2,2)}, v{vAH} offset:{512+256*par}
            ds_read_b32 v{vGM}, v{vAM} offset:{512+256*par}
            """)
            if par == 1:
                a(f"v_add_u32 v{vAH}, 512, v{vAH}\nv_add_u32 v{vAM}, 512, v{vAM}")
        else:
            a("s_nop 3")
            if boost:
                unboost()
        ex(0)
        slot(0)
        ex(1)
        a(f"v_pk_add_f32 {P}, {T(0)}, 1.0 op_sel_hi:[1,0]")
        slot(1)
        ex(2)
        a(f"v_pk_fma_f32 {Nn}, {H(0)}, {T(1)}, {H(0)}")
        a(f"v_pk_fma_f32 {Nn}, {H(1)}, {P}, {Nn}")
        a(f"v_pk_fma_f32 {P}, {P}, {T(1)}, {P}")
        for r in range(2, 8):
            slot(r)
            if r < 7:
                ex(r + 1)
            a(f"v_pk_fma_f32 {Nn}, {Nn}, {T(r)}, {Nn}")
            a(f"v_pk_fma_f32 {Nn}, {H(r)}, {P}, {Nn}")
            a(f"v_pk_fma_f32 {P}, {P}, {T(r)}, {P}")
        a(f"""
        v_rcp_f32 v{vRc}, v{vP}
        v_rcp_f32 v{vRc+1}, v{vP+1}
        v_pk_add_f32 {vr(vSS,2)}, {vr(vSS,2)}, {P}
        v_pk_mul_f32 {Nn}, {Nn}, {vr(vRc,2)}
        """)
        if not tail:
            a("s_sub_u32 s41, s41, 1")
            if thr:
                a(f"s_bitcmp1_b32 s40, s41\ns_cbranch_scc1 L_pr{par}\nL_prb{par}:")
            a("s_cmp_lt_u32 s41, 2")
        fin(na)

    a("L_fast:")
    unit(0, False)
    a("s_cbranch_scc1 L_tail1")
    unit(1, False)
    a("s_cbranch_scc0 L_fast\ns_branch L_tail0")
    a(f"L_tail1:\nv_mov_b32 v{vNA[0]}, v{vNA[1]}\nL_tail0:")
    unit(0, True)
    a(f"""
    L_mdone:
    s_setprio 0
    v_add_f32 v{vSS}, v{vSS}, v{vSS+1}
    s_waitcnt vmcnt(0) lgkmcnt(0)
    v_mov_b32 v16, {MORE}
    ds_read_b32 v17, v16
    v_cmp_ngt_f32 vcc, 0x7e000000, v{vSS}
    s_cbranch_vccz L_sok
    ds_write_b32 v16, v16 offset:4
    L_sok:
    v_lshrrev_b32 v8, 4, v0
    v_mul_u32_u24 v9, 768, v8
    v_lshl_add_u32 v9, v{vI}, 5, v9
    v_lshlrev_b32 v10, 3, v0
    s_waitcnt lgkmcnt(0)
    v_readfirstlane_b32 s5, v17
    """)
    stamp()
    if opt.get("stamps"):
        a("s_memtime s[94:95]\ns_waitcnt lgkmcnt(0)\nv_writelane_b32 v127, s94, 15")
    a(f"""
    s_barrier
    s_cmp_eq_u32 s5, 0
    s_cbranch_scc0 L_again
    """)
    stamp()
    a(f"""
    v_cmp_gt_u32 vcc, {NPB*16}, v0
    s_and_saveexec_b64 s[6:7], vcc
    s_cbranch_execz L_noout
    ds_read_b128 v[32:35], v9 offset:{NODE+256}
    ds_read_b128 v[36:39], v9 offset:{NODE+272}
    s_waitcnt lgkmcnt(0)
    """)
    for i in range(4):
        a(f"v_cvt_f32_f64 v{24+i}, {vr(32+2*i,2)}")
    for i in range(4):
        a(f"v_mul_f32 v{28+i}, {NLOG2E}, v{24+i}")
    for i in range(4):
        a(f"v_exp_f32 v{28+i}, v{28+i}")
    a("v_add_f32 v18, v24, v25\nv_add_f32 v19, v26, v27")
    for i in range(4):
        a(f"v_add_f32 v{28+i}, 1.0, v{28+i}")
    for i in range(4):
        a(f"v_rcp_f32 v{28+i}, v{28+i}")
    a("v_add_f32 v18, v18, v19\nv_mov_b32 v19, 0x207")
    for i in range(4):
        a(f"v_mul_f32 v{28+i}, v{28+i}, v{24+i}")
    a(f"""
    v_cvt_pk_bf16_f32 v28, v28, v29
    v_cvt_pk_bf16_f32 v29, v30, v31
    buffer_store_dwordx2 v[28:29], v10, {sr(sO)}, s63 offen
    v_cmp_class_f32 vcc, v18, v19
    s_cbranch_vccz L_noout
    ds_write_b32 v16, v16 offset:4
    L_noout:
    s_mov_b64 exec, -1
    s_cmp_eq_u32 s61, 0
    s_cbranch_scc0 L_fin
    s_waitcnt lgkmcnt(0)
    s_barrier
    ds_read_b32 v17, v16 offset:4
    s_waitcnt lgkmcnt(0)
    v_readfirstlane_b32 s5, v17
    s_cmp_eq_u32 s5, {"s5" if opt.get("nog") or opt.get("noex") else 0}
    s_cbranch_scc0 L_redo
    L_fin:
    """)
    if opt.get("stamps"):
        a("s_waitcnt vmcnt(0)")
        stamp()
        a(f"""
        s_lshl_b32 s5, s2, 4
        s_add_u32 s5, s5, s3
        s_lshl_b32 s5, s5, 6
        s_add_u32 s5, s5, {WS_DBG}
        s_mov_b64 exec, 0xffff
        v_lshlrev_b32 v2, 2, v1
        buffer_store_dword v127, v2, {sr(sWS)}, s5 offen
        """)
    a(f"""
    L_end:
    s_endpgm
    """)
    if thr:
        for par in range(2):
            a(f"""
            L_pr{par}:
            s_setprio 2
            s_cmp_gt_u32 s41, {opt["t1"]}
            s_cbranch_scc1 L_prb{par}
            s_setprio 1
            s_cmp_gt_u32 s41, {opt["t0"]}
            s_cbranch_scc1 L_prb{par}
            s_setprio 0
            s_branch L_prb{par}
            """)
    if opt.get("boost"):
        for par in range(2):
            a(f"""
            L_bo{par}:
            s_setprio 1
            s_cmp_gt_u32 s41, {opt["b0"]}
            s_cbranch_scc1 L_bob{par}
            s_setprio 0
            s_branch L_bob{par}
            """)
    a(f"""
    L_redo:
    s_mov_b32 s61, 1
    s_mov_b32 s53, {NLOG2E}
    v_lshlrev_b32 v10, 2, v1
    v_mov_b32 v11, 0
    s_waitcnt vmcnt(0)
    s_barrier
    ds_write_b32 v10, v11 offset:{CN2}
    ds_write_b32 v10, v11 offset:{GC}
    s_waitcnt lgkmcnt(0)
    s_barrier
    s_branch L_restart
    L_again:
    v_lshlrev_b32 v10, 2, v1
    v_mov_b64 v[12:13], 0
    ds_write_b32 v10, v12 offset:{CN2}
    ds_write_b64 v12, v[12:13] offset:{GC}
    s_or_b64 s[90:91], s[44:45], s[46:47]
    """)
    for j in range(2, 8):
        a(f"s_or_b64 s[90:91], s[90:91], s[{44+2*j}:{45+2*j}]")
    a(f"""
    s_cselect_b32 s6, 0, 32
    s_add_u32 s60, s60, s6
    s_min_u32 s60, s60, {SL}
    """)
    prefill("b")
    a(f"""
    s_cmp_eq_u32 s6, 0
    s_waitcnt lgkmcnt(0)
    s_barrier
    s_cbranch_scc1 L_round
    s_branch L_window
    L_slow:
    s_waitcnt vmcnt(0)
    ds_read_b64 v[8:9], v{vAH}
    ds_read_b32 v{vGM}, v{vAM}
    s_waitcnt lgkmcnt(0)
    ds_read_b128 {vr(vOF,4)}, v8 offset:{OFF}
    ds_read_b128 {vr(vOF+4,4)}, v8 offset:{OFF+16}
    v_add_u32 v{vNA[0]}, v9, v{vN8}
    v_mad_u32_u24 v{vAE}, v{vGM}, v{vEM}, v{vEC}
    ds_read_b64 {vr(vBO+2,2)}, v{vNA[0]}
    ds_read_b64 {vr(vEA,2)}, v{vAE}
    v_add_u32 v{vAH}, 256, v{vAH}
    v_add_u32 v{vAM}, 256, v{vAM}
    s_waitcnt lgkmcnt(0)
    """)
    for r in range(8):
        gather(vGA, r)
    a("s_waitcnt vmcnt(0)")
    head(vGA)
    a(f"s_nop 3\nv_mov_b64 {Nn}, 0")
    for r in range(8):
        ex(r)
        a(f"s_nop 0\nv_pk_add_f32 {T(r)}, {T(r)}, 1.0 op_sel_hi:[1,0]")
        a(f"v_rcp_f32 v{vDD+2*r}, v{vDD+2*r}\nv_rcp_f32 v{vDD+2*r+1}, v{vDD+2*r+1}\ns_nop 0")
        a(f"v_pk_fma_f32 {Nn}, {H(r)}, {T(r)}, {Nn}")
    a("s_sub_u32 s41, s41, 1\ns_cmp_eq_u32 s41, 0")
    fin(vNA[0])
    a("s_cbranch_scc0 L_slow\ns_branch L_mdone")
    return a.text()


def kd(name, vgpr):
    return f""".p2align 6
.amdhsa_kernel {name}
  .amdhsa_next_free_vgpr {vgpr}
  .amdhsa_next_free_sgpr 96
  .amdhsa_accum_offset {vgpr}
  .amdhsa_group_segment_fixed_size 0
  .amdhsa_kernarg_size 80
  .amdhsa_user_sgpr_count 2
  .amdhsa_user_sgpr_kernarg_segment_ptr 1
  .amdhsa_system_sgpr_workgroup_id_x 1
.end_amdhsa_kernel
"""


def gen(opt):
    t = kernel(opt)
    ref = open(f"cdna_kernels/{NAME}.s.ref").read().split("\n")
    out = "\n".join(ref[:11]) + "\n"
    out += f"; @launch grid=(256,1,1) block=(1024,1,1) lds={LDS}\n"
    out += '.amdgcn_target "amdgcn-amd-amdhsa--gfx950"\n.text\n'
    nm = NAME + "_kernel"
    out += f".globl {nm}\n.p2align 8\n.type {nm},@function\n" + t
    out += '.section .rodata,"a"\n' + kd(nm, 128)
    return out


if __name__ == "__main__":
    opt = {}
    for x in sys.argv[2:]:
        k, _, v = x.partition("=")
        opt[k] = int(v) if v else 1
    open(sys.argv[1], "w").write(gen(opt))
```

```python
import sys

NAME = "gather_scatter__edge_featured_mpnn_egc__graph"
N, E = 12500, 800000
NPB = 49
SL = 3136
WS_TB = 0
WS_T = 4 << 20
WS_K = 5 << 20
WS_E = 9 << 20
WS_DBG = 32 << 20
WS_SIZE = 64 << 20
NLOG2E = "0xbfb8aa3b"
OOB = 0x40000000

CN2 = 0
GC, MORE, FL = 256, 260, 264
CNT, BASE = 512, 1536
NODE = 2560
GD = NODE + NPB * 768
OFF = GD + 6400
BS = 528
EA = OFF + 26112
LWA = EA + 51840
LX = LWA + 16384
LDS = LX + 8192
KEYS, EAIN, TBS, LWB = 40192, 53504, 80128, 96512
ZOFF = N * 8


class Asm:
    def __init__(self):
        self.l = []

    def __call__(self, s):
        for x in s.split("\n"):
            x = x.strip()
            if x:
                self.l.append(("" if x.endswith(":") else "    ") + x)

    def text(self):
        return "\n".join(self.l) + "\n"


def vr(a, n):
    return f"v[{a}:{a+n-1}]"


def sr(a, n=4):
    return f"s[{a}:{a+n-1}]"


def scan64(a, v):
    for sh in (1, 2, 4, 8):
        a(f"s_nop 1\nv_add_u32_dpp v{v}, v{v}, v{v} row_shr:{sh} row_mask:0xf bank_mask:0xf bound_ctrl:0")
    a(f"s_nop 1\nv_add_u32_dpp v{v}, v{v}, v{v} row_bcast:15 row_mask:0xa bank_mask:0xf")
    a(f"s_nop 1\nv_add_u32_dpp v{v}, v{v}, v{v} row_bcast:31 row_mask:0xc bank_mask:0xf")


def gemm_job(a, vXA, vWA, wofs, vA, vB, vD):
    a(f"v_xor_b32 v{vD}, 64, v{vXA}\nv_xor_b32 v{vD+1}, 64, v{vWA}")
    a(f"ds_read_b128 {vr(vA,4)}, v{vXA}\nds_read_b128 {vr(vA+4,4)}, v{vD}")
    idx = 0
    for M in range(2):
        for t in range(2):
            for s in range(2):
                for j2 in range(2):
                    a(f"ds_read_b64_tr_b16 {vr(vB+2*idx,2)}, v{vD+1 if t else vWA} offset:{wofs+M*8192+s*4096+j2*512}")
                    idx += 1
    for q in range(4):
        a(f"s_waitcnt lgkmcnt({12-4*q})")
        a(f"v_mfma_f32_16x16x32_bf16 {vr(vD+4*q,4)}, {vr(vA,4)}, {vr(vB+8*q,4)}, 0")
        a(f"v_mfma_f32_16x16x32_bf16 {vr(vD+4*q,4)}, {vr(vA+4,4)}, {vr(vB+8*q+4,4)}, {vr(vD+4*q,4)}")


def kernel(opt):
    a = Asm()
    for k, v in (("boost", 1), ("b1", 4), ("b0", 1), ("pf1", 8), ("pf2", 0), ("pf3", 20), ("pf4", 0), ("rpf", 0)):
        opt.setdefault(k, v)
    safe = opt.get("safe")
    XC = opt.get("xc", 1)
    PS = 8 if XC else 1
    nst = [0]

    def stamp():
        if opt.get("stamps"):
            a(f"s_memrealtime s[94:95]\ns_waitcnt lgkmcnt(0)\nv_writelane_b32 v127, s94, {nst[0]}")
            nst[0] += 1

    sDST, sSRC, sEA, sX, sWB, sWA, sG, sWS, sTB, sO, sDB = 8, 12, 16, 20, 24, 28, 32, 36, 64, 68, 72
    SC = "sc1"
    a(f"""
    {NAME}_kernel:
    s_cmp_ge_u32 s2, 256
    s_cbranch_scc1 L_end
    s_load_dwordx2 s[{sX}:{sX+1}], s[0:1], 0
    s_load_dwordx2 s[{sG}:{sG+1}], s[0:1], 48
    s_load_dwordx2 s[{sWB}:{sWB+1}], s[0:1], 40
    s_load_dwordx2 s[{sDST}:{sDST+1}], s[0:1], 24
    s_load_dwordx2 s[{sSRC}:{sSRC+1}], s[0:1], 16
    s_load_dwordx2 s[{sEA}:{sEA+1}], s[0:1], 8
    s_load_dwordx2 s[{sWA}:{sWA+1}], s[0:1], 32
    s_load_dwordx2 s[{sWS}:{sWS+1}], s[0:1], 72
    s_load_dwordx2 s[{sO}:{sO+1}], s[0:1], 56
    s_load_dwordx2 s[{sDB}:{sDB+1}], s[0:1], 64
    """)
    if opt.get("stamps"):
        a("s_memrealtime s[92:93]")
    a(f"""
    v_readfirstlane_b32 s3, v0
    """)
    if opt.get("codewarm"):
        a(f"""
        s_getpc_b64 s[90:91]
        v_lshlrev_b32 v54, 7, v0
        s_cmp_eq_u32 s3, 0
        s_cbranch_scc0 L_now0
        global_load_dword v54, v54, s[90:91]
        L_now0:
        """)
    a(f"""
    v_and_b32 v1, 63, v0
    v_lshlrev_b32 v2, 2, v0
    v_mov_b32 v40, 0
    ds_write_b32 v2, v40
    s_and_b32 s4, s2, 7
    s_lshl_b32 s4, s4, 5
    s_lshr_b32 s5, s2, 3
    s_add_u32 s4, s4, s5
    s_lshr_b32 s3, s3, 6
    """)
    for s, sz in ((sX, N * 128), (sWB, 16384), (sDST, E * 4), (sSRC, E * 4), (sEA, E * 8), (sWA, 8192),
                  (sG, 132 * 128), (sWS, WS_SIZE if opt.get('stamps') else 16 << 20), (sO, N * 128), (sDB, 256)):
        a(f"s_mov_b32 s{s+2}, {sz}\ns_mov_b32 s{s+3}, 0x20000")
    a(f"""
    s_mov_b32 s{sTB+2}, {WS_T}
    s_mov_b32 s{sTB+3}, {"0x20000" if safe else "0xc00000"}
    s_cmp_lt_u32 s2, 255
    s_movk_i32 s5, 784
    s_cselect_b32 s5, s5, 80
    v_cmp_gt_u32 s[44:45], s5, v0
    v_lshlrev_b32 v4, 4, v0
    v_lshlrev_b32 v7, 4, v1
    s_mul_i32 s6, s2, {SL*4}
    s_lshl_b32 s7, s3, 10
    v_cndmask_b32 v5, 2.0, v4, s[44:45]
    v_and_b32 v31, 0x70, v0
    v_xor_b32 v31, v31, v7
    v_and_b32 v32, 16, v0
    v_and_b32 v33, 64, v0
    v_lshl_or_b32 v32, v32, 1, v33
    v_xor_b32 v47, v32, v7
    s_mul_i32 s63, s4, {NPB*128}
    s_add_u32 s42, s63, s7
    s_add_u32 m0, s7, {LX}
    s_xor_b32 s43, s7, 8192
    s_cmp_lt_u32 s3, 7
    s_waitcnt lgkmcnt(0)
    s_cbranch_scc0 L_nox
    buffer_load_dwordx4 v31, {sr(sX)}, s42 offen lds
    L_nox:
    s_add_u32 m0, s7, {LWB}
    s_cmp_lt_u32 s3, 8
    s_cselect_b32 s{sWB}, s{sG}, s{sWB}
    s_cselect_b32 s{sWB+1}, s{sG+1}, s{sWB+1}
    s_cselect_b32 s{sWA}, s{sG}, s{sWA}
    s_cselect_b32 s{sWA+1}, s{sG+1}, s{sWA+1}
    buffer_load_dwordx4 v47, {sr(sWB)}, s43 offen lds
    buffer_load_dwordx4 v[8:11], v5, {sr(sDST)}, s6 offen
    """)
    TW = opt.get("tw", 0)
    if TW:
        a(f"""
        s_cmp_eq_u32 s3, 15
        s_cbranch_scc0 L_notw
        v_lshlrev_b32 v55, {TW}, v1
        s_mov_b64 exec, {hex((1 << ((16 << 20) >> TW)) - 1) if TW > 18 else -1}
        buffer_load_dword v55, v55, {sr(sWS)}, 0 offen {SC}
        s_mov_b64 exec, 1
        buffer_load_dword v54, v7, {sr(sDB)}, 0 offen {SC}
        buffer_load_dword v53, v7, {sr(sO)}, s63 offen {SC}
        s_mov_b64 exec, -1
        L_notw:
        """)
    if opt.get("stamps"):
        pr = opt.get("probe", 0)
        if pr:
            a("s_cmp_eq_u32 s3, 14\ns_cbranch_scc0 L_nopr\ns_lshl_b32 s42, s2, 10")
            a({1: f"buffer_load_dword v55, v7, {sr(sWS)}, s42 offen {SC}",
               2: f"s_add_u32 s42, s42, {3<<20}+{512<<10}\nbuffer_store_dwordx4 v[40:43], v7, {sr(sWS)}, s42 offen {SC}",
               3: f"buffer_load_dword v55, v7, {sr(sDB)}, 0 offen {SC}",
               4: f"buffer_load_dword v55, v7, {sr(sO)}, s63 offen {SC}",
               5: f"buffer_store_dwordx4 v[40:43], v7, {sr(sO)}, s63 offen {SC}",
               6: ""}[pr])
            a("s_waitcnt vmcnt(0)\nL_nopr:")
        a("v_writelane_b32 v127, s92, 0\ns_memrealtime s[94:95]\ns_waitcnt lgkmcnt(0)\nv_writelane_b32 v127, s94, 13")
        nst[0] = 1
    vXA, vWA, vG4, vI = 124, 125, 126, 6
    vC = 120
    consts1 = f"""
    s_mov_b32 s{sTB}, s{sWS}
    s_or_b32 s{sTB+1}, s{sWS+1}, {0 if safe else 0x80000000}
    s_bfe_u32 s40, s3, 0x20001
    s_and_b32 s41, s3, 1
    v_and_b32 v{vI}, 15, v1
    v_lshrrev_b32 v{vG4}, 4, v1
    s_lshl_b32 s42, s40, 11
    s_add_u32 s42, s42, {LX}
    v_lshrrev_b32 v2, 1, v{vI}
    v_xor_b32 v2, v2, v{vG4}
    v_lshlrev_b32 v2, 4, v2
    v_lshl_add_u32 v{vXA}, v{vI}, 7, v2
    v_add_u32 v{vXA}, s42, v{vXA}
    v_lshrrev_b32 v{vWA}, 2, v{vI}
    v_lshl_add_u32 v{vWA}, v{vG4}, 3, v{vWA}
    v_bfe_u32 v2, v1, 3, 2
    v_xor_b32 v2, s41, v2
    v_lshl_add_u32 v{vWA}, v{vWA}, 2, v2
    v_and_b32 v2, 3, v1
    v_lshl_add_u32 v{vWA}, v{vWA}, 2, v2
    v_lshlrev_b32 v{vWA}, 3, v{vWA}
    v_add_u32 v{vWA}, {LWB}, v{vWA}
    s_lshl_b32 s42, s40, 12
    s_lshl_b32 s43, s41, 6
    s_add_u32 s42, s42, s43
    s_add_u32 s42, s42, {TBS}
    v_lshlrev_b32 v2, 10, v{vG4}
    v_lshl_add_u32 v2, v{vI}, 2, v2
    v_add_u32 v2, s42, v2
    v_lshlrev_b32 v28, 16, v0
    v_mov_b32 v3, 4
    v_mov_b32 v29, 0x21800000
    v_subrev_u32 v30, 3072, v4
    s_movk_i32 s43, {784*16}
    v_cmp_gt_u32 vcc, s43, v30
    s_mov_b32 s52, -{NPB}
    s_mov_b32 s53, {NLOG2E}
    v_cndmask_b32 v30, 2.0, v30, vcc
    s_movk_i32 s54, 0x4000
    s_mov_b32 s55, 0x8000
    s_mov_b32 s56, 0xc000
    s_mov_b32 s61, 0
    """
    if opt.get("c1", 1):
        a(consts1)
    a(f"""
    s_lshl_b32 s79, s2, 10
    s_add_u32 s79, s79, {WS_T}
    s_lshl_b32 s42, s7, 4
    s_add_u32 s42, s42, s79
    s_cmp_lt_u32 s2, 16
    s_cselect_b32 s42, s42, {OOB}
    v_add_u32 v33, s42, v7
    v_mov_b32 v41, 0
    v_mov_b64 v[42:43], 0
    s_barrier
    buffer_store_dwordx4 v[40:43], v33, {sr(sWS)}, 0 offen {SC}
    buffer_load_dwordx4 v[12:15], v5, {sr(sSRC)}, s6 offen
    """)
    EM = 1

    def ea_dma():
        a(f"""
        s_add_u32 m0, s7, {EAIN}
        s_lshl_b32 s42, s6, 1
        s_add_u32 s42, s42, s7
        buffer_load_dwordx4 v7, {sr(sEA)}, s42 offen lds
        s_cmp_lt_u32 s3, 9
        s_cbranch_scc0 L_noe
        s_add_u32 m0, s7, {EAIN+16384}
        s_add_u32 s42, s42, 16384
        s_nop 0
        buffer_load_dwordx4 v7, {sr(sEA)}, s42 offen lds
        L_noe:
        """)
    if EM == 0:
        ea_dma()
    if EM == 2:
        a(f"""
        s_sub_u32 s43, s7, {13*1024}
        s_cbranch_scc1 L_noe
        s_lshl_b32 s42, s6, 1
        L_eal:
        s_add_u32 m0, s43, {EAIN}
        s_add_u32 s5, s42, s43
        s_add_u32 s43, s43, 3072
        buffer_load_dwordx4 v7, {sr(sEA)}, s5 offen lds
        s_cmp_lt_u32 s43, {25*1024}
        s_cbranch_scc1 L_eal
        L_noe:
        """)
    if not opt.get("c1", 1):
        a(consts1)
    vD, vS, vB, vR, vL = 8, 12, 16, 20, 24
    a(f"""
    s_cmp_eq_u32 s3, 15
    s_cbranch_scc1 L_w1
    s_waitcnt vmcnt(2)
    L_w1:
    s_waitcnt vmcnt({5 if TW else 2})
    """)
    if opt.get("stamps"):
        a("s_memrealtime s[94:95]\ns_waitcnt lgkmcnt(0)\nv_writelane_b32 v127, s94, 5")
    a(f"""
    s_mov_b64 exec, s[44:45]
    s_cbranch_execz L_norank
    """)
    for k in range(4):
        a(f"""
        v_mul_u32_u24 v{vB+k}, 21400, v{vD+k}
        v_lshrrev_b32 v{vL+k}, 20, v{vB+k}
        v_lshlrev_b32 v{vB+k}, 2, v{vL+k}
        ds_add_rtn_u32 v{vR+k}, v{vB+k}, v3 offset:{CNT}
        """)
    a(f"""
    L_norank:
    s_mov_b64 exec, -1
    """)
    if EM == 1:
        ea_dma()
    a(f"""
    s_waitcnt lgkmcnt(0)
    s_barrier
    """)
    stamp()
    vA, vW, vM = 64, 72, 104
    sd = "dst_sel:DWORD dst_unused:UNUSED_PAD src0_sel:DWORD"
    a(f"""
    s_cmp_eq_u32 s3, 0
    s_cbranch_scc0 L_noscan
    ds_read_b128 v[32:35], v7 offset:{CNT}
    s_waitcnt lgkmcnt(0)
    v_add_u32 v44, v32, v33
    v_add_u32 v45, v44, v34
    v_add_u32 v46, v45, v35
    v_mov_b32 v36, v46
    """)
    scan64(a, 36)
    a(f"""
    v_sub_u32 v36, v36, v46
    v_add_u32 v36, 0x40000, v36
    v_add_u32 v37, v36, v32
    v_add_u32 v38, v36, v44
    v_add_u32 v39, v36, v45
    v_lshl_add_u32 v36, v32, 16, v36
    v_lshl_add_u32 v37, v33, 16, v37
    v_lshl_add_u32 v38, v34, 16, v38
    v_lshl_add_u32 v39, v35, 16, v39
    ds_write_b128 v7, v[36:39] offset:{BASE}
    L_noscan:
    s_cmp_lt_u32 s3, 8
    s_cbranch_scc1 L_nojob1
    """)
    gemm_job(a, vXA, vWA, 0, vA, vW, vM)
    a("s_nop 1")
    for r in range(4):
        a(f"v_fma_f32 v{vM+r}, v{vM+r}, s53, v29")
    for r in range(4):
        a(f"v_fma_f32 v{vM+4+r}, v{vM+4+r}, s53, v29")
    for r in range(4):
        a(f"v_cvt_pk_bf16_f32 v{64+r}, v{vM+8+r}, v{vM+8+r}")
    for r in range(4):
        a(f"v_add_f32 v{vM+12+r}, 0, v{vM+12+r}")
    for r in range(4):
        a(f"v_sub_u32_sdwa v{vM+r}, v{vM+r}, v{64+r} clamp {sd} src1_sel:WORD_0")
    for r in range(4):
        a(f"v_cvt_pk_bf16_f32 v{vM+r}, v{vM+8+r}, v{vM+r}")
    for r in range(4):
        a(f"v_sub_u32_sdwa v{vM+12+r}, v{vM+12+r}, v{vM+r} clamp {sd} src1_sel:WORD_1")
    for r in range(4):
        a(f"v_cvt_pk_bf16_f32 v{64+r}, v{vM+12+r}, v{vM+12+r}")
    for r in range(4):
        a(f"v_sub_u32_sdwa v{vM+4+r}, v{vM+4+r}, v{64+r} clamp {sd} src1_sel:WORD_0")
    for r in range(4):
        a(f"v_cvt_pk_bf16_f32 v{vM+4+r}, v{vM+12+r}, v{vM+4+r}")
        a(f"ds_write2_b32 v2, v{vM+r}, v{vM+4+r} offset0:{64*r} offset1:{64*r+32}")
    a("L_nojob1:")
    for k in range(4):
        a(f"v_mad_i32_i24 v{vL+k}, v{vL+k}, s52, v{vD+k}\nv_lshl_or_b32 v{vL+k}, v{vL+k}, 26, v28")
    a(f"""
    v_add_u32 v31, {TBS - 3072}, v4
    s_cmp_lt_u32 s3, {13 if EM == 2 else 9}
    s_cbranch_scc{0 if EM == 2 else 1} L_w2
    s_waitcnt vmcnt({0 if EM == 2 else 1})
    L_w2:
    s_waitcnt vmcnt({8 if EM == 2 else 2})
    v_or_b32 v{vS}, v{vS}, v{vL}
    v_or3_b32 v{vS+1}, v{vS+1}, v{vL+1}, s54
    v_or3_b32 v{vS+2}, v{vS+2}, v{vL+2}, s55
    v_or3_b32 v{vS+3}, v{vS+3}, v{vL+3}, s56
    s_add_u32 m0, s7, {LWA}
    s_and_b32 s43, s7, 8191
    buffer_load_dwordx4 v47, {sr(sWA)}, s43 offen lds
    v_lshlrev_b32 v47, 1, v1
    """)
    for k in range(4):
        a(f"buffer_load_ushort v{vC+k}, v47, {sr(sG)}, s54 offen offset:{128*k}")
    a(f"""
    s_lshl_b32 s42, s63, 1
    s_waitcnt lgkmcnt(0)
    s_barrier
    """)
    stamp()
    a(f"ds_read_b128 v[32:35], v31\ns_mov_b64 exec, s[44:45]\ns_cbranch_execz L_nosc")
    for k in range(4):
        a(f"ds_read_u16 v{vB+k}, v{vB+k} offset:{BASE}")
    for k in range(4):
        a(f"""
        s_waitcnt lgkmcnt(3)
        v_add_u32 v{vB+k}, v{vB+k}, v{vR+k}
        ds_write_b32 v{vB+k}, v{vS+k} offset:{KEYS}
        """)
    vBO, vEA = 60, 56
    a(f"""
    L_nosc:
    s_mov_b64 exec, -1
    v_lshlrev_b32 v2, 3, v0
    s_cmp_eq_u32 s3, 1
    s_cbranch_scc1 L_sig
    s_waitcnt lgkmcnt(0)
    buffer_store_dwordx4 v[32:35], v30, {sr(sWS)}, s42 offen {SC}
    s_branch L_nosig
    L_sig:
    s_lshl_b32 s43, s2, 4
    v_lshl_add_u32 v31, v1, 10, s43
    buffer_store_dword v3, v31, {sr(sDB)}, 0 offen {SC}
    s_waitcnt lgkmcnt(0)
    L_nosig:
    s_mul_i32 s42, s2, {SL*8}
    s_add_u32 s42, s42, {WS_E}
    s_add_u32 s43, s6, {WS_K}
    s_add_u32 s5, s42, 16384
    s_barrier
    """)
    stamp()
    a(f"""
    ds_read_b128 v[20:23], v4 offset:{KEYS-3072}
    ds_read_b64 v[8:9], v2 offset:{KEYS}
    ds_read_b64 v[10:11], v2 offset:{KEYS+8192}
    v_cmp_gt_u32 vcc, {1568-1024}, v0
    s_waitcnt lgkmcnt(2)
    buffer_store_dwordx4 v[20:23], v30, {sr(sWS)}, s43 offen {SC}
    s_waitcnt lgkmcnt(0)
    """)
    for k in range(4):
        a(f"v_lshrrev_b32 v{8+k}, 11, v{8+k}\nv_and_b32 v{8+k}, 0x7ff8, v{8+k}")
    a("s_waitcnt vmcnt(2)\ns_barrier")
    stamp()
    a(f"""
    ds_read_b64 v[12:13], v8 offset:{EAIN}
    ds_read_b64 v[14:15], v9 offset:{EAIN}
    s_and_saveexec_b64 s[48:49], vcc
    s_cbranch_execz L_noe2
    ds_read_b64 v[16:17], v10 offset:{EAIN}
    ds_read_b64 v[18:19], v11 offset:{EAIN}
    s_waitcnt lgkmcnt(0)
    buffer_store_dwordx4 v[16:19], v4, {sr(sWS)}, s5 offen {SC}
    L_noe2:
    s_mov_b64 exec, -1
    s_waitcnt lgkmcnt(0)
    buffer_store_dwordx4 v[12:15], v4, {sr(sWS)}, s42 offen {SC}
    """)
    vAH, vAM, vEM, vEC, vN8 = 48, 49, 50, 51, 52
    vTA = 53
    for k in range(4):
        a(f"v_lshlrev_b32 v{vC+k}, 16, v{vC+k}\nv_mul_f32 v{vC+k}, s53, v{vC+k}")
    a(f"""
    v_cvt_pk_bf16_f32 v{vBO}, v{vC}, v{vC+1}
    v_cvt_pk_bf16_f32 v{vBO+1}, v{vC+2}, v{vC+3}
    v_lshrrev_b32 v24, 5, v1
    v_bfe_u32 v25, v1, 2, 1
    v_and_b32 v26, 1, v1
    v_and_b32 v{vN8}, 31, v1
    v_cmp_eq_u32 vcc, v25, v24
    v_mov_b32 v27, 0x3f803f80
    v_lshrrev_b32 v28, 3, v{vN8}
    v_cndmask_b32 v27, 0, v27, vcc
    v_cmp_eq_u32 vcc, 0, v26
    v_bfe_u32 v29, v1, 1, 1
    v_lshl_add_u32 v28, v28, 1, v29
    v_cndmask_b32 v{vEA+2}, 0, v27, vcc
    v_cndmask_b32 v{vEA+3}, v27, 0, vcc
    v_cmp_eq_u32 vcc, v26, v24
    v_lshlrev_b32 v28, 3, v28
    v_add_u32 v28, {EA}, v28
    v_mov_b32 v29, {EA + NPB*BS*2}
    v_cndmask_b32 v{vEC}, v29, v28, vcc
    v_cndmask_b32 v{vEM}, 0, 2, vcc
    v_lshlrev_b32 v{vN8}, 3, v{vN8}
    s_lshl_b32 s5, s3, 4
    s_add_u32 s5, s5, {GD}
    v_lshl_add_u32 v120, v24, 3, s5
    v_lshl_add_u32 v121, v25, 3, s5
    s_and_b32 s43, s3, 7
    s_lshr_b32 s5, s3, 3
    s_lshl_b32 s5, s5, 7
    s_add_u32 s43, s43, s5
    {"s_lshl_b32 s43, s3, 4" if not XC else ""}
    s_lshl_b32 s5, s43, 10
    s_lshl_b32 s42, s4, 2
    s_add_u32 s5, s5, s42
    s_add_u32 s5, s5, {WS_T}
    v_lshl_add_u32 v{vTA}, v{vG4}, {13 if XC else 10}, s5
    s_mov_b32 s76, {0x1000*PS}
    s_mov_b32 s77, {0x2000*PS}
    s_mov_b32 s78, {0x3000*PS}
    s_mul_i32 s5, s43, {SL*4}
    s_add_u32 s80, s5, {WS_K}
    s_lshl_b32 s5, s5, 1
    s_add_u32 s84, s5, {WS_E}
    """)
    for u in range(1, 4):
        a(f"s_add_u32 s{80+u}, s80, {u*4*SL*4*PS}\ns_add_u32 s{84+u}, s84, {u*4*SL*8*PS}")
    a(f"""
    s_lshr_b32 s5, s2, 3
    s_lshl_b32 s5, s5, 4
    s_add_u32 s5, s5, s3
    s_mul_i32 s88, s5, {49*128}
    v_lshlrev_b32 v54, 7, v1
    s_mov_b32 s62, 0
    s_and_b32 s24, s2, 0xf8
    s_lshr_b32 s25, s3, 1
    s_add_u32 s24, s24, s25
    s_mul_i32 s24, s24, {SL*4}
    s_and_b32 s25, s2, 7
    s_mul_i32 s25, s25, 1574
    s_add_u32 s24, s24, s25
    s_lshl_b32 s25, s24, 1
    s_and_b32 s26, s3, 1
    s_mul_i32 s27, s26, {7*128}
    s_add_u32 s24, s24, s27
    s_add_u32 s24, s24, {WS_K}
    s_andn2_b32 s24, s24, 127
    s_mul_i32 s27, s26, {13*128}
    s_add_u32 s25, s25, s27
    s_add_u32 s25, s25, {WS_E}
    s_andn2_b32 s25, s25, 127
    """)
    PF1 = opt.get("pf1", 20)
    early = opt.get("pfpos", 0) == 1

    def pf(lo, hi):
        m = ((1 << hi) - 1) & ~((1 << lo) - 1)
        if m:
            a(f"""
            s_mov_b32 exec_lo, {hex(m & 0xffffffff)}
            s_mov_b32 exec_hi, {hex(m >> 32)}
            buffer_load_dword v55, v54, {sr(sWS)}, s88 offen {SC}
            s_mov_b64 exec, -1
            """)
        return 1 if m else 0
    a(f"""
    L_restart:
    s_mov_b32 s60, 0
    s_cmp_lt_u32 s3, 8
    s_cbranch_scc1 L_nojob2
    """)
    gemm_job(a, vXA, vWA, LWA - LWB, vA, vW, vM)
    a(f"""
    s_bfe_u32 s40, s3, 0x20001
    s_and_b32 s41, s3, 1
    s_mul_i32 s42, s40, {16*768}
    s_lshl_b32 s43, s41, 7
    s_add_u32 s42, s42, s43
    v_mul_u32_u24 v8, {4*768}, v{vG4}
    v_lshl_add_u32 v8, v{vI}, 3, v8
    v_add_u32 v8, s42, v8
    s_cmp_eq_u32 s40, 3
    s_cselect_b64 exec, 0xffff, -1
    """)
    for r in range(4):
        t = 64 + 8 * r
        a(f"""
        v_mul_f32 v{vM+r}, s53, v{vM+r}
        v_mul_f32 v{vM+4+r}, s53, v{vM+4+r}
        v_and_b32 v{t}, 0xffff0000, v{vM+r}
        v_and_b32 v{t+1}, 0xffff0000, v{vM+4+r}
        v_sub_f32 v{vM+r}, v{vM+r}, v{t}
        v_sub_f32 v{vM+4+r}, v{vM+4+r}, v{t+1}
        v_cvt_pk_bf16_f32 v{t}, v{t}, v{vM+r}
        v_cvt_pk_bf16_f32 v{t+1}, v{t+1}, v{vM+4+r}
        v_cvt_f64_f32 {vr(t+2,2)}, v{vM+8+r}
        v_cvt_f64_f32 {vr(t+4,2)}, v{vM+12+r}
        ds_write_b64 v8, {vr(t,2)} offset:{NODE+768*r}
        ds_write_b64 v8, {vr(t+2,2)} offset:{NODE+768*r+256}
        ds_write_b64 v8, {vr(t+4,2)} offset:{NODE+768*r+512}
        """)
        if r == 0:
            a("s_cbranch_scc1 L_nojob2")
    vT = 2

    def prefill(tag):
        a(f"""
        v_mov_b32 v8, {NPB*BS}
        v_mov_b32 v9, {NODE}
        v_lshlrev_b32 v10, 3, v0
        v_cmp_gt_u32 vcc, 800, v0
        s_and_saveexec_b64 s[42:43], vcc
        ds_write_b64 v10, v[8:9] offset:{GD}
        v_cmp_gt_u32 vcc, 8, v0
        s_and_b64 exec, exec, vcc
        s_cbranch_execz L_nodum{tag}
        v_mov_b32 v8, {ZOFF}
        v_lshlrev_b32 v9, 2, v0
        v_add_u32 v9, {OFF + NPB*BS}, v9
        ds_write_b32 v9, v8
        v_mov_b64 v[8:9], 0
        v_add_u32 v10, {EA + NPB*BS*2}, v10
        ds_write_b64 v10, v[8:9]
        L_nodum{tag}:
        s_mov_b64 exec, -1
        v_mov_b32 v8, 4
        v_mov_b32 v9, 0xfc
        s_lshl_b32 s5, s60, 18
        s_add_u32 s5, s5, {(128+8)<<16}
        s_mov_b32 s43, {EA}
        s_movk_i32 s42, 0x200
        s_movk_i32 s89, {BS//4}
        v_add_u32 v22, s60, v{vI}
        v_lshlrev_b32 v20, 18, v22
        v_add_u32 v20, {8<<16}, v20
        v_add_u32 v21, {64<<16}, v20
        v_mul_u32_u24 v23, {SL*PS}, v{vG4}
        v_add_lshl_u32 v22, v22, v23, 2
        """)
    a(f"""
    L_nojob2:
    s_mov_b64 exec, -1
    s_cmp_eq_u32 s61, 0
    s_cbranch_scc0 L_pre
    s_cmp_eq_u32 s3, 0
    s_cbranch_scc0 L_not
    v_lshlrev_b32 v24, 4, v{vI}
    L_dbg:
    buffer_load_dword v25, v24, {sr(sDB)}, 0 offen {SC}
    s_add_u32 s62, s62, 1
    s_bitcmp1_b32 s62, 20
    s_cbranch_scc1 L_end
    s_waitcnt vmcnt(0)
    v_cmp_eq_u32 vcc, 0, v25
    s_cbranch_vccnz L_dbg
    L_not:
    s_waitcnt vmcnt(0)
    s_barrier
    """)
    nst[0] += 1
    stamp()
    a(f"""
    s_cmp_eq_u32 s3, 0
    s_cbranch_scc0 L_not2
    buffer_store_dwordx4 v[36:39], v7, {sr(sWS)}, s79 offen {SC}
    L_not2:
    """)
    RPF = opt.get("rpf", 0)
    if RPF:
        a(f"""
        s_mov_b64 exec, 0x7f
        buffer_load_dword v55, v54, {sr(sWS)}, s24 offen {SC}
        s_mov_b64 exec, -1
        """)
    pf(0, PF1)
    a("L_pre:")
    prefill("a")
    if RPF in (1, 2):
        a(f"""
        {"s_waitcnt vmcnt(0)" if RPF == 1 else ""}
        s_mov_b64 exec, 0x1fff
        buffer_load_dword v55, v54, {sr(sWS)}, s25 offen {SC}
        s_mov_b64 exec, -1
        """)
    a(f"""
    L_poll:
    buffer_load_dword v{vT}, v{vTA}, {sr(sWS)}, 0 offen {SC}
    buffer_load_dword v{vT+1}, v{vTA}, {sr(sWS)}, s76 offen {SC}
    buffer_load_dword v{vT+2}, v{vTA}, {sr(sWS)}, s77 offen {SC}
    buffer_load_dword v{vT+3}, v{vTA}, {sr(sWS)}, s78 offen {SC}
    s_add_u32 s62, s62, 1
    s_bitcmp1_b32 s62, 20
    s_cbranch_scc1 L_end
    s_waitcnt vmcnt(0)
    v_min_u32 v10, v{vT}, v{vT+1}
    v_min3_u32 v10, v10, v{vT+2}, v{vT+3}
    v_cmp_eq_u32 vcc, 0, v10
    s_cbranch_vccnz L_poll
    {"s_barrier" if opt.get("pbar") else ""}
    """)
    stamp()
    a(f"""
    L_window:
    """)
    for u in range(4):
        a(f"v_cmp_le_u32 s[{44+2*u}:{45+2*u}], v20, v{vT+u}\nv_cmp_le_u32 s[{52+2*u}:{53+2*u}], v21, v{vT+u}")
    vRk, vRe, vRa, vRp = 64, 80, 96, 72
    a(f"""
    L_round:
    """)
    for u in range(4):
        a(f"v_add_u32_sdwa v{12+u}, v22, v{vT+u} {sd} src1_sel:WORD_0\nv_lshlrev_b32 v{16+u}, 1, v{12+u}")
    for u in range(4):
        a(f"""
        s_mov_b64 exec, s[{52+2*u}:{53+2*u}]
        s_cbranch_execz L_n2_{u}
        buffer_load_dword v{vRk+4+u}, v{12+u}, {sr(sWS)}, s{80+u} offen offset:64 {SC}
        buffer_load_dwordx2 {vr(vRe+8+2*u,2)}, v{16+u}, {sr(sWS)}, s{84+u} offen offset:128 {SC}
        L_n2_{u}:
        """)
    a("s_mov_b64 exec, -1")
    MK = opt.get("mk", 1)
    for u in range(4):
        if MK:
            a(f"s_or_b64 exec, s[{44+2*u}:{45+2*u}], 1")
        a(f"buffer_load_dword v{vRk+u}, v{12+u}, {sr(sWS)}, s{80+u} offen {SC}")
        if MK == 2:
            a(f"buffer_load_dwordx2 {vr(vRe+2*u,2)}, v{16+u}, {sr(sWS)}, s{84+u} offen {SC}")
    if opt.get("kbar"):
        a("s_barrier")
    for u in range(4 if MK < 2 else 0):
        if MK:
            a(f"s_or_b64 exec, s[{44+2*u}:{45+2*u}], 1")
        a(f"buffer_load_dwordx2 {vr(vRe+2*u,2)}, v{16+u}, {sr(sWS)}, s{84+u} offen {SC}")
    a("s_mov_b64 exec, -1")
    PF2 = opt.get("pf2", 49)
    npf = pf(PF1, PF2)
    a(f"""
    v_max_u32 v10, v{vT}, v{vT+1}
    v_max3_u32 v10, v10, v{vT+2}, v{vT+3}
    v_cmp_le_u32 s[90:91], s5, v10
    """)
    order = [4, 5, 6, 7, 0, 1, 2, 3]

    def slot_rank(j):
        a(f"""
        v_and_b32_sdwa v{vRa+j}, v{vRk+j}, v9 dst_sel:DWORD dst_unused:UNUSED_PAD src0_sel:BYTE_3 src1_sel:DWORD
        ds_add_rtn_u32 v{vRp+j}, v{vRa+j}, v8 offset:{CN2}
        v_lshlrev_b32 v{vRk+j}, 18, v{vRk+j}
        v_lshrrev_b32 v{vRk+j}, 15, v{vRk+j}
        """)

    def slot_put(j):
        m = f"s[{44+2*j}:{45+2*j}]"
        a(f"""
        v_cmpx_gt_u32 vcc, s42, v{vRp+j}
        v_mad_u32_u24 v{vRp+j}, v{vRa+j}, s89, v{vRp+j}
        s_andn2_b64 {m}, {m}, exec
        ds_write_b32 v{vRp+j}, v{vRk+j} offset:{OFF}
        v_lshl_add_u32 v{vRa+j}, v{vRp+j}, 1, s43
        s_or_b64 s[90:91], s[90:91], {m}
        """)

    for u in range(4):
        a(f"s_mov_b64 exec, s[{44+2*u}:{45+2*u}]\ns_waitcnt vmcnt({(7-u if MK < 2 else 7-2*u)+npf})")
        slot_rank(u)
    for u in range(4):
        a(f"s_mov_b64 exec, s[{52+2*u}:{53+2*u}]\ns_cbranch_execz L_r2_{u}")
        slot_rank(4 + u)
        a(f"L_r2_{u}:")
    a("s_waitcnt lgkmcnt(0)")
    for u in range(4):
        a(f"s_mov_b64 exec, s[{52+2*u}:{53+2*u}]\ns_cbranch_execz L_p2_{u}")
        slot_put(4 + u)
        if opt.get("eal"):
            a(f"L_p2_{u}:\ns_mov_b64 s[{16+2*u}:{17+2*u}], exec")
        else:
            a(f"ds_write_b64 v{vRa+4+u}, {vr(vRe+8+2*u,2)}\nL_p2_{u}:")
    for u in range(4):
        a(f"s_mov_b64 exec, s[{44+2*u}:{45+2*u}]")
        slot_put(u)
        if opt.get("eal"):
            a(f"s_mov_b64 s[{8+2*u}:{9+2*u}], exec")
        else:
            a(f"s_waitcnt vmcnt({3-u+npf})\nds_write_b64 v{vRa+u}, {vr(vRe+2*u,2)}")
    a(f"""
    s_mov_b64 exec, -1
    s_cbranch_scc0 L_nomore
    ds_write_b32 v8, v8 offset:{MORE-4}
    L_nomore:
    v_lshlrev_b32 v10, 2, v1
    s_lshl_b32 s5, s3, 5
    v_mul_u32_u24 v16, {BS}, v1
    v_add_u32 v12, s5, v16
    v_mul_u32_u24 v13, 768, v1
    v_add_u32 v13, {NODE}, v13
    v_mov_b32 v{vAH}, v120
    v_mov_b32 v{vAM}, v121
    """)
    npf3 = pf(max(PF1, PF2), opt.get("pf3", 0))
    a("s_waitcnt lgkmcnt(0)\ns_barrier")
    stamp()
    npf3 += pf(max(PF1, PF2, opt.get("pf3", 0)), opt.get("pf4", 0))
    a(f"""
    ds_read_b32 v11, v10 offset:{CN2}
    s_waitcnt lgkmcnt(0)
    v_min_u32 v11, s42, v11
    v_cmp_lt_u32 vcc, s5, v11
    s_bcnt1_i32_b64 s6, vcc
    s_cbranch_scc0 L_nolev
    s_lshl_b32 s6, s6, 3
    v_mov_b32 v14, s6
    s_mov_b64 exec, 1
    ds_add_rtn_u32 v14, v10, v14 offset:{GC}
    s_mov_b64 exec, -1
    v_mbcnt_lo_u32_b32 v15, vcc_lo, 0
    v_mbcnt_hi_u32_b32 v15, vcc_hi, v15
    s_waitcnt lgkmcnt(0)
    v_readfirstlane_b32 s6, v14
    s_mov_b64 exec, vcc
    s_nop 0
    v_lshl_add_u32 v15, v15, 3, s6
    ds_write_b64 v15, v[12:13] offset:{GD}
    s_mov_b64 exec, -1
    L_nolev:
    s_sub_u32 s6, s3, 9
    s_cbranch_scc1 L_nopad
    s_lshl_b32 s6, s6, 2
    v_add_u32 v14, 28, v11
    v_and_b32 v14, 0xffffffe0, v14
    v_add_u32 v11, s6, v11
    v_cmpx_lt_u32 vcc, v11, v14
    v_add_u32 v11, v16, v11
    v_mov_b32 v14, {ZOFF}
    ds_write_b32 v11, v14 offset:{OFF}
    v_lshl_add_u32 v11, v11, 1, s43
    v_mov_b64 v[14:15], 0
    ds_write_b64 v11, v[14:15]
    s_mov_b64 exec, -1
    L_nopad:
    v_mov_b32 v10, 0
    """)
    for u in range(4 if opt.get("eal") else 0):
        a(f"s_mov_b64 exec, s[{8+2*u}:{9+2*u}]\ns_waitcnt vmcnt({3-u+npf+npf3})\nds_write_b64 v{vRa+u}, {vr(vRe+2*u,2)}")
        if u == 0:
            for w in range(4, 8):
                a(f"s_mov_b64 exec, s[{8+2*w}:{9+2*w}]\nds_write_b64 v{vRa+w}, {vr(vRe+2*w,2)}")
    a("s_mov_b64 exec, -1\ns_waitcnt lgkmcnt(0)\ns_barrier")
    stamp()
    if opt.get("stamps"):
        a("s_memtime s[94:95]\ns_waitcnt lgkmcnt(0)\nv_writelane_b32 v127, s94, 14")
    vGA, vGB, vH, vDD, vOF = 64, 80, 96, 104 + 0, 16
    vH, vDD = 32, 96
    vNA = (24, 25)
    vG2, vGM, vAE = 26, 28, 29
    vP, vNn, vRc, vF, vSS = 8, 10, 12, 112, 14
    vL4 = 30

    def gather(g, r, ofs=vOF):
        if opt.get("nog"):
            return
        if safe:
            a(f"v_lshl_add_u32 v{ofs+r}, v{ofs+r}, 5, v{vL4}")
        a(f"buffer_load_dword v{g+2*r}, v{ofs+r}, {sr(sTB)}, 0 offen")
        a(f"buffer_load_dword v{g+2*r+1}, v{ofs+r}, {sr(sTB)}, 0 offen offset:{128 if safe else 4}")

    a(f"""
    ds_read_b32 v11, v10 offset:{GC}
    ds_read_b64 v[8:9], v{vAH}
    ds_read_b32 v13, v{vAM}
    ds_read_b64 {vr(vG2,2)}, v{vAH} offset:256
    ds_read_b32 v{vGM}, v{vAM} offset:256
    v_lshrrev_b32 v{vL4}, 1, v{vN8}
    v_mov_b64 {vr(vSS,2)}, 0
    s_waitcnt lgkmcnt(3)
    ds_read_b128 {vr(vOF,4)}, v8 offset:{OFF}
    ds_read_b128 {vr(vOF+4,4)}, v8 offset:{OFF+16}
    v_readfirstlane_b32 s40, v11
    v_add_u32 v{vNA[0]}, v9, v{vN8}
    s_add_u32 s40, s40, 8
    s_lshr_b32 s40, s40, 4
    s_add_u32 s41, s40, 15
    s_sub_u32 s41, s41, s3
    s_lshr_b32 s41, s41, 4
    s_waitcnt lgkmcnt(0)
    """)
    for r in range(8):
        gather(vGA, r)
    a(f"""
    v_mad_u32_u24 v{vAE}, v13, v{vEM}, v{vEC}
    ds_read_b64 {vr(vBO+2,2)}, v{vNA[0]}
    ds_read_b64 {vr(vEA,2)}, v{vAE}
    ds_read_b128 {vr(vOF,4)}, v{vG2} offset:{OFF}
    ds_read_b128 {vr(vOF+4,4)}, v{vG2} offset:{OFF+16}
    s_cmp_eq_u32 s41, 0
    s_cbranch_scc1 L_mdone
    s_cmp_eq_u32 s61, 0
    s_cbranch_scc0 L_slow
    s_mov_b32 s40, {sum(1 << opt[k] for k in ("t2", "t1", "t0") if k in opt)}
    s_cmp_lt_u32 s41, 2
    s_waitcnt lgkmcnt(0)
    s_cbranch_scc1 L_tail0
    {"s_setprio 3" if "t0" in opt else ""}
    """)

    T = lambda r: vr(vDD + 2 * r, 2)
    H = lambda r: vr(vH + 2 * r, 2)
    P, Nn = vr(vP, 2), vr(vNn, 2)

    def ex(r):
        if opt.get("noex"):
            return
        a(f"v_exp_f32 v{vDD+2*r}, v{vDD+2*r}\nv_exp_f32 v{vDD+2*r+1}, v{vDD+2*r+1}")

    def head(g):
        a(f"v_mfma_f32_32x32x16_bf16 {vr(vDD,16)}, {vr(vEA,4)}, {vr(vBO,4)}, {vr(g,16)}")
        for r in range(8):
            a(f"v_lshlrev_b64 {vr(vH+2*r,2)}, 16, {vr(g+2*r,2)}")

    def fin(na):
        a(f"""
        v_cvt_f64_f32 {vr(vF,2)}, v{vNn}
        v_cvt_f64_f32 {vr(vF+2,2)}, v{vNn+1}
        ds_add_f64 v{na}, {vr(vF,2)} offset:256
        ds_add_f64 v{na}, {vr(vF+2,2)} offset:512
        """)

    sched = {0: [-1] * 8, 1: [-1, -1, 0, 0, 1, 1, 2, 2], 2: [0, 1, 2, 3, 4, 5, 6, 7], 3: [-1, -1, -1, -1, 0, 1, 2, 3]}[opt.get("gs", 0)]

    thr = [opt[k] for k in ("t2", "t1", "t0") if k in opt]

    def unit(par, tail):
        g = vGA
        na, nb = vNA[par], vNA[1 - par]

        def slot(k):
            if tail:
                return
            for r in range(8):
                if sched[r] == k:
                    gather(g, r)
            if k == max(max(sched), 2):
                a(f"""
                s_waitcnt lgkmcnt(1)
                ds_read_b128 {vr(vOF,4)}, v{vG2} offset:{OFF}
                ds_read_b128 {vr(vOF+4,4)}, v{vG2} offset:{OFF+16}
                """)
        boost = opt.get("boost")

        def unboost():
            if tail:
                a("s_setprio 0")
            else:
                a(f"s_setprio 2\ns_cmp_le_u32 s41, {opt['b1']}\ns_cbranch_scc1 L_bo{par}\nL_bob{par}:")
        if boost:
            a("s_setprio 3")
        a("s_waitcnt vmcnt(0) lgkmcnt(2)")
        head(g)
        if not tail:
            a(f"""
            v_add_u32 v{nb}, v{vG2+1}, v{vN8}
            v_mad_u32_u24 v{vAE}, v{vGM}, v{vEM}, v{vEC}
            """)
            if boost == 1:
                unboost()
            slot(-1)
            if boost == 2:
                unboost()
            a(f"""
            ds_read_b64 {vr(vBO+2,2)}, v{nb}
            ds_read_b64 {vr(vEA,2)}, v{vAE}
            ds_read_b64 {vr(vG2,2)}, v{vAH} offset:{512+256*par}
            ds_read_b32 v{vGM}, v{vAM} offset:{512+256*par}
            """)
            if par == 1:
                a(f"v_add_u32 v{vAH}, 512, v{vAH}\nv_add_u32 v{vAM}, 512, v{vAM}")
        else:
            a("s_nop 3")
            if boost:
                unboost()
        ex(0)
        slot(0)
        ex(1)
        a(f"v_pk_add_f32 {P}, {T(0)}, 1.0 op_sel_hi:[1,0]")
        slot(1)
        ex(2)
        a(f"v_pk_fma_f32 {Nn}, {H(0)}, {T(1)}, {H(0)}")
        a(f"v_pk_fma_f32 {Nn}, {H(1)}, {P}, {Nn}")
        a(f"v_pk_fma_f32 {P}, {P}, {T(1)}, {P}")
        for r in range(2, 8):
            slot(r)
            if r < 7:
                ex(r + 1)
            a(f"v_pk_fma_f32 {Nn}, {Nn}, {T(r)}, {Nn}")
            a(f"v_pk_fma_f32 {Nn}, {H(r)}, {P}, {Nn}")
            a(f"v_pk_fma_f32 {P}, {P}, {T(r)}, {P}")
        a(f"""
        v_rcp_f32 v{vRc}, v{vP}
        v_rcp_f32 v{vRc+1}, v{vP+1}
        v_pk_add_f32 {vr(vSS,2)}, {vr(vSS,2)}, {P}
        v_pk_mul_f32 {Nn}, {Nn}, {vr(vRc,2)}
        """)
        if not tail:
            a("s_sub_u32 s41, s41, 1")
            if thr:
                a(f"s_bitcmp1_b32 s40, s41\ns_cbranch_scc1 L_pr{par}\nL_prb{par}:")
            a("s_cmp_lt_u32 s41, 2")
        fin(na)

    a("L_fast:")
    unit(0, False)
    a("s_cbranch_scc1 L_tail1")
    unit(1, False)
    a("s_cbranch_scc0 L_fast\ns_branch L_tail0")
    a(f"L_tail1:\nv_mov_b32 v{vNA[0]}, v{vNA[1]}\nL_tail0:")
    unit(0, True)
    a(f"""
    L_mdone:
    s_setprio 0
    v_add_f32 v{vSS}, v{vSS}, v{vSS+1}
    s_waitcnt vmcnt(0) lgkmcnt(0)
    v_mov_b32 v16, {MORE}
    ds_read_b32 v17, v16
    v_cmp_ngt_f32 vcc, 0x7e000000, v{vSS}
    s_cbranch_vccz L_sok
    ds_write_b32 v16, v16 offset:4
    L_sok:
    v_lshrrev_b32 v8, 4, v0
    v_mul_u32_u24 v9, 768, v8
    v_lshl_add_u32 v9, v{vI}, 5, v9
    v_lshlrev_b32 v10, 3, v0
    s_waitcnt lgkmcnt(0)
    v_readfirstlane_b32 s5, v17
    """)
    stamp()
    if opt.get("stamps"):
        a("s_memtime s[94:95]\ns_waitcnt lgkmcnt(0)\nv_writelane_b32 v127, s94, 15")
    a(f"""
    s_barrier
    s_cmp_eq_u32 s5, 0
    s_cbranch_scc0 L_again
    """)
    stamp()
    a(f"""
    v_cmp_gt_u32 vcc, {NPB*16}, v0
    s_and_saveexec_b64 s[6:7], vcc
    s_cbranch_execz L_noout
    ds_read_b128 v[32:35], v9 offset:{NODE+256}
    ds_read_b128 v[36:39], v9 offset:{NODE+272}
    s_waitcnt lgkmcnt(0)
    """)
    for i in range(4):
        a(f"v_cvt_f32_f64 v{24+i}, {vr(32+2*i,2)}")
    for i in range(4):
        a(f"v_mul_f32 v{28+i}, {NLOG2E}, v{24+i}")
    for i in range(4):
        a(f"v_exp_f32 v{28+i}, v{28+i}")
    a("v_add_f32 v18, v24, v25\nv_add_f32 v19, v26, v27")
    for i in range(4):
        a(f"v_add_f32 v{28+i}, 1.0, v{28+i}")
    for i in range(4):
        a(f"v_rcp_f32 v{28+i}, v{28+i}")
    a("v_add_f32 v18, v18, v19\nv_mov_b32 v19, 0x207")
    for i in range(4):
        a(f"v_mul_f32 v{28+i}, v{28+i}, v{24+i}")
    a(f"""
    v_cvt_pk_bf16_f32 v28, v28, v29
    v_cvt_pk_bf16_f32 v29, v30, v31
    buffer_store_dwordx2 v[28:29], v10, {sr(sO)}, s63 offen
    v_cmp_class_f32 vcc, v18, v19
    s_cbranch_vccz L_noout
    ds_write_b32 v16, v16 offset:4
    L_noout:
    s_mov_b64 exec, -1
    s_cmp_eq_u32 s61, 0
    s_cbranch_scc0 L_fin
    s_waitcnt lgkmcnt(0)
    s_barrier
    ds_read_b32 v17, v16 offset:4
    s_waitcnt lgkmcnt(0)
    v_readfirstlane_b32 s5, v17
    s_cmp_eq_u32 s5, {"s5" if opt.get("nog") or opt.get("noex") else 0}
    s_cbranch_scc0 L_redo
    L_fin:
    """)
    if opt.get("stamps"):
        a("s_waitcnt vmcnt(0)")
        stamp()
        a(f"""
        s_lshl_b32 s5, s2, 4
        s_add_u32 s5, s5, s3
        s_lshl_b32 s5, s5, 6
        s_add_u32 s5, s5, {WS_DBG}
        s_mov_b64 exec, 0xffff
        v_lshlrev_b32 v2, 2, v1
        buffer_store_dword v127, v2, {sr(sWS)}, s5 offen
        """)
    a(f"""
    L_end:
    s_endpgm
    """)
    if thr:
        for par in range(2):
            a(f"""
            L_pr{par}:
            s_setprio 2
            s_cmp_gt_u32 s41, {opt["t1"]}
            s_cbranch_scc1 L_prb{par}
            s_setprio 1
            s_cmp_gt_u32 s41, {opt["t0"]}
            s_cbranch_scc1 L_prb{par}
            s_setprio 0
            s_branch L_prb{par}
            """)
    if opt.get("boost"):
        for par in range(2):
            a(f"""
            L_bo{par}:
            s_setprio 1
            s_cmp_gt_u32 s41, {opt["b0"]}
            s_cbranch_scc1 L_bob{par}
            s_setprio 0
            s_branch L_bob{par}
            """)
    a(f"""
    L_redo:
    s_mov_b32 s61, 1
    s_mov_b32 s53, {NLOG2E}
    v_lshlrev_b32 v10, 2, v1
    v_mov_b32 v11, 0
    s_waitcnt vmcnt(0)
    s_barrier
    ds_write_b32 v10, v11 offset:{CN2}
    ds_write_b32 v10, v11 offset:{GC}
    s_waitcnt lgkmcnt(0)
    s_barrier
    s_branch L_restart
    L_again:
    v_lshlrev_b32 v10, 2, v1
    v_mov_b64 v[12:13], 0
    ds_write_b32 v10, v12 offset:{CN2}
    ds_write_b64 v12, v[12:13] offset:{GC}
    s_or_b64 s[90:91], s[44:45], s[46:47]
    """)
    for j in range(2, 8):
        a(f"s_or_b64 s[90:91], s[90:91], s[{44+2*j}:{45+2*j}]")
    a(f"""
    s_cselect_b32 s6, 0, 32
    s_add_u32 s60, s60, s6
    s_min_u32 s60, s60, {SL}
    """)
    prefill("b")
    a(f"""
    s_cmp_eq_u32 s6, 0
    s_waitcnt lgkmcnt(0)
    s_barrier
    s_cbranch_scc1 L_round
    s_branch L_window
    L_slow:
    s_waitcnt vmcnt(0)
    ds_read_b64 v[8:9], v{vAH}
    ds_read_b32 v{vGM}, v{vAM}
    s_waitcnt lgkmcnt(0)
    ds_read_b128 {vr(vOF,4)}, v8 offset:{OFF}
    ds_read_b128 {vr(vOF+4,4)}, v8 offset:{OFF+16}
    v_add_u32 v{vNA[0]}, v9, v{vN8}
    v_mad_u32_u24 v{vAE}, v{vGM}, v{vEM}, v{vEC}
    ds_read_b64 {vr(vBO+2,2)}, v{vNA[0]}
    ds_read_b64 {vr(vEA,2)}, v{vAE}
    v_add_u32 v{vAH}, 256, v{vAH}
    v_add_u32 v{vAM}, 256, v{vAM}
    s_waitcnt lgkmcnt(0)
    """)
    for r in range(8):
        gather(vGA, r)
    a("s_waitcnt vmcnt(0)")
    head(vGA)
    a(f"s_nop 3\nv_mov_b64 {Nn}, 0")
    for r in range(8):
        ex(r)
        a(f"s_nop 0\nv_pk_add_f32 {T(r)}, {T(r)}, 1.0 op_sel_hi:[1,0]")
        a(f"v_rcp_f32 v{vDD+2*r}, v{vDD+2*r}\nv_rcp_f32 v{vDD+2*r+1}, v{vDD+2*r+1}\ns_nop 0")
        a(f"v_pk_fma_f32 {Nn}, {H(r)}, {T(r)}, {Nn}")
    a("s_sub_u32 s41, s41, 1\ns_cmp_eq_u32 s41, 0")
    fin(vNA[0])
    a("s_cbranch_scc0 L_slow\ns_branch L_mdone")
    return a.text()


def kd(name, vgpr):
    return f""".p2align 6
.amdhsa_kernel {name}
  .amdhsa_next_free_vgpr {vgpr}
  .amdhsa_next_free_sgpr 96
  .amdhsa_accum_offset {vgpr}
  .amdhsa_group_segment_fixed_size 0
  .amdhsa_kernarg_size 80
  .amdhsa_user_sgpr_count 2
  .amdhsa_user_sgpr_kernarg_segment_ptr 1
  .amdhsa_system_sgpr_workgroup_id_x 1
.end_amdhsa_kernel
"""


def gen(opt):
    t = kernel(opt)
    ref = open(f"cdna_kernels/{NAME}.s.ref").read().split("\n")
    out = "\n".join(ref[:11]) + "\n"
    out += f"; @launch grid=(256,1,1) block=(1024,1,1) lds={LDS}\n"
    out += '.amdgcn_target "amdgcn-amd-amdhsa--gfx950"\n.text\n'
    nm = NAME + "_kernel"
    out += f".globl {nm}\n.p2align 8\n.type {nm},@function\n" + t
    out += '.section .rodata,"a"\n' + kd(nm, 128)
    return out


if __name__ == "__main__":
    opt = {}
    for x in sys.argv[2:]:
        k, _, v = x.partition("=")
        opt[k] = int(v) if v else 1
    open(sys.argv[1], "w").write(gen(opt))
```

```python
import sys

NAME = "gather_scatter__edge_featured_mpnn_egc__graph"
N, E = 12500, 800000
NPB = 49
SL = 3136
WS_TB = 256
WS_T = 4 << 20
WS_REC = 5 << 20
WS_DBG = 32 << 20
WS_SIZE = 64 << 20
NLOG2E = "0xbfb8aa3b"


class Asm:
    def __init__(self):
        self.l = []

    def __call__(self, s):
        for x in s.split("\n"):
            x = x.strip()
            if x:
                self.l.append(("" if x.endswith(":") else "    ") + x)

    def text(self):
        return "\n".join(self.l) + "\n"


def vr(a, n):
    return f"v[{a}:{a+n-1}]"


def scan64(a, v):
    for sh in (1, 2, 4, 8):
        a(f"s_nop 1\nv_add_u32_dpp v{v}, v{v}, v{v} row_shr:{sh} row_mask:0xf bank_mask:0xf bound_ctrl:0")
    a(f"s_nop 1\nv_add_u32_dpp v{v}, v{v}, v{v} row_bcast:15 row_mask:0xa bank_mask:0xf")
    a(f"s_nop 1\nv_add_u32_dpp v{v}, v{v}, v{v} row_bcast:31 row_mask:0xc bank_mask:0xf")


def stamp(a, opt, kern, idx):
    if opt.get("stamps"):
        a(f"s_mem{'' if opt['stamps']==2 else 'real'}time s[{64+2*idx}:{65+2*idx}]")


def stamp_out(a, opt, kern, n, ws):
    if opt.get("dbg"):
        a("s_load_dwordx2 s[4:5], s[0:1], 64\ns_mov_b32 s6, 256\ns_mov_b32 s7, 0x20000\ns_waitcnt lgkmcnt(0)")
        a("s_mov_b64 exec, 1\nv_mov_b32 v1, 0\ns_cmp_eq_u32 s3, 15\ns_cbranch_scc0 L%d_end" % (kern+1))
        a("s_not_b32 s62, s64\nv_mov_b32 v2, s62\nbuffer_atomic_umax v2, v1, s[4:7], 0 offen")
        for i in range(n):
            a(f"v_mov_b32 v2, s{64+2*i}")
            a(f"buffer_atomic_umax v2, v1, s[4:7], 0 offen offset:{4*i+4}")
        return
    if opt.get("stamps"):
        a("s_waitcnt lgkmcnt(0)")
        a(f"s_lshl_b32 s62, s2, 4\ns_add_u32 s62, s62, s3\ns_lshl_b32 s62, s62, 6\ns_add_u32 s62, s62, {WS_DBG + kern*(1<<20)}")
        a("s_mov_b64 exec, 1\nv_mov_b32 v1, 0")
        for i in range(n):
            a(f"v_mov_b32 v2, s{64+2*i}")
            a(f"buffer_store_dword v2, v1, s[{ws}:{ws+3}], s62 offen offset:{4*i}")


def gemm_job(a, LW, LX, vA, vB, vD, vt):
    a(f"""
    s_bfe_u32 s40, s3, 0x20001
    s_and_b32 s41, s3, 1
    v_and_b32 v{vt}, 15, v1
    v_lshrrev_b32 v{vt+1}, 4, v1
    s_lshl_b32 s42, s40, 11
    s_add_u32 s42, s42, {LX}
    v_lshlrev_b32 v{vt+2}, 7, v{vt}
    v_lshl_add_u32 v{vt+2}, v{vt+1}, 4, v{vt+2}
    v_add_u32 v{vt+2}, s42, v{vt+2}
    ds_read_b128 {vr(vA,4)}, v{vt+2}
    ds_read_b128 {vr(vA+4,4)}, v{vt+2} offset:64
    v_lshrrev_b32 v{vt+2}, 2, v{vt}
    v_lshl_add_u32 v{vt+2}, v{vt+1}, 3, v{vt+2}
    v_lshlrev_b32 v{vt+2}, 7, v{vt+2}
    v_and_b32 v{vt}, 3, v{vt}
    v_lshl_add_u32 v{vt+2}, v{vt}, 3, v{vt+2}
    s_lshl_b32 s42, s41, 5
    s_add_u32 s42, s42, {LW}
    v_add_u32 v{vt+2}, s42, v{vt+2}
    """)
    idx = 0
    for M in range(2):
        for t in range(2):
            for s in range(2):
                for j2 in range(2):
                    a(f"ds_read_b64_tr_b16 {vr(vB+2*idx,2)}, v{vt+2} offset:{M*8192+s*4096+j2*512+t*64}")
                    idx += 1
    for q in range(4):
        a(f"s_waitcnt lgkmcnt({12-4*q})")
        a(f"v_mfma_f32_16x16x32_bf16 {vr(vD+4*q,4)}, {vr(vA,4)}, {vr(vB+8*q,4)}, 0")
        a(f"v_mfma_f32_16x16x32_bf16 {vr(vD+4*q,4)}, {vr(vA+4,4)}, {vr(vB+8*q+4,4)}, {vr(vD+4*q,4)}")
    a("s_nop 7")


def k1(opt):
    a = Asm()
    CNT, BASE, KEYS, EA, LW, LX = 0, 1024, 2048, 14592, 40960, 57344
    sDST, sSRC, sEA, sX, sW, sV, sWS, sTB = 8, 12, 16, 20, 24, 28, 32, 36
    a(f"""
    part_kernel:
    s_cmp_ge_u32 s2, 256
    s_cbranch_scc1 L1_end
    s_load_dwordx2 s[{sDST}:{sDST+1}], s[0:1], 24
    s_load_dwordx2 s[{sSRC}:{sSRC+1}], s[0:1], 16
    s_load_dwordx2 s[{sEA}:{sEA+1}], s[0:1], 8
    s_load_dwordx2 s[{sX}:{sX+1}], s[0:1], 0
    s_load_dwordx2 s[{sW}:{sW+1}], s[0:1], 48
    s_load_dwordx2 s[{sV}:{sV+1}], s[0:1], 40
    s_load_dwordx2 s[{sWS}:{sWS+1}], s[0:1], 72
    """)
    stamp(a, opt, 0, 0)
    a(f"""
    v_readfirstlane_b32 s3, v0
    v_and_b32 v1, 63, v0
    v_lshlrev_b32 v2, 2, v0
    v_mov_b32 v3, 0
    ds_write_b32 v2, v3
    s_lshr_b32 s3, s3, 6
    s_mov_b32 s{sDST+2}, {E*4}
    s_mov_b32 s{sDST+3}, 0x20000
    s_mov_b32 s{sSRC+2}, {E*4}
    s_mov_b32 s{sSRC+3}, 0x20000
    s_mov_b32 s{sEA+2}, {E*8}
    s_mov_b32 s{sEA+3}, 0x20000
    s_mov_b32 s{sX+2}, {N*128}
    s_mov_b32 s{sX+3}, 0x20000
    s_mov_b32 s{sW+3}, 0x20000
    s_mov_b32 s{sWS+2}, {WS_SIZE}
    s_mov_b32 s{sWS+3}, 0x20000
    s_mov_b32 s{sTB+3}, 0x20000
    s_mul_i32 s4, s3, 192
    v_add_u32 v4, s4, v1
    v_lshlrev_b32 v5, 2, v4
    s_cmp_eq_u32 s3, 15
    s_cselect_b32 s5, 0, 0x40000000
    v_add_u32 v6, s5, v5
    s_mul_i32 s6, s2, {SL*4}
    v_lshlrev_b32 v7, 4, v1
    s_waitcnt lgkmcnt(0)
    """)
    vD, vS = 8, 12
    for k in range(4):
        a(f"buffer_load_dword v{vD+k}, v{5 if k<3 else 6}, s[{sDST}:{sDST+3}], s6 offen offset:{256*k}")
    a(f"""
    s_lshl_b32 s7, s3, 10
    s_add_u32 m0, s7, {LW}
    s_cmp_lt_u32 s3, 8
    s_cselect_b32 s{sW}, s{sW}, s{sV}
    s_cselect_b32 s{sW+1}, s{sW+1}, s{sV+1}
    s_mov_b32 s{sW+2}, 16384
    s_xor_b32 s42, s7, 8192
    buffer_load_dwordx4 v7, s[{sW}:{sW+3}], s42 offen lds
    s_cmp_lt_u32 s3, 9
    s_cbranch_scc1 L1_nox
    s_add_u32 m0, s7, {LX-9*1024}
    s_mul_i32 s42, s2, {NPB*128}
    s_add_u32 s42, s42, s7
    s_sub_u32 s42, s42, {9*1024}
    buffer_load_dwordx4 v7, s[{sX}:{sX+3}], s42 offen lds
    L1_nox:
    """)
    for k in range(4):
        a(f"buffer_load_dword v{vS+k}, v{5 if k<3 else 6}, s[{sSRC}:{sSRC+3}], s6 offen offset:{256*k}")
    a(f"""
    s_add_u32 m0, s7, {EA}
    s_lshl_b32 s42, s6, 1
    s_add_u32 s42, s42, s7
    buffer_load_dwordx4 v7, s[{sEA}:{sEA+3}], s42 offen lds
    s_cmp_lt_u32 s3, 9
    s_cbranch_scc0 L1_noe
    s_add_u32 m0, s7, {EA+16384}
    s_add_u32 s42, s42, 16384
    s_nop 0
    buffer_load_dwordx4 v7, s[{sEA}:{sEA+3}], s42 offen lds
    L1_noe:
    """)
    a(f"""
    s_cmp_lt_u32 s2, 255
    s_cselect_b32 s42, 49, 5
    s_mul_i32 s43, s3, 3
    """)
    for k in range(3):
        a(f"s_cmp_lt_u32 s43, s42\ns_cselect_b64 s[{44+2*k}:{45+2*k}], -1, 0\ns_add_u32 s43, s43, 1")
    a(f"""
    s_add_u32 s43, s43, s5
    s_cmp_lt_u32 s43, s42
    s_cselect_b64 s[50:51], -1, 0
    s_mov_b32 s52, -{NPB}
    v_mov_b32 v3, 1
    s_barrier
    s_waitcnt vmcnt(7)
    """)
    stamp(a, opt, 0, 1)
    vB, vR, vL = 16, 20, 24
    for k in range(4):
        a(f"""
        v_mul_u32_u24 v{vB+k}, 21400, v{vD+k}
        v_lshrrev_b32 v{vB+k}, 20, v{vB+k}
        v_mad_i32_i24 v{vL+k}, v{vB+k}, s52, v{vD+k}
        v_lshlrev_b32 v{vB+k}, 2, v{vB+k}
        s_mov_b64 exec, s[{44+2*k}:{45+2*k}]
        ds_add_rtn_u32 v{vR+k}, v{vB+k}, v3 offset:{CNT}
        s_mov_b64 exec, -1
        """)
    a(f"""
    s_waitcnt vmcnt(5) lgkmcnt(0)
    s_barrier
    """)
    stamp(a, opt, 0, 2)
    a(f"""
    s_cmp_eq_u32 s3, 0
    s_cbranch_scc0 L1_noscan
    ds_read_b128 v[28:31], v7 offset:{CNT}
    s_waitcnt lgkmcnt(0)
    v_add_u32 v33, v28, v29
    v_add_u32 v34, v33, v30
    v_add_u32 v35, v34, v31
    v_mov_b32 v36, v35
    """)
    scan64(a, 36)
    a(f"""
    v_sub_u32 v36, v36, v35
    v_add_u32 v37, v36, v28
    v_add_u32 v38, v36, v33
    v_add_u32 v39, v36, v34
    v_lshl_or_b32 v36, v28, 16, v36
    v_lshl_or_b32 v37, v29, 16, v37
    v_lshl_or_b32 v38, v30, 16, v38
    v_lshl_or_b32 v39, v31, 16, v39
    ds_write_b128 v7, v[36:39] offset:{BASE}
    s_waitcnt lgkmcnt(0)
    L1_noscan:
    s_barrier
    """)
    stamp(a, opt, 0, 3)
    vP = 28
    for k in range(4):
        a(f"ds_read_u16 v{vP+k}, v{vB+k} offset:{BASE}")
    a(f"""
    s_cmp_lt_u32 s3, 9
    s_cbranch_scc1 L1_w2
    s_waitcnt vmcnt(1)
    L1_w2:
    s_waitcnt vmcnt(2)
    v_lshlrev_b32 v32, 20, v4
    """)
    for k in range(4):
        a(f"v_lshl_or_b32 v{vS+k}, v{vS+k}, 6, v{vL+k}")
        a(f"v_or_b32 v{vS+k}, v{vS+k}, v32")
        if k < 3:
            a(f"v_add_u32 v32, {64<<20}, v32")
    a("s_waitcnt lgkmcnt(0)")
    for k in range(4):
        a(f"""
        v_add_lshl_u32 v{vP+k}, v{vP+k}, v{vR+k}, 2
        s_mov_b64 exec, s[{44+2*k}:{45+2*k}]
        ds_write_b32 v{vP+k}, v{vS+k} offset:{KEYS}
        s_mov_b64 exec, -1
        """)
    stamp(a, opt, 0, 4)
    a(f"""
    s_cmp_eq_u32 s3, 0
    s_cbranch_scc0 L1_not
    s_lshl_b32 s42, s2, 10
    s_add_u32 s42, s42, {WS_T}
    buffer_store_dwordx4 v[36:39], v7, s[{sWS}:{sWS+3}], s42 offen
    L1_not:
    s_cmp_lt_u32 s3, 8
    s_cbranch_scc1 L1_nojob
    """)
    vA, vW, vM = 8, 16, 48
    gemm_job(a, LW, LX, vA, vW, vM, 64)
    a(f"""
    s_mov_b32 s{sTB}, s{sWS}
    s_mov_b32 s{sTB+1}, s{sWS+1}
    s_mul_i32 s42, s2, {NPB*256}
    s_add_u32 s{sTB+2}, s42, {WS_TB + NPB*256}
    s_lshl_b32 s43, s40, 12
    s_add_u32 s42, s42, s43
    s_lshl_b32 s43, s41, 6
    s_add_u32 s42, s42, s43
    s_add_u32 s42, s42, {WS_TB}
    v_and_b32 v64, 15, v1
    v_lshlrev_b32 v64, 2, v64
    v_lshrrev_b32 v65, 4, v1
    v_lshl_add_u32 v64, v65, 10, v64
    v_add_u32 v64, s42, v64
    s_mov_b32 s53, 0x7fffffff
    s_mov_b32 s54, 0x07060100
    s_mov_b32 s55, 0x07060302
    """)
    sd = "dst_sel:DWORD dst_unused:UNUSED_PAD src0_sel:DWORD"
    for r in range(4):
        b0, b1, h0, h1 = vM + r, vM + 4 + r, vM + 8 + r, vM + 12 + r
        t = 8 + 4 * r
        a(f"""
        v_cvt_pk_bf16_f32 v{h0}, v{h0}, v{h0}
        v_mul_f32 v{b0}, {NLOG2E}, v{b0}
        v_mul_f32 v{b1}, {NLOG2E}, v{b1}
        v_and_b32 v{t}, s53, v{b0}
        v_and_b32 v{t+1}, s53, v{h1}
        v_and_b32 v{t+2}, s53, v{b1}
        v_add_u32 v{t}, 0x8000, v{t}
        v_add_u32 v{t+1}, 0x8000, v{t+1}
        v_add_u32 v{t+2}, 0x8000, v{t+2}
        v_sub_u32_sdwa v{t}, v{t}, v{h0} clamp {sd} src1_sel:WORD_0
        v_bfi_b32 v{b0}, s53, v{t}, v{b0}
        v_sub_u32_sdwa v{t+1}, v{t+1}, v{b0} clamp {sd} src1_sel:WORD_1
        v_bfi_b32 v{h1}, s53, v{t+1}, v{h1}
        v_sub_u32_sdwa v{t+2}, v{t+2}, v{h1} clamp {sd} src1_sel:WORD_1
        v_bfi_b32 v{b1}, s53, v{t+2}, v{b1}
        v_perm_b32 v{b0}, v{b0}, v{h0}, s54
        v_perm_b32 v{b1}, v{b1}, v{h1}, s55
        buffer_store_dword v{b0}, v64, s[{sTB}:{sTB+3}], 0 offen offset:{256*r}
        buffer_store_dword v{b1}, v64, s[{sTB}:{sTB+3}], 0 offen offset:{256*r+128}
        """)
    a(f"""
    s_waitcnt vmcnt(8) lgkmcnt(0)
    s_branch L1_join
    L1_nojob:
    s_waitcnt vmcnt(0) lgkmcnt(0)
    L1_join:
    s_barrier
    """)
    stamp(a, opt, 0, 5)
    vO = 8
    for k in range(4):
        a(f"ds_read_b32 v{vO+4*k+2}, v5 offset:{KEYS+256*k}")
    a(f"""
    v_mul_u32_u24 v6, 12, v4
    s_mul_i32 s42, s2, {SL*12}
    s_add_u32 s42, s42, {WS_REC}
    """)
    for k in range(4):
        a(f"""
        s_waitcnt lgkmcnt(3)
        v_lshrrev_b32 v{vO+4*k+3}, 17, v{vO+4*k+2}
        v_and_b32 v{vO+4*k+3}, 0x7ff8, v{vO+4*k+3}
        ds_read_b64 {vr(vO+4*k,2)}, v{vO+4*k+3} offset:{EA}
        v_lshlrev_b32 v{vO+4*k+2}, 2, v{vO+4*k+2}
        """)
    for k in range(4):
        a(f"""
        s_waitcnt lgkmcnt({3-k})
        s_mov_b64 exec, s[{44+2*k}:{45+2*k}]
        s_cbranch_execz L1_done
        buffer_store_dwordx3 {vr(vO+4*k,3)}, v6, s[{sWS}:{sWS+3}], s42 offen offset:{768*k}
        """)
    a("L1_done:")
    stamp(a, opt, 0, 6)
    if opt.get("stamps"):
        a("s_waitcnt vmcnt(0)")
        stamp(a, opt, 0, 7)
    stamp_out(a, opt, 0, 8, sWS)
    a("""
    L1_end:
    s_endpgm
    """)
    return a.text(), 65536


def k2(opt):
    a = Asm()
    CAP = 8576
    NODE = 0
    OFF = NPB * 768
    GD = OFF + CAP * 4
    EA = GD + CAP // 2
    CN = (EA + CAP * 8 + 255) & ~255
    MX, FL = CN + 256, CN + 260
    LDS = CN + 512
    LW, LX = EA, EA + 16384
    sX, sW, sU, sG, sO, sWS, sTB = 8, 12, 16, 20, 24, 28, 32
    ZOFF = N * 256
    safe = opt.get("safe")
    a(f"""
    edge_kernel:
    s_cmp_ge_u32 s2, 256
    s_cbranch_scc1 L2_end
    s_load_dwordx2 s[{sWS}:{sWS+1}], s[0:1], 72
    s_load_dwordx2 s[{sX}:{sX+1}], s[0:1], 0
    s_load_dwordx2 s[{sG}:{sG+1}], s[0:1], 48
    s_load_dwordx2 s[{sU}:{sU+1}], s[0:1], 32
    s_load_dwordx2 s[{sO}:{sO+1}], s[0:1], 56
    """)
    stamp(a, opt, 1, 0)
    a(f"""
    v_readfirstlane_b32 s3, v0
    v_and_b32 v1, 63, v0
    s_and_b32 s4, s2, 7
    s_lshl_b32 s4, s4, 5
    s_lshr_b32 s5, s2, 3
    s_add_u32 s4, s4, s5
    s_lshr_b32 s3, s3, 6
    s_mov_b32 s{sX+2}, {N*128}
    s_mov_b32 s{sX+3}, 0x20000
    s_mov_b32 s{sW+2}, 8192
    s_mov_b32 s{sW+3}, 0x20000
    s_mov_b32 s{sG+2}, {132*128}
    s_mov_b32 s{sG+3}, 0x20000
    s_mov_b32 s{sO+2}, {N*128}
    s_mov_b32 s{sO+3}, 0x20000
    s_mov_b32 s{sWS+2}, {WS_SIZE}
    s_mov_b32 s{sWS+3}, 0x20000
    s_mov_b32 s{sTB+2}, {WS_T}
    s_mov_b32 s{sTB+3}, {"0x20000" if safe else "0x800000"}
    s_mov_b32 s61, 0
    s_waitcnt lgkmcnt(0)
    s_add_u32 s{sTB}, s{sWS}, {WS_TB-128}
    s_addc_u32 s{sTB+1}, s{sWS+1}, {0 if safe else 0x40000}
    s_cmp_lt_u32 s3, 8
    s_cselect_b32 s{sW}, s{sG}, s{sU}
    s_cselect_b32 s{sW+1}, s{sG+1}, s{sU+1}
    L2_start:
    """)
    vT = 2
    vG4, vI = 6, 7
    a(f"""
    v_lshrrev_b32 v{vG4}, 4, v1
    v_and_b32 v{vI}, 15, v1
    v_lshlrev_b32 v8, 10, v{vG4}
    s_lshl_b32 s5, s3, 14
    s_lshl_b32 s6, s4, 2
    s_add_u32 s5, s5, s6
    s_add_u32 s5, s5, {WS_T}
    """)
    for u in range(4):
        a(f"buffer_load_dword v{vT+u}, v8, s[{sWS}:{sWS+3}], s5 offen")
        if u < 3:
            a("s_add_u32 s5, s5, 4096")
    a(f"""
    v_lshlrev_b32 v9, 4, v1
    s_lshl_b32 s7, s3, 10
    s_add_u32 m0, s7, {LW}
    s_and_b32 s5, s7, 8191
    buffer_load_dwordx4 v9, s[{sW}:{sW+3}], s5 offen lds
    s_add_u32 m0, s5, {LX}
    s_mul_i32 s6, s4, {NPB*128}
    s_add_u32 s6, s6, s5
    buffer_load_dwordx4 v9, s[{sX}:{sX+3}], s6 offen lds
    v_lshlrev_b32 v10, 1, v1
    s_movk_i32 s5, 0x4000
    """)
    vC = 12
    for k in range(4):
        a(f"buffer_load_ushort v{vC+k}, v10, s[{sG}:{sG+3}], s5 offen offset:{128*k}")
    a(f"""
    v_lshlrev_b32 v10, 2, v0
    v_add_u32 v10, {CN}, v10
    v_mov_b32 v11, 0
    s_cmp_lt_u32 s3, 2
    s_cbranch_scc0 L2_nz
    ds_write_b32 v10, v11
    L2_nz:
    s_mov_b32 s60, 0
    s_waitcnt vmcnt(6)
    """)
    stamp(a, opt, 1, 1)
    vR = 16
    vK = 48
    a(f"""
    L2_round:
    s_mul_i32 s5, s3, {16*SL*12}
    s_add_u32 s5, s5, {WS_REC}
    v_add_u32 v10, s60, v{vI}
    v_add_u32 v11, 16, v10
    v_mul_u32_u24 v8, {SL}, v{vG4}
    v_add_u32 v8, v8, v10
    """)
    for u in range(4):
        a(f"""
        v_lshrrev_b32 v9, 16, v{vT+u}
        v_cmp_lt_u32 s[{44+4*u}:{45+4*u}], v10, v9
        v_cmp_lt_u32 s[{46+4*u}:{47+4*u}], v11, v9
        v_and_b32 v9, 0xffff, v{vT+u}
        v_add_u32 v9, v9, v8
        v_mul_u32_u24 v9, 12, v9
        v_cndmask_b32 v{vK}, 2.0, v9, s[{44+4*u}:{45+4*u}]
        v_cndmask_b32 v{vK+1}, 2.0, v9, s[{46+4*u}:{47+4*u}]
        buffer_load_dwordx3 {vr(vR+8*u,3)}, v{vK}, s[{sWS}:{sWS+3}], s5 offen
        buffer_load_dwordx3 {vr(vR+8*u+4,3)}, v{vK+1}, s[{sWS}:{sWS+3}], s5 offen offset:192
        """)
        if u < 3:
            a(f"s_add_u32 s5, s5, {4*SL*12}")
    a(f"""
    s_waitcnt vmcnt(8) lgkmcnt(0)
    s_barrier
    s_cmp_eq_u32 s60, 0
    s_cbranch_scc0 L2_nojob
    """)
    stamp(a, opt, 1, 2)
    vEA, vBO = 56, 60
    for k in range(4):
        a(f"v_lshlrev_b32 v{vC+k}, 16, v{vC+k}\nv_mul_f32 v{vC+k}, {NLOG2E}, v{vC+k}")
    a(f"""
    v_cvt_pk_bf16_f32 v{vBO}, v{vC}, v{vC+1}
    v_cvt_pk_bf16_f32 v{vBO+1}, v{vC+2}, v{vC+3}
    v_max_u32 v8, v{vT}, v{vT+1}
    v_max3_u32 v8, v8, v{vT+2}, v{vT+3}
    v_lshrrev_b32 v8, 16, v8
    v_cmp_lt_u32 vcc, 32, v8
    s_and_saveexec_b64 s[42:43], vcc
    s_cbranch_execz L2_nomax
    v_mov_b32 v9, {MX}
    ds_max_u32 v9, v8
    L2_nomax:
    s_mov_b64 exec, -1
    """)
    if not opt.get("nopf"):
        a(f"""
        s_lshr_b32 s5, s2, 3
        s_mul_i32 s5, s5, {784*128}
        s_add_u32 s5, s5, {WS_TB}
        v_lshlrev_b32 v8, 7, v0
        s_cmp_lt_u32 s3, 13
        s_cbranch_scc0 L2_nopf
        buffer_load_dword v126, v8, s[{sWS}:{sWS+3}], s5 offen
        L2_nopf:
        """)
    a(f"""
    s_cmp_lt_u32 s3, 8
    s_cbranch_scc1 L2_nojob
    """)
    vA, vW, vM = 64, 72, 104
    gemm_job(a, LW, LX, vA, vW, vM, 8)
    a(f"""
    s_mul_i32 s42, s40, {16*768}
    s_lshl_b32 s43, s41, 7
    s_add_u32 s42, s42, s43
    v_mul_u32_u24 v8, {4*768}, v{vG4}
    v_lshl_add_u32 v8, v{vI}, 3, v8
    v_add_u32 v8, s42, v8
    """)
    for r in range(4):
        t = 64 + 8 * r
        a(f"""
        v_mul_f32 v{vM+r}, {NLOG2E}, v{vM+r}
        v_mul_f32 v{vM+4+r}, {NLOG2E}, v{vM+4+r}
        v_and_b32 v{t}, 0xffff0000, v{vM+r}
        v_and_b32 v{t+1}, 0xffff0000, v{vM+4+r}
        v_sub_f32 v{vM+r}, v{vM+r}, v{t}
        v_sub_f32 v{vM+4+r}, v{vM+4+r}, v{t+1}
        v_cvt_pk_bf16_f32 v{t}, v{t}, v{vM+r}
        v_cvt_pk_bf16_f32 v{t+1}, v{t+1}, v{vM+4+r}
        v_cvt_f64_f32 {vr(t+2,2)}, v{vM+8+r}
        v_cvt_f64_f32 {vr(t+4,2)}, v{vM+12+r}
        ds_write_b64 v8, {vr(t,2)} offset:{768*r}
        ds_write_b64 v8, {vr(t+2,2)} offset:{768*r+256}
        ds_write_b64 v8, {vr(t+4,2)} offset:{768*r+512}
        """)
    a(f"""
    L2_nojob:
    v_mov_b32 v9, 4
    s_mov_b32 s42, {CN}
    s_mov_b32 s43, 0xfc
    v_mov_b32 v8, s42
    s_waitcnt vmcnt(0)
    """)
    stamp(a, opt, 1, 3)
    for j in range(8):
        a(f"""
        s_mov_b64 exec, s[{44+2*j}:{45+2*j}]
        v_and_or_b32 v{vK+j}, v{vR+4*j+2}, s43, v8
        ds_add_rtn_u32 v{vR+4*j+3}, v{vK+j}, v9
        v_and_b32 v{vR+4*j+2}, 0x3fff00, v{vR+4*j+2}
        """)
    a(f"""
    s_mov_b64 exec, -1
    v_lshl_add_u32 v8, v1, 2, s42
    s_waitcnt lgkmcnt(0)
    s_barrier
    """)
    stamp(a, opt, 1, 4)
    a(f"""
    ds_read_b32 v10, v8
    v_cmp_eq_u32 vcc, {NPB}, v1
    s_waitcnt lgkmcnt(0)
    v_add_u32 v11, 28, v10
    v_and_b32 v11, 0xffffffe0, v11
    v_cndmask_b32 v11, v11, 32, vcc
    v_mov_b32 v12, v11
    """)
    scan64(a, 12)
    a(f"""
    v_sub_u32 v12, v12, v11
    s_mov_b32 s43, {EA}
    s_nop 0
    v_readlane_b32 s40, v12, {NPB}
    """)
    for j in range(8):
        a(f"ds_bpermute_b32 v{vK+j}, v{vK+j}, v12")
    a(f"""
    s_add_u32 s40, s40, 32
    s_lshr_b32 s40, s40, 6
    v_min_u32 v13, {NPB-1}, v1
    v_mul_u32_u24 v13, 768, v13
    s_lshl_b32 s5, s3, 5
    L2_gd:
    v_cmp_lt_u32 vcc, s5, v11
    s_and_saveexec_b64 s[6:7], vcc
    s_cbranch_execz L2_gdd
    v_add_u32 v14, s5, v12
    v_lshrrev_b32 v14, 3, v14
    v_add_u32 v14, {GD}, v14
    ds_write_b32 v14, v13
    s_add_u32 s5, s5, 512
    s_branch L2_gd
    L2_gdd:
    s_mov_b64 exec, -1
    s_lshl_b32 s5, s3, 2
    v_add_u32 v14, s5, v10
    v_cmp_lt_u32 vcc, v14, v11
    s_and_saveexec_b64 s[6:7], vcc
    s_cbranch_execz L2_nopad
    v_add_u32 v14, v14, v12
    v_and_b32 v13, 32, v14
    v_lshlrev_b32 v13, 2, v13
    v_add_u32 v13, {ZOFF}, v13
    ds_write_b32 v14, v13 offset:{OFF}
    v_lshl_add_u32 v14, v14, 1, s43
    v_mov_b64 v[10:11], 0
    ds_write_b64 v14, v[10:11]
    L2_nopad:
    s_waitcnt lgkmcnt(0)
    """)
    for j in range(8):
        p = vR + 4 * j + 3
        a(f"""
        s_mov_b64 exec, s[{44+2*j}:{45+2*j}]
        v_add_u32 v{p}, v{p}, v{vK+j}
        v_and_b32 v{vK+j}, 32, v{p}
        v_lshl_or_b32 v{p-1}, v{vK+j}, 2, v{p-1}
        ds_write_b32 v{p}, v{p-1} offset:{OFF}
        v_lshl_add_u32 v{vK+j}, v{p}, 1, s43
        ds_write_b64 v{vK+j}, {vr(p-3,2)}
        """)
    vAO, vAE, vAG, vN8 = 8, 9, 10, 11
    vS = 12
    a(f"""
    s_mov_b64 exec, -1
    v_lshrrev_b32 v14, 5, v1
    v_xor_b32 v15, 1, v14
    s_lshl_b32 s5, s3, 6
    v_lshl_add_u32 v{vAO}, v15, 5, s5
    s_lshl_b32 s5, s3, 3
    s_add_u32 s5, s5, {GD}
    v_lshl_add_u32 v{vAG}, v15, 2, s5
    v_and_b32 v{vN8}, 31, v1
    v_bfe_u32 v16, v1, 2, 1
    v_and_b32 v17, 1, v1
    v_cmp_eq_u32 vcc, v16, v14
    v_mov_b32 v18, 0x3f803f80
    v_xor_b32 v16, 1, v16
    v_cndmask_b32 v18, 0, v18, vcc
    v_cmp_eq_u32 vcc, 0, v17
    v_lshlrev_b32 v16, 3, v16
    v_lshrrev_b32 v19, 3, v{vN8}
    v_cndmask_b32 v{vEA+2}, 0, v18, vcc
    v_cndmask_b32 v{vEA+3}, v18, 0, vcc
    v_lshl_add_u32 v16, v19, 1, v16
    v_bfe_u32 v19, v1, 1, 1
    v_add_u32 v16, v16, v19
    s_lshl_b32 s5, s3, 7
    s_add_u32 s5, s5, {EA}
    v_lshl_add_u32 v{vAE}, v16, 3, s5
    v_lshlrev_b32 v{vN8}, 3, v{vN8}
    v_mov_b64 {vr(vEA,2)}, 0
    v_mov_b64 {vr(vS,2)}, 0
    s_mov_b32 s56, 0x55555555
    s_mov_b32 s57, 0xaaaaaaaa
    s_waitcnt lgkmcnt(0)
    s_barrier
    """)
    stamp(a, opt, 1, 5)
    if opt.get("stamps"): a("s_memtime s[84:85]")
    a(f"""
    s_cmp_eq_u32 s3, 0
    s_cbranch_scc0 L2_nz2
    v_lshl_add_u32 v14, v1, 2, s42
    ds_write_b32 v14, v{vS}
    L2_nz2:
    """)
    vGA, vGB, vH, vDD, vOF = 64, 80, 96, 112, 16
    vNA = (24, 25)
    vGDt = 26
    vP, vNn, vRc, vF = 28, 30, 32, 34
    vL4 = 27

    def rd_off(step):
        a(f"ds_read_b128 {vr(vOF,4)}, v{vAO} offset:{OFF+1024*step}")
        a(f"ds_read_b128 {vr(vOF+4,4)}, v{vAO} offset:{OFF+1024*step+16}")

    def gathers(g):
        if opt.get("nog"):
            return
        for r in range(8):
            if safe:
                a(f"v_add_u32 v{vOF+r}, v{vOF+r}, v{vL4}")
            a(f"buffer_load_dword v{g+2*r}, v{vOF+r}, s[{sTB}:{sTB+3}], 0 offen")
            a(f"buffer_load_dword v{g+2*r+1}, v{vOF+r}, s[{sTB}:{sTB+3}], 0 offen offset:128")

    def rd_gd_ea(step):
        a(f"ds_read_b32 v{vGDt}, v{vAG} offset:{128*step}")
        a(f"s_mov_b64 exec, s[56:57]\nds_read_b64 {vr(vEA,2)}, v{vAE} offset:{2048*step}\ns_mov_b64 exec, -1")

    def rd_apk(na):
        a(f"v_add_u32 v{na}, v{vGDt}, v{vN8}\nds_read_b64 {vr(vBO+2,2)}, v{na}")

    a(f"""
    v_lshlrev_b32 v{vL4}, 2, v1
    s_sub_u32 s41, s40, s3
    s_cbranch_scc1 L2_mdone
    s_add_u32 s41, s41, 15
    s_lshr_b32 s41, s41, 4
    s_cbranch_scc0 L2_mdone
    """)
    rd_off(0)
    rd_gd_ea(0)
    a("s_waitcnt lgkmcnt(2)")
    gathers(vGA)
    rd_off(1)
    a("s_waitcnt lgkmcnt(3)")
    rd_apk(vNA[0])
    a("s_cmp_lt_u32 s41, 2\ns_cbranch_scc1 L2_p1\ns_waitcnt lgkmcnt(1)")
    gathers(vGB)
    a("L2_p1:")
    rd_off(2)
    a("s_waitcnt lgkmcnt(0)\ns_cmp_eq_u32 s61, 0\ns_cbranch_scc0 L2_slow")

    def unit(tag, g, par, slow):
        na, nb = vNA[par], vNA[1 - par]
        a(f"""
        s_cmp_lt_u32 s41, 2
        s_cbranch_scc0 {tag}_w
        s_waitcnt vmcnt(0)
        {tag}_w:
        s_waitcnt vmcnt(16) lgkmcnt(2)
        {"s_setprio 3" if opt.get("prio") else ""}
        v_mfma_f32_32x32x16_bf16 {vr(vDD,16)}, {vr(vEA,4)}, {vr(vBO,4)}, {vr(g,16)}
        """)
        if opt.get("shfirst"):
            mf = a.l.pop()
        for r in range(8):
            a(f"v_lshlrev_b64 {vr(vH+2*r,2)}, 16, {vr(g+2*r,2)}")
        if opt.get("shfirst"):
            a.l.append(mf)
            a("s_nop 3")
        if opt.get("prio"):
            if opt["prio"]>1: a("v_mov_b32 v14, 0")
            a("s_setprio 0")
        a(f"s_cmp_lt_u32 s41, 3\ns_cbranch_scc1 {tag}_ng")
        gathers(g)
        a(f"{tag}_ng:")
        rd_gd_ea(par + 1)
        rd_off(par + 3)
        if par == 1:
            a(f"v_add_u32 v{vAO}, 2048, v{vAO}\nv_add_u32 v{vAE}, 4096, v{vAE}\nv_add_u32 v{vAG}, 256, v{vAG}")
        T = lambda r: vr(vDD + 2 * r, 2)
        H = lambda r: vr(vH + 2 * r, 2)
        P, Nn = vr(vP, 2), vr(vNn, 2)

        def ex(r):
            if opt.get("noex"): return
            a(f"v_exp_f32 v{vDD+2*r}, v{vDD+2*r}\nv_exp_f32 v{vDD+2*r+1}, v{vDD+2*r+1}")
        ex(0)
        ex(1)
        if not slow:
            a(f"v_pk_add_f32 {P}, {T(0)}, 1.0 op_sel_hi:[1,0]")
            ex(2)
            a(f"v_pk_fma_f32 {Nn}, {H(0)}, {T(1)}, {H(0)}")
            a(f"v_pk_fma_f32 {Nn}, {H(1)}, {P}, {Nn}")
            a(f"v_pk_fma_f32 {P}, {P}, {T(1)}, {P}")
            for r in range(2, 8):
                if r < 7:
                    ex(r + 1)
                if r == 3:
                    a("s_waitcnt lgkmcnt(3)")
                    rd_apk(nb)
                a(f"v_pk_fma_f32 {Nn}, {Nn}, {T(r)}, {Nn}")
                a(f"v_pk_fma_f32 {Nn}, {H(r)}, {P}, {Nn}")
                a(f"v_pk_fma_f32 {P}, {P}, {T(r)}, {P}")
            a(f"""
            v_rcp_f32 v{vRc}, v{vP}
            v_rcp_f32 v{vRc+1}, v{vP+1}
            v_pk_add_f32 {vr(vS,2)}, {vr(vS,2)}, {P}
            v_pk_mul_f32 {Nn}, {Nn}, {vr(vRc,2)}
            """)
        else:
            for r in range(2, 8):
                ex(r)
            a("s_waitcnt lgkmcnt(3)")
            rd_apk(nb)
            a(f"v_mov_b64 {Nn}, 0")
            for r in range(8):
                a(f"v_pk_add_f32 {T(r)}, {T(r)}, 1.0 op_sel_hi:[1,0]")
                a(f"v_rcp_f32 v{vDD+2*r}, v{vDD+2*r}\nv_rcp_f32 v{vDD+2*r+1}, v{vDD+2*r+1}\ns_nop 0")
                a(f"v_pk_fma_f32 {Nn}, {H(r)}, {T(r)}, {Nn}")
        a(f"""
        v_cvt_f64_f32 {vr(vF,2)}, v{vNn}
        v_cvt_f64_f32 {vr(vF+2,2)}, v{vNn+1}
        ds_add_f64 v{na}, {vr(vF,2)} offset:256
        ds_add_f64 v{na}, {vr(vF+2,2)} offset:512
        s_sub_u32 s41, s41, 1
        s_cmp_eq_u32 s41, 0
        """)

    def loop(tag, slow):
        a(f"{tag}:")
        unit(tag + "a", vGA, 0, slow)
        a("s_cbranch_scc1 L2_mdone")
        unit(tag + "b", vGB, 1, slow)
        a(f"s_cbranch_scc0 {tag}")

    loop("L2_fast", False)
    a(f"""
    L2_mdone:
    v_mov_b32 v14, {MX}
    ds_read_b32 v15, v14
    v_add_f32 v{vS}, v{vS}, v{vS+1}
    v_cmp_ngt_f32 vcc, 0x7e000000, v{vS}
    """)
    a(f"""
    s_and_saveexec_b64 s[6:7], vcc
    s_cbranch_execz L2_sok
    ds_write_b32 v14, v14 offset:4
    L2_sok:
    s_mov_b64 exec, -1
    s_waitcnt lgkmcnt(0)
    v_readfirstlane_b32 s5, v15
    s_add_u32 s60, s60, 32
    s_cmp_lt_u32 s60, s5
    s_cbranch_scc1 L2_round
    """)
    stamp(a, opt, 1, 6)
    a(f"""
    v_lshrrev_b32 v8, 4, v0
    v_mul_u32_u24 v9, 768, v8
    v_lshl_add_u32 v9, v{vI}, 5, v9
    v_lshlrev_b32 v10, 3, v0
    s_mul_i32 s5, s4, {NPB*128}
    s_barrier
    """)
    stamp(a, opt, 1, 7)
    if opt.get("stamps"): a("s_memtime s[86:87]")
    a(f"""
    v_cmp_gt_u32 vcc, {NPB*16}, v0
    s_and_saveexec_b64 s[6:7], vcc
    s_cbranch_execz L2_noout
    ds_read_b128 v[16:19], v9 offset:256
    ds_read_b128 v[20:23], v9 offset:272
    s_waitcnt lgkmcnt(0)
    """)
    for i in range(4):
        a(f"v_cvt_f32_f64 v{24+i}, {vr(16+2*i,2)}")
    for i in range(4):
        a(f"v_mul_f32 v{28+i}, {NLOG2E}, v{24+i}")
    for i in range(4):
        a(f"v_exp_f32 v{28+i}, v{28+i}")
    a("v_add_f32 v16, v24, v25\nv_add_f32 v17, v26, v27")
    for i in range(4):
        a(f"v_add_f32 v{28+i}, 1.0, v{28+i}")
    for i in range(4):
        a(f"v_rcp_f32 v{28+i}, v{28+i}")
    a("v_add_f32 v16, v16, v17\nv_mov_b32 v17, 0x207")
    for i in range(4):
        a(f"v_mul_f32 v{28+i}, v{28+i}, v{24+i}")
    a(f"""
    v_cvt_pk_bf16_f32 v28, v28, v29
    v_cvt_pk_bf16_f32 v29, v30, v31
    buffer_store_dwordx2 v[28:29], v10, s[{sO}:{sO+3}], s5 offen
    v_cmp_class_f32 vcc, v16, v17
    s_and_b64 exec, exec, vcc
    s_cbranch_execz L2_noout
    ds_write_b32 v14, v14 offset:4
    L2_noout:
    s_mov_b64 exec, -1
    s_cmp_eq_u32 s61, 0
    s_cbranch_scc0 L2_fin
    s_waitcnt lgkmcnt(0)
    s_barrier
    ds_read_b32 v15, v14 offset:4
    s_waitcnt lgkmcnt(0)
    v_readfirstlane_b32 s5, v15
    s_cmp_eq_u32 s5, {"s5" if opt.get("nog") or opt.get("noex") else 0}
    s_cbranch_scc1 L2_fin
    s_mov_b32 s61, 1
    s_waitcnt vmcnt(0)
    s_barrier
    s_branch L2_start
    L2_fin:
    """)
    stamp(a, opt, 1, 8)
    if opt.get("stamps"):
        a("s_waitcnt vmcnt(0)")
        stamp(a, opt, 1, 9)
    stamp_out(a, opt, 1, 12, sWS)
    a("""
    L2_end:
    s_endpgm
    """)
    loop("L2_slow", True)
    a("s_branch L2_mdone")
    return a.text(), LDS


def kd(name, vgpr):
    return f""".p2align 6
.amdhsa_kernel {name}
  .amdhsa_next_free_vgpr {vgpr}
  .amdhsa_next_free_sgpr 96
  .amdhsa_accum_offset {vgpr}
  .amdhsa_group_segment_fixed_size 0
  .amdhsa_kernarg_size 80
  .amdhsa_user_sgpr_count 2
  .amdhsa_user_sgpr_kernarg_segment_ptr 1
  .amdhsa_system_sgpr_workgroup_id_x 1
.end_amdhsa_kernel
"""


def gen(opt):
    t1, l1 = k1(opt)
    t2, l2 = k2(opt)
    ref = open(f"cdna_kernels/{NAME}.s.ref").read().split("\n")
    head = [x for x in ref[:11]]
    out = "\n".join(head) + "\n"
    out += f"; @launch kernel=part_kernel grid=(256,1,1) block=(1024,1,1) lds={l1}\n"
    out += f"; @launch kernel=edge_kernel grid=(256,1,1) block=(1024,1,1) lds={l2}\n"
    out += '.amdgcn_target "amdgcn-amd-amdhsa--gfx950"\n.text\n'
    for nm, t in (("part_kernel", t1), ("edge_kernel", t2)):
        out += f".globl {nm}\n.p2align 8\n.type {nm},@function\n" + t
    out += '.section .rodata,"a"\n' + kd("part_kernel", 72) + kd("edge_kernel", 128)
    return out


if __name__ == "__main__":
    opt = {}
    for x in sys.argv[2:]:
        k, _, v = x.partition("=")
        opt[k] = int(v) if v else 1
    open(sys.argv[1], "w").write(gen(opt))
```

```python
import sys, gen
def mk(src, out, regime, A=None, B=None):
    s=open(src).read()
    lines=s.split("\n")
    idx=[i for i,l in enumerate(lines) if l.startswith("; @launch")]
    if "kernel=" not in lines[idx[0]]:
        lines[idx[0]]=lines[idx[0]].replace("@launch ","@launch kernel="+gen.NAME+"_kernel ")
    lines.insert(idx[-1]+1,"; @launch kernel=spin_kernel grid=(1,1,1) block=(64,1,1) lds=0")
    s="\n".join(lines)
    def red(x, dst):
        o=[]
        wgs=x[4] if len(x)>4 else list(range(8))+list(range(240,248))
        for j,wg in enumerate(wgs):
            off=gen.WS_DBG + x[0]*(1<<20) + (wg*16+(x[3] if len(x)>3 else 0))*64 + x[1]*4
            o.append(f" s_add_u32 s10, s4, {off}\n s_addc_u32 s11, s5, 0\n s_load_dword s{32+j}, s[10:11], 0")
        o.append(" s_waitcnt lgkmcnt(0)")
        o.append(f" s_mov_b32 s{dst}, s32")
        for j in range(1,16): o.append(f" s_{x[2]}_u32 s{dst}, s{dst}, s{32+j}")
        return "\n".join(o)
    body=f""".globl spin_kernel
.p2align 8
.type spin_kernel,@function
spin_kernel:
 s_cmp_ge_u32 s2, 1
 s_cbranch_scc1 Ls_end
 s_memrealtime s[16:17]
 s_load_dwordx2 s[4:5], s[0:1], 72
 s_mov_b32 s6, 0x10000000
 s_mov_b32 s7, 0x20000
 v_mov_b32 v1, {48<<20}
 v_mov_b32 v3, 0x5eed1234
 s_waitcnt lgkmcnt(0)
 buffer_load_dword v2, v1, s[4:7], 0 offen
 s_waitcnt vmcnt(0)
 buffer_store_dword v3, v1, s[4:7], 0 offen
 v_readfirstlane_b32 s20, v2
 s_nop 3
 s_cmp_eq_u32 s20, 0x5eed1234
 s_cbranch_scc{0 if regime=='R' else 1} Ls_end
{red(A,8) if A else " s_mov_b32 s8, s16"}
{red(B,9) if B else " s_mov_b32 s9, s16"}
 s_sub_u32 s8, s9, s8
 s_min_u32 s8, s8, 10000
 s_lshl_b32 s8, s8, 3
 s_add_u32 s8, s8, 4000
Ls_loop:
 s_memrealtime s[18:19]
 s_waitcnt lgkmcnt(0)
 s_sub_u32 s18, s18, s16
 s_cmp_lt_u32 s18, s8
 s_cbranch_scc1 Ls_loop
Ls_end:
 s_endpgm
"""
    s=s.replace('.section .rodata,"a"\n',body+'.section .rodata,"a"\n'+gen.kd("spin_kernel",8))
    open(out,"w").write(s)
```

```python
import sys; sys.path.insert(0,'work')
import os; os.chdir('work')
from mkspin3 import mk
O=list(range(16,24))+list(range(240,248)); C=list(range(16)); A=list(range(8))+list(range(240,248))
S={'O':O,'C':C,'A':A}
f,reg=sys.argv[1],sys.argv[2]
for i,sp in enumerate(sys.argv[3:]):
    if sp=='base': mk(f,f"y{i}.s",reg); continue
    if sp=='skew': mk(f,f"y{i}.s",reg,(0,0,'min',0),(0,0,'max',15)); continue
    p=sp.split(':')
    mk(f,f"y{i}.s",reg,(0,0,'max',15),(0,int(p[0]),p[1],int(p[3]) if len(p)>3 else 0,S[p[2]]))
```

```python
import sys

NAME = "gather_scatter__edge_featured_mpnn_egc__graph"
N, E = 12500, 800000
NPB = 49
SL = 3136
WS_T = 4 << 20
WS_K = 5 << 20
WS_E = 9 << 20
WS_DBG = 32 << 20
NLOG2E = "0xbfb8aa3b"

CN2 = 0
GC, MORE, FL, ABORT = 256, 260, 264, 268
CNT, BASE = 512, 1536
NODE = 2560
GD = NODE + NPB * 768
OFF = GD + 6400
BS = 528
EA = OFF + 26112
LWA = EA + 51840
LX = LWA + 16384
LC = LX + 7168
LDS = LX + 8192
KEYS, EAIN, TBS, LWB = 40192, 53504, 80128, 96512
ZOFF = N * 8


class Asm:
    def __init__(self):
        self.l = []

    def __call__(self, s):
        for x in s.split("\n"):
            x = x.strip()
            if x:
                self.l.append(("" if x.endswith(":") else "    ") + x)

    def text(self):
        return "\n".join(self.l) + "\n"


def vr(a, n):
    return f"v[{a}:{a+n-1}]"


def sr(a, n=4):
    return f"s[{a}:{a+n-1}]"


def kernel(opt):
    a = Asm()
    for k, v in (("b1", 4), ("b0", 1), ("pf3", 12), ("rpf", 1), ("sb", 0), ("jf", 1), ("wp", 3), ("tp", 2), ("wpf", 1), ("early", 1), ("sl", 0)):
        opt.setdefault(k, v)
    safe = opt.get("safe")
    EARLY = opt["early"]
    NC = opt.get("nc", 64)

    def stamp(i, clk="real"):
        if opt.get("stamps"):
            a(f"s_mem{clk}time s[94:95]\ns_waitcnt lgkmcnt(0)\nv_writelane_b32 v127, s94, {i}")

    sDST, sSRC, sEA, sX, sWB, sWA, sG, sWS, sTB, sO, sDB = 8, 12, 16, 20, 24, 28, 32, 36, 64, 68, 72
    SC = "sc1"
    sd = "dst_sel:DWORD dst_unused:UNUSED_PAD src0_sel:DWORD"
    vXA, vWA, vG4, vI = 124, 125, 126, 6
    vD, vS, vB, vR, vL = 8, 12, 16, 20, 24
    vA, vW, vM = 64, 72, 104
    vBO, vEA = 60, 56
    vAH, vAM, vEM, vEC, vN8, vTA, vPF = 48, 49, 50, 51, 52, 53, 54
    vAH0, vAM0, vE0 = 120, 121, 122
    vT = 2

    a(f"""
    {NAME}_kernel:
    s_cmp_ge_u32 s2, 256
    s_cbranch_scc1 L_end
    s_load_dwordx2 s[{sDST}:{sDST+1}], s[0:1], 24
    s_load_dwordx2 s[{sWS}:{sWS+1}], s[0:1], 72
    s_load_dwordx2 s[{sSRC}:{sSRC+1}], s[0:1], 16
    s_load_dwordx2 s[{sEA}:{sEA+1}], s[0:1], 8
    s_load_dwordx2 s[{sX}:{sX+1}], s[0:1], 0
    s_load_dwordx2 s[{sG}:{sG+1}], s[0:1], 48
    s_load_dwordx2 s[{sWB}:{sWB+1}], s[0:1], 40
    s_load_dwordx2 s[{sWA}:{sWA+1}], s[0:1], 32
    s_load_dwordx2 s[{sO}:{sO+1}], s[0:1], 56
    s_load_dwordx2 s[{sDB}:{sDB+1}], s[0:1], 64
    """)
    if opt.get("stamps"):
        a("s_memrealtime s[92:93]")
    a(f"""
    v_readfirstlane_b32 s3, v0
    v_and_b32 v1, 63, v0
    v_lshlrev_b32 v2, 2, v0
    v_mov_b64 v[40:41], 0
    v_mov_b64 v[42:43], 0
    ds_write_b32 v2, v40
    s_cmp_lt_u32 s2, 255
    s_movk_i32 s5, 784
    s_cselect_b32 s5, s5, 80
    v_cmp_gt_u32 s[44:45], s5, v0
    v_lshlrev_b32 v4, 4, v0
    v_lshlrev_b32 v7, 4, v1
    s_lshr_b32 s3, s3, 6
    v_cndmask_b32 v5, 2.0, v4, s[44:45]
    s_mul_i32 s6, s2, {SL*4}
    s_lshl_b32 s7, s3, 10
    s_lshl_b32 s79, s2, 10
    s_add_u32 s79, s79, {WS_T}
    s_lshl_b32 s5, s7, {4 if NC == 16 else 6}
    s_add_u32 s5, s5, s79
    {"" if NC == 16 else "s_sub_u32 s5, s5, %d" % (12 << 16)}
    """)
    for s, sz in ((sDST, E * 4), (sWS, (64 if opt.get("stamps") else 16) << 20), (sSRC, E * 4), (sEA, E * 8),
                  (sX, N * 128), (sG, 132 * 128), (sWB, 8192), (sWA, 8192), (sO, N * 128), (sDB, 256)):
        a(f"s_mov_b32 s{s+2}, {sz}\ns_mov_b32 s{s+3}, 0x20000")
    a(f"""
    {"" if NC == 16 else "s_cmp_lt_u32 s3, 12"}
    {"s_mov_b32 s42, s2" if NC == 16 else "s_cselect_b32 s42, 64, s2"}
    s_cmp_lt_u32 s42, {NC}
    s_waitcnt lgkmcnt(0)
    s_cbranch_scc0 L_noclr
    buffer_store_dwordx4 v[40:43], v7, {sr(sWS)}, s5 offen {SC}
    L_noclr:
    """)
    if opt["wpf"]:
        a(f"""
        s_cmp_eq_u32 s3, 14
        s_cbranch_scc0 L_nowpf
        s_lshr_b32 s42, s2, 3
        s_lshl_b32 s42, s42, 8
        s_mul_i32 s43, s42, 3
        v_lshlrev_b32 v55, 7, v1
        s_mov_b64 exec, 3
        buffer_load_dword v54, v55, {sr(sWA)}, s42 offen
        buffer_load_dword v53, v55, {sr(sWB)}, s42 offen
        s_mov_b64 exec, 63
        buffer_load_dword v52, v55, {sr(sG)}, s43 offen
        s_mov_b64 exec, -1
        L_nowpf:
        """)
    a(f"buffer_load_dwordx4 {vr(vD,4)}, v5, {sr(sDST)}, s6 offen")
    if opt.get("stamps"):
        a("v_writelane_b32 v127, s92, 0")
    stamp(13)
    srcld = f"buffer_load_dwordx4 {vr(vS,4)}, v5, {sr(sSRC)}, s6 offen"
    a(f"""
    s_and_b32 s4, s2, 7
    s_lshl_b32 s4, s4, 5
    s_lshr_b32 s5, s2, 3
    s_add_u32 s4, s4, s5
    s_mul_i32 s63, s4, {NPB*128}
    s_mov_b32 s{sTB}, s{sWS}
    s_or_b32 s{sTB+1}, s{sWS+1}, {0 if safe else 0x80000000}
    s_mov_b32 s{sTB+2}, {WS_T}
    s_mov_b32 s{sTB+3}, {"0x20000" if safe else "0xc00000"}
    s_add_u32 s42, s{sG}, 8192
    s_addc_u32 s43, s{sG+1}, 0
    s_cmp_lt_u32 s3, 8
    s_cselect_b32 s{sWB}, s42, s{sWB}
    s_cselect_b32 s{sWB+1}, s43, s{sWB+1}
    s_cselect_b32 s{sWA}, s{sG}, s{sWA}
    s_cselect_b32 s{sWA+1}, s{sG+1}, s{sWA+1}
    s_mov_b32 s5, {LWB}
    s_bfe_u32 s40, s3, 0x20001
    s_and_b32 s41, s3, 1
    v_and_b32 v31, 0x70, v0
    v_xor_b32 v31, v31, v7
    v_xor_b32 v31, 64, v31
    v_and_b32 v32, 16, v0
    v_and_b32 v33, 64, v0
    v_lshl_or_b32 v32, v32, 1, v33
    v_xor_b32 v47, v32, v7
    s_add_u32 m0, s7, {LWB}
    s_and_b32 s59, s7, 8191
    buffer_load_dwordx4 v47, {sr(sWB)}, s59 offen lds
    s_add_u32 m0, s7, {LX - 9*1024}
    s_add_u32 s42, s63, s7
    s_sub_u32 s42, s42, {9*1024}
    s_cmp_lt_u32 s3, 9
    s_cbranch_scc1 L_nox
    buffer_load_dwordx4 v31, {sr(sX)}, s42 offen lds
    L_nox:
    v_and_b32 v{vI}, 15, v1
    v_lshrrev_b32 v{vG4}, 4, v1
    s_lshl_b32 s42, s40, 11
    s_add_u32 s42, s42, {LX}
    v_lshrrev_b32 v2, 1, v{vI}
    v_xor_b32 v2, v2, v{vG4}
    v_lshlrev_b32 v2, 4, v2
    v_lshl_add_u32 v{vXA}, v{vI}, 7, v2
    v_add_u32 v{vXA}, s42, v{vXA}
    v_lshrrev_b32 v{vWA}, 2, v{vI}
    v_lshl_add_u32 v{vWA}, v{vG4}, 3, v{vWA}
    v_bfe_u32 v2, v1, 3, 2
    v_xor_b32 v2, s41, v2
    v_lshl_add_u32 v{vWA}, v{vWA}, 2, v2
    v_and_b32 v2, 3, v1
    v_lshl_add_u32 v{vWA}, v{vWA}, 2, v2
    v_lshl_add_u32 v{vWA}, v{vWA}, 3, s5
    v_subrev_u32 v30, 3072, v4
    s_movk_i32 s43, {784*16}
    v_cmp_gt_u32 vcc, s43, v30
    v_lshlrev_b32 v28, 16, v0
    v_mov_b32 v3, 4
    v_cndmask_b32 v30, 2.0, v30, vcc
    v_lshlrev_b32 v2, 3, v0
    s_mov_b32 s52, -{NPB}
    s_movk_i32 s54, 0x4000
    s_mov_b32 s55, 0x8000
    s_mov_b32 s56, 0xc000
    s_mov_b32 s61, 0
    s_mov_b32 s62, 0
    s_mov_b32 s53, {NLOG2E}
    s_movk_i32 s58, 0x61ff
    {srcld if opt["sb"] else ""}
    s_lshl_b32 s42, s6, 1
    s_add_u32 s42, s42, s7
    s_add_u32 m0, s7, {EAIN}
    s_cmp_lt_u32 s3, 9
    s_barrier
    {"" if opt["sb"] else srcld}
    s_cbranch_scc0 L_w0
    s_waitcnt vmcnt(2)
    L_w0:
    s_waitcnt vmcnt(3)
    """)
    stamp(5)
    a("s_mov_b64 exec, s[44:45]\ns_cbranch_execz L_norank")
    for k in range(4):
        a(f"""
        v_mul_u32_u24 v{vL+k}, 21400, v{vD+k}
        v_lshrrev_b32 v{vL+k}, 20, v{vL+k}
        v_lshlrev_b32 v{vB+k}, 2, v{vL+k}
        ds_add_rtn_u32 v{vR+k}, v{vB+k}, v3 offset:{CNT}
        """)
    a(f"""
    L_norank:
    s_mov_b64 exec, -1
    buffer_load_dwordx4 v7, {sr(sEA)}, s42 offen lds
    s_cmp_lt_u32 s3, 9
    s_cbranch_scc0 L_xldb
    s_add_u32 m0, s7, {EAIN+16384}
    s_add_u32 s42, s42, 16384
    buffer_load_dwordx4 v7, {sr(sEA)}, s42 offen lds
    L_xldb:
    s_waitcnt lgkmcnt(0)
    s_barrier
    """)
    stamp(1)

    a(f"""
    s_sub_u32 s43, s3, 13
    s_cmp_lt_u32 s43, 2
    s_cbranch_scc1 L_sig
    s_cmp_eq_u32 s3, 0
    s_cbranch_scc0 L_noscan
    ds_read_b128 v[32:35], v7 offset:{CNT}
    s_waitcnt lgkmcnt(0)
    v_add_u32 v44, v32, v33
    v_add_u32 v45, v44, v34
    v_add_u32 v46, v45, v35
    v_mov_b32 v36, v46
    """)
    for sh in (1, 2, 4, 8):
        a(f"s_nop 1\nv_add_u32_dpp v36, v36, v36 row_shr:{sh} row_mask:0xf bank_mask:0xf bound_ctrl:0")
    a(f"""
    s_nop 1
    v_add_u32_dpp v36, v36, v36 row_bcast:15 row_mask:0xa bank_mask:0xf
    s_nop 1
    v_add_u32_dpp v36, v36, v36 row_bcast:31 row_mask:0xc bank_mask:0xf
    v_sub_u32 v36, v36, v46
    v_add_u32 v36, 0x40000, v36
    v_add_u32 v37, v36, v32
    v_add_u32 v38, v36, v44
    v_add_u32 v39, v36, v45
    v_lshl_add_u32 v36, v32, 16, v36
    v_lshl_add_u32 v37, v33, 16, v37
    v_lshl_add_u32 v38, v34, 16, v38
    v_lshl_add_u32 v39, v35, 16, v39
    ds_write_b128 v7, v[36:39] offset:{BASE}
    L_noscan:
    """)
    for k in range(4):
        a(f"v_mad_i32_i24 v{vL+k}, v{vL+k}, s52, v{vD+k}\nv_lshl_or_b32 v{vL+k}, v{vL+k}, 26, v28")
    a("s_waitcnt lgkmcnt(0)\ns_barrier")
    stamp(2)
    a("s_mov_b64 exec, s[44:45]\ns_cbranch_execz L_nosc")
    for k in range(4):
        a(f"ds_read_u16 v{vB+k}, v{vB+k} offset:{BASE}")
    a(f"""
    s_bitcmp1_b32 s58, s3
    s_cbranch_scc1 L_w1
    s_waitcnt vmcnt(1)
    L_w1:
    s_waitcnt vmcnt(2)
    v_or_b32 v{vS}, v{vS}, v{vL}
    v_or3_b32 v{vS+1}, v{vS+1}, v{vL+1}, s54
    v_or3_b32 v{vS+2}, v{vS+2}, v{vL+2}, s55
    v_or3_b32 v{vS+3}, v{vS+3}, v{vL+3}, s56
    """)
    for k in range(4):
        a(f"""
        s_waitcnt lgkmcnt(3)
        v_add_u32 v{vB+k}, v{vB+k}, v{vR+k}
        ds_write_b32 v{vB+k}, v{vS+k} offset:{KEYS}
        """)
    a("L_nosc:\ns_mov_b64 exec, -1")
    a("s_bitcmp1_b32 s58, s3\ns_cbranch_scc1 L_w2\ns_waitcnt vmcnt(1)\nL_w2:\ns_waitcnt vmcnt(2)")
    a(f"""
    s_mul_i32 s42, s2, {SL*8}
    s_add_u32 s42, s42, {WS_E}
    s_add_u32 s57, s6, {WS_K}
    s_add_u32 s5, s42, 16384
    s_waitcnt lgkmcnt(0)
    s_barrier
    """)
    stamp(3)

    wa = f"s_add_u32 m0, s7, {LWA}\ns_nop 0\nbuffer_load_dwordx4 v47, {sr(sWA)}, s59 offen lds"

    def keys_out():
        a(f"""
        ds_read_b128 v[20:23], v4 offset:{KEYS-3072}
        ds_read_b64 v[8:9], v2 offset:{KEYS}
        ds_read_b64 v[10:11], v2 offset:{KEYS+8192}
        """)
        if opt["wp"] == 2:
            a(wa)
        a(f"""
        v_cmp_gt_u32 vcc, {1568-1024}, v0
        s_waitcnt lgkmcnt(2)
        buffer_store_dwordx4 v[20:23], v30, {sr(sWS)}, s57 offen {SC}
        s_waitcnt lgkmcnt(0)
        """)
        for k in range(4):
            a(f"v_lshrrev_b32 v{8+k}, 11, v{8+k}\nv_and_b32 v{8+k}, 0x7ff8, v{8+k}")
    if not opt["jf"]:
        keys_out()

    def gemm(wofs):
        a(f"""
        v_xor_b32 v{vM}, 64, v{vXA}
        v_xor_b32 v{vM+1}, 64, v{vWA}
        ds_read_b128 {vr(vA,4)}, v{vXA}
        ds_read_b128 {vr(vA+4,4)}, v{vM}
        """)
        idx = 0
        for M in range(2):
            for t in range(2):
                for s in range(2):
                    for j2 in range(2):
                        a(f"ds_read_b64_tr_b16 {vr(vW+2*idx,2)}, v{vM+1 if t else vWA} offset:{wofs+M*8192+s*4096+j2*512}")
                        idx += 1
        for q in range(4):
            a(f"s_waitcnt lgkmcnt({12-4*q})")
            a(f"v_mfma_f32_16x16x32_bf16 {vr(vM+4*q,4)}, {vr(vA,4)}, {vr(vW+8*q,4)}, 0")
            a(f"v_mfma_f32_16x16x32_bf16 {vr(vM+4*q,4)}, {vr(vA+4,4)}, {vr(vW+8*q+4,4)}, {vr(vM+4*q,4)}")
    a("s_cmp_lt_u32 s3, 8\ns_cbranch_scc1 L_nojob1")
    gemm(0)
    a(f"""
    s_lshl_b32 s46, s40, 12
    s_lshl_b32 s47, s41, 6
    s_add_u32 s46, s46, s47
    s_add_u32 s46, s46, {TBS}
    v_mov_b32 v29, 0x21800000
    v_lshlrev_b32 v24, 10, v{vG4}
    v_lshl_add_u32 v24, v{vI}, 2, v24
    v_add_u32 v24, s46, v24
    """)
    for r in range(4):
        a(f"v_fma_f32 v{vM+r}, v{vM+r}, s53, v29")
    for r in range(4):
        a(f"v_fma_f32 v{vM+4+r}, v{vM+4+r}, s53, v29")
    for r in range(4):
        a(f"v_cvt_pk_bf16_f32 v{64+r}, v{vM+8+r}, v{vM+8+r}")
    for r in range(4):
        a(f"v_add_f32 v{vM+12+r}, 0, v{vM+12+r}")
    for r in range(4):
        a(f"v_sub_u32_sdwa v{vM+r}, v{vM+r}, v{64+r} clamp {sd} src1_sel:WORD_0")
    for r in range(4):
        a(f"v_cvt_pk_bf16_f32 v{vM+r}, v{vM+8+r}, v{vM+r}")
    for r in range(4):
        a(f"v_sub_u32_sdwa v{vM+12+r}, v{vM+12+r}, v{vM+r} clamp {sd} src1_sel:WORD_1")
    for r in range(4):
        a(f"v_cvt_pk_bf16_f32 v{64+r}, v{vM+12+r}, v{vM+12+r}")
    for r in range(4):
        a(f"v_sub_u32_sdwa v{vM+4+r}, v{vM+4+r}, v{64+r} clamp {sd} src1_sel:WORD_0")
    for r in range(4):
        a(f"v_cvt_pk_bf16_f32 v{vM+4+r}, v{vM+12+r}, v{vM+4+r}")
        a(f"ds_write2_b32 v24, v{vM+r}, v{vM+4+r} offset0:{64*r} offset1:{64*r+32}")
    a("L_nojob1:")
    if opt["jf"]:
        keys_out()
    a(f"""
    v_add_u32 v31, {TBS - 3072}, v4
    s_lshl_b32 s43, s63, 1
    s_waitcnt vmcnt({2 if opt["wp"] == 2 else 1}) lgkmcnt(0)
    s_barrier
    """)
    stamp(4)
    tst = f"buffer_store_dwordx4 v[64:67], v30, {sr(sWS)}, s43 offen {SC}"
    a(f"""
    ds_read_b128 v[64:67], v31
    ds_read_b64 v[12:13], v8 offset:{EAIN}
    ds_read_b64 v[14:15], v9 offset:{EAIN}
    s_waitcnt lgkmcnt(2)
    {tst if opt["tp"] == 2 else ""}
    s_and_saveexec_b64 s[48:49], vcc
    s_cbranch_execz L_noe2
    ds_read_b64 v[16:17], v10 offset:{EAIN}
    ds_read_b64 v[18:19], v11 offset:{EAIN}
    s_waitcnt lgkmcnt(0)
    buffer_store_dwordx4 v[16:19], v4, {sr(sWS)}, s5 offen {SC}
    L_noe2:
    s_mov_b64 exec, -1
    s_waitcnt lgkmcnt(0)
    buffer_store_dwordx4 v[12:15], v4, {sr(sWS)}, s42 offen {SC}
    {tst if opt["tp"] == 3 else ""}
    {wa if opt["wp"] == 3 else ""}
    v_lshlrev_b32 v9, 1, v1
    v_add_u32 v9, {LC}, v9
    """)
    for k in range(4):
        a(f"ds_read_u16 v{32+k}, v9 offset:{128*k}")
    a(f"""
    v_lshrrev_b32 v24, 5, v1
    v_bfe_u32 v25, v1, 2, 1
    v_and_b32 v26, 1, v1
    v_and_b32 v{vN8}, 31, v1
    v_cmp_eq_u32 vcc, v25, v24
    v_mov_b32 v27, 0x3f803f80
    v_lshrrev_b32 v28, 3, v{vN8}
    v_cndmask_b32 v27, 0, v27, vcc
    v_cmp_eq_u32 vcc, 0, v26
    v_bfe_u32 v29, v1, 1, 1
    v_lshl_add_u32 v28, v28, 1, v29
    v_cndmask_b32 v{vEA+2}, 0, v27, vcc
    v_cndmask_b32 v{vEA+3}, v27, 0, vcc
    v_cmp_eq_u32 vcc, v26, v24
    v_lshlrev_b32 v28, 3, v28
    v_add_u32 v28, {EA}, v28
    v_mov_b32 v29, {EA + NPB*BS*2}
    v_cndmask_b32 v{vEC}, v29, v28, vcc
    v_cndmask_b32 v{vEM}, 0, 2, vcc
    v_lshlrev_b32 v{vN8}, 3, v{vN8}
    s_add_u32 s7, s3, {4 if EARLY else 0}
    s_and_b32 s7, s7, 15
    s_lshl_b32 s5, s7, 4
    s_add_u32 s5, s5, {GD}
    v_lshl_add_u32 v{vAH0}, v24, 3, s5
    v_lshl_add_u32 v{vAM0}, v25, 3, s5
    s_mul_i32 s5, s7, {2*BS}
    v_mul_u32_u24 v{vE0}, {BS}, v24
    v_add_u32 v{vE0}, s5, v{vE0}
    s_and_b32 s43, s3, 7
    s_lshr_b32 s5, s3, 3
    s_lshl_b32 s5, s5, 7
    s_add_u32 s43, s43, s5
    s_lshl_b32 s5, s43, 10
    s_lshl_b32 s42, s4, 2
    s_add_u32 s5, s5, s42
    s_add_u32 s5, s5, {WS_T}
    v_lshl_add_u32 v{vTA}, v{vG4}, 13, s5
    s_mov_b32 s76, 0x8000
    s_mov_b32 s77, 0x10000
    s_mov_b32 s78, 0x18000
    s_mul_i32 s5, s43, {SL*4}
    s_add_u32 s80, s5, {WS_K}
    s_lshl_b32 s5, s5, 1
    s_add_u32 s84, s5, {WS_E}
    """)
    for u in range(1, 4):
        a(f"s_add_u32 s{80+u}, s80, {u*32*SL*4}\ns_add_u32 s{84+u}, s84, {u*32*SL*8}")
    a(f"""
    s_lshr_b32 s5, s2, 3
    s_lshl_b32 s5, s5, 4
    s_add_u32 s5, s5, s3
    s_mul_i32 s88, s5, {49*128}
    v_lshlrev_b32 v{vPF}, 7, v1
    s_and_b32 s24, s2, 0xf8
    s_lshr_b32 s25, s3, 1
    s_add_u32 s24, s24, s25
    s_mul_i32 s24, s24, {SL*4}
    s_and_b32 s25, s2, 7
    s_mul_i32 s25, s25, 1574
    s_add_u32 s24, s24, s25
    s_mul_i32 s25, s41, {7*128}
    s_add_u32 s24, s24, s25
    s_add_u32 s24, s24, {WS_K}
    s_andn2_b32 s24, s24, 127
    s_waitcnt lgkmcnt(0)
    """)
    for k in range(4):
        a(f"v_lshlrev_b32 v{32+k}, 16, v{32+k}\nv_mul_f32 v{32+k}, s53, v{32+k}")
    a(f"""
    v_cvt_pk_bf16_f32 v{vBO}, v32, v33
    v_cvt_pk_bf16_f32 v{vBO+1}, v34, v35
    s_cmp_eq_u32 s3, 0
    s_cbranch_scc0 L_not
    {"v_lshlrev_b32 v24, 4, v%d" % vI if NC == 16 else "v_lshlrev_b32 v24, 2, v1"}
    L_dbg:
    buffer_load_dword v25, v24, {sr(sDB)}, 0 offen {SC}
    s_add_u32 s62, s62, 1
    s_bitcmp1_b32 s62, 21
    s_cbranch_scc1 L_abort
    s_waitcnt vmcnt(0)
    v_cmp_eq_u32 vcc, 0, v25
    s_cbranch_vccnz L_dbg
    L_not:
    s_waitcnt vmcnt(0)
    s_barrier
    """)
    stamp(6)
    a(f"""
    s_cmp_eq_u32 s3, 0
    s_cbranch_scc0 L_not2
    buffer_store_dwordx4 v[36:39], v7, {sr(sWS)}, s79 offen {SC}
    L_not2:
    """)

    def pf(lo, hi):
        m = ((1 << hi) - 1) & ~((1 << lo) - 1)
        if m:
            a(f"""
            s_mov_b32 exec_lo, {hex(m & 0xffffffff)}
            s_mov_b32 exec_hi, {hex(m >> 32)}
            buffer_load_dword v55, v{vPF}, {sr(sWS)}, s88 offen {SC}
            s_mov_b64 exec, -1
            """)
        return 1 if m else 0
    if opt["rpf"]:
        a(f"""
        s_mov_b64 exec, 0x7f
        buffer_load_dword v55, v{vPF}, {sr(sWS)}, s24 offen {SC}
        s_mov_b64 exec, -1
        """)

    def prefill(tag):
        a(f"""
        v_mov_b32 v8, {NPB*BS}
        v_mov_b32 v9, {NODE}
        v_lshlrev_b32 v10, 3, v0
        v_cmp_gt_u32 vcc, 800, v0
        s_and_saveexec_b64 s[42:43], vcc
        ds_write_b64 v10, v[8:9] offset:{GD}
        v_cmp_gt_u32 vcc, 8, v0
        s_and_b64 exec, exec, vcc
        s_cbranch_execz L_nodum{tag}
        """)
        if EARLY:
            a(f"""
            v_mul_u32_u24 v8, {BS}, v0
            v_mul_u32_u24 v9, 768, v0
            v_add_u32 v9, {NODE}, v9
            ds_write_b64 v10, v[8:9] offset:{GD}
            """)
        a(f"""
        v_mov_b32 v8, {64 if EARLY else 0}
        ds_write_b32 v8, v8 offset:{GC - (64 if EARLY else 0)}
        v_mov_b32 v8, {ZOFF}
        v_lshlrev_b32 v9, 2, v0
        v_add_u32 v9, {OFF + NPB*BS}, v9
        ds_write_b32 v9, v8
        v_mov_b64 v[8:9], 0
        v_add_u32 v10, {EA + NPB*BS*2}, v10
        ds_write_b64 v10, v[8:9]
        L_nodum{tag}:
        s_mov_b64 exec, -1
        v_mov_b32 v8, 4
        v_mov_b32 v9, 0xfc
        s_lshl_b32 s5, s60, 18
        s_add_u32 s5, s5, {(128+8)<<16}
        s_mov_b32 s43, {EA}
        s_movk_i32 s42, 0x200
        s_movk_i32 s89, {BS//4}
        v_add_u32 v22, s60, v{vI}
        v_lshlrev_b32 v20, 18, v22
        v_add_u32 v20, {8<<16}, v20
        v_add_u32 v21, {64<<16}, v20
        v_mul_u32_u24 v23, {SL*8}, v{vG4}
        v_add_lshl_u32 v22, v22, v23, 2
        v_lshlrev_b32 v10, 2, v1
        s_lshl_b32 s6, s3, 5
        v_mul_u32_u24 v31, {BS}, v1
        v_add_u32 v116, s6, v31
        v_mul_u32_u24 v117, 768, v1
        v_add_u32 v117, {NODE}, v117
        v_mov_b32 v{vAH}, v{vAH0}
        v_mov_b32 v{vAM}, v{vAM0}
        """)
    a("L_job:\ns_cmp_lt_u32 s3, 8\ns_cbranch_scc1 L_job2d")
    gemm(LWA - LWB)
    a(f"""
    s_nop 1
    s_mul_i32 s42, s40, {16*768}
    s_lshl_b32 s43, s41, 7
    s_add_u32 s42, s42, s43
    v_mul_u32_u24 v8, {4*768}, v{vG4}
    v_lshl_add_u32 v8, v{vI}, 3, v8
    v_add_u32 v8, s42, v8
    s_cmp_eq_u32 s40, 3
    s_cselect_b64 exec, 0xffff, -1
    """)
    for r in range(4):
        t = 64 + 8 * r
        a(f"""
        v_mul_f32 v{vM+r}, s53, v{vM+r}
        v_mul_f32 v{vM+4+r}, s53, v{vM+4+r}
        v_and_b32 v{t}, 0xffff0000, v{vM+r}
        v_and_b32 v{t+1}, 0xffff0000, v{vM+4+r}
        v_sub_f32 v{vM+r}, v{vM+r}, v{t}
        v_sub_f32 v{vM+4+r}, v{vM+4+r}, v{t+1}
        v_cvt_pk_bf16_f32 v{t}, v{t}, v{vM+r}
        v_cvt_pk_bf16_f32 v{t+1}, v{t+1}, v{vM+4+r}
        v_cvt_f64_f32 {vr(t+2,2)}, v{vM+8+r}
        v_cvt_f64_f32 {vr(t+4,2)}, v{vM+12+r}
        ds_write_b64 v8, {vr(t,2)} offset:{NODE+768*r}
        ds_write_b64 v8, {vr(t+2,2)} offset:{NODE+768*r+256}
        ds_write_b64 v8, {vr(t+4,2)} offset:{NODE+768*r+512}
        """)
        if r == 0:
            a("s_cbranch_scc1 L_job2d")
    a("L_job2d:\ns_mov_b64 exec, -1\ns_mov_b32 s60, 0")
    prefill("a")
    a(f"""
    ds_read_b32 v11, v8 offset:{ABORT-4}
    s_waitcnt lgkmcnt(0)
    v_cmp_ne_u32 vcc, 0, v11
    s_cbranch_vccnz L_end
    L_poll:
    buffer_load_dword v{vT}, v{vTA}, {sr(sWS)}, 0 offen {SC}
    buffer_load_dword v{vT+1}, v{vTA}, {sr(sWS)}, s76 offen {SC}
    buffer_load_dword v{vT+2}, v{vTA}, {sr(sWS)}, s77 offen {SC}
    buffer_load_dword v{vT+3}, v{vTA}, {sr(sWS)}, s78 offen {SC}
    s_add_u32 s62, s62, 1
    s_bitcmp1_b32 s62, 21
    s_waitcnt vmcnt(0)
    v_min_u32 v11, v{vT}, v{vT+1}
    v_min3_u32 v11, v11, v{vT+2}, v{vT+3}
    v_cmp_eq_u32 vcc, 0, v11
    s_cbranch_vccnz L_repoll
    L_window:
    """)
    stamp(7)
    for u in range(4):
        a(f"v_cmp_le_u32 s[{44+2*u}:{45+2*u}], v20, v{vT+u}\nv_cmp_le_u32 s[{52+2*u}:{53+2*u}], v21, v{vT+u}")
    vRk, vRe, vRa, vRp = 64, 80, 96, 72
    a("L_round:")
    for u in range(4):
        a(f"v_add_u32_sdwa v{12+u}, v22, v{vT+u} {sd} src1_sel:WORD_0\nv_lshlrev_b32 v{16+u}, 1, v{12+u}")
    for u in range(4):
        a(f"""
        s_mov_b64 exec, s[{52+2*u}:{53+2*u}]
        s_cbranch_execz L_n2_{u}
        buffer_load_dword v{vRk+4+u}, v{12+u}, {sr(sWS)}, s{80+u} offen offset:64 {SC}
        buffer_load_dwordx2 {vr(vRe+8+2*u,2)}, v{16+u}, {sr(sWS)}, s{84+u} offen offset:128 {SC}
        L_n2_{u}:
        """)
    for u in range(4):
        a(f"s_or_b64 exec, s[{44+2*u}:{45+2*u}], 1")
        a(f"buffer_load_dword v{vRk+u}, v{12+u}, {sr(sWS)}, s{80+u} offen {SC}")
    for u in range(4):
        a(f"s_or_b64 exec, s[{44+2*u}:{45+2*u}], 1")
        a(f"buffer_load_dwordx2 {vr(vRe+2*u,2)}, v{16+u}, {sr(sWS)}, s{84+u} offen {SC}")
    a(f"""
    s_mov_b64 exec, -1
    v_max_u32 v11, v{vT}, v{vT+1}
    v_max3_u32 v11, v11, v{vT+2}, v{vT+3}
    v_cmp_le_u32 s[90:91], s5, v11
    """)

    def slot_rank(j):
        a(f"""
        v_and_b32_sdwa v{vRa+j}, v{vRk+j}, v9 dst_sel:DWORD dst_unused:UNUSED_PAD src0_sel:BYTE_3 src1_sel:DWORD
        ds_add_rtn_u32 v{vRp+j}, v{vRa+j}, v8 offset:{CN2}
        v_lshlrev_b32 v{vRk+j}, 18, v{vRk+j}
        v_lshrrev_b32 v{vRk+j}, 15, v{vRk+j}
        """)

    def slot_put(j, wait=""):
        m = f"s[{44+2*j}:{45+2*j}]"
        a(f"""
        v_cmpx_gt_u32 vcc, s42, v{vRp+j}
        v_mad_u32_u24 v{vRp+j}, v{vRa+j}, s89, v{vRp+j}
        s_andn2_b64 {m}, {m}, exec
        ds_write_b32 v{vRp+j}, v{vRk+j} offset:{OFF}
        v_lshl_add_u32 v{vRa+j}, v{vRp+j}, 1, s43
        s_or_b64 s[90:91], s[90:91], {m}
        {wait}
        ds_write_b64 v{vRa+j}, {vr(vRe+2*j,2)}
        """)

    for u in range(4):
        a(f"s_mov_b64 exec, s[{44+2*u}:{45+2*u}]\ns_waitcnt vmcnt({7-u})")
        slot_rank(u)
    for u in range(4):
        a(f"s_mov_b64 exec, s[{52+2*u}:{53+2*u}]\ns_cbranch_execz L_r2_{u}")
        slot_rank(4 + u)
        a(f"L_r2_{u}:")
    a("s_waitcnt lgkmcnt(0)")
    for u in range(4):
        a(f"s_mov_b64 exec, s[{52+2*u}:{53+2*u}]\ns_cbranch_execz L_p2_{u}")
        slot_put(4 + u)
        a(f"L_p2_{u}:")
    for u in range(4):
        a(f"s_mov_b64 exec, s[{44+2*u}:{45+2*u}]")
        slot_put(u, f"s_waitcnt vmcnt({3-u})")
    a(f"""
    s_mov_b64 exec, -1
    s_cbranch_scc0 L_nomore
    ds_write_b32 v8, v8 offset:{MORE-4}
    L_nomore:
    """)
    pf(0, opt["pf3"])
    a("s_waitcnt lgkmcnt(0)\ns_barrier")
    stamp(8)

    vGA, vH, vDD, vOF = 64, 32, 96, 16
    vNA = (24, 25)
    vG2, vGM, vAE = 26, 28, 29
    vP, vNn, vRc, vF, vSS = 8, 10, 12, 112, 14
    vL4 = 30

    def gathers():
        if opt.get("nog"):
            return
        for r in range(8):
            if safe:
                a(f"v_lshrrev_b32 v{vL4}, 1, v{vN8}\nv_lshl_add_u32 v{vOF+r}, v{vOF+r}, 5, v{vL4}")
            a(f"buffer_load_dword v{vGA+2*r}, v{vOF+r}, {sr(sTB)}, 0 offen")
            a(f"buffer_load_dword v{vGA+2*r+1}, v{vOF+r}, {sr(sTB)}, 0 offen offset:{128 if safe else 4}")

    a(f"ds_read_b32 v11, v10 offset:{CN2}")
    if EARLY:
        a(f"""
        s_cmp_ge_u32 s3, 12
        s_cbranch_scc1 L_early
        s_mov_b32 s40, 0
        s_waitcnt lgkmcnt(0)
        L_earlyb:
        """)
    else:
        a("s_waitcnt lgkmcnt(0)")
    a(f"""
    v_min_u32 v11, s42, v11
    v_cmp_lt_u32 vcc, s6, v11
    """)
    if EARLY:
        a("s_cmp_eq_u32 s3, 0\ns_cselect_b32 s5, 0xff, 0\ns_andn2_b32 vcc_lo, vcc_lo, s5")
    a(f"""
    s_bcnt1_i32_b64 s6, vcc
    s_cbranch_scc0 L_nolev
    s_lshl_b32 s6, s6, 3
    v_mov_b32 v14, s6
    s_mov_b64 exec, 1
    ds_add_rtn_u32 v14, v10, v14 offset:{GC}
    s_mov_b64 exec, -1
    v_mbcnt_lo_u32_b32 v15, vcc_lo, 0
    v_mbcnt_hi_u32_b32 v15, vcc_hi, v15
    s_waitcnt lgkmcnt(0)
    v_readfirstlane_b32 s6, v14
    s_mov_b64 exec, vcc
    s_nop 0
    v_lshl_add_u32 v15, v15, 3, s6
    ds_write_b64 v15, v[116:117] offset:{GD}
    s_mov_b64 exec, -1
    L_nolev:
    s_sub_u32 s6, s3, {4 if EARLY else 8}
    s_cmp_lt_u32 s6, 8
    s_cbranch_scc0 L_nopad
    s_lshl_b32 s6, s6, 2
    v_add_u32 v14, 28, v11
    v_and_b32 v14, 0xffffffe0, v14
    """)
    if EARLY:
        a("s_mov_b64 exec, 0xff\nv_max_u32 v14, 32, v14\ns_mov_b64 exec, -1")
    a(f"""
    v_add_u32 v11, s6, v11
    v_cmpx_lt_u32 vcc, v11, v14
    v_add_u32 v11, v31, v11
    v_mov_b32 v14, {ZOFF}
    ds_write_b32 v11, v14 offset:{OFF}
    v_lshl_add_u32 v11, v11, 1, s43
    v_mov_b64 v[14:15], 0
    ds_write_b64 v11, v[14:15]
    s_mov_b64 exec, -1
    L_nopad:
    v_mov_b32 v10, 0
    s_waitcnt lgkmcnt(0)
    s_barrier
    """)
    stamp(9)
    stamp(14, "")
    a(f"""
    ds_read_b64 v[8:9], v{vAH}
    ds_read_b32 v11, v10 offset:{GC}
    ds_read_b32 v13, v{vAM}
    ds_read_b64 {vr(vG2,2)}, v{vAH} offset:256
    ds_read_b32 v{vGM}, v{vAM} offset:256
    v_mov_b64 {vr(vSS,2)}, 0
    """)
    if EARLY:
        a("s_cmp_eq_u32 s40, 0\ns_cbranch_scc0 L_nog0")
    a(f"""
    s_waitcnt lgkmcnt(4)
    ds_read_b128 {vr(vOF,4)}, v8 offset:{OFF}
    ds_read_b128 {vr(vOF+4,4)}, v8 offset:{OFF+16}
    s_waitcnt lgkmcnt(0)
    """)
    gathers()
    a(f"""
    L_nog0:
    s_waitcnt lgkmcnt(0)
    v_readfirstlane_b32 s41, v11
    v_add_u32 v{vNA[0]}, v9, v{vN8}
    v_mad_u32_u24 v{vAE}, v13, v{vEM}, v{vEC}
    ds_read_b64 {vr(vBO+2,2)}, v{vNA[0]}
    ds_read_b64 {vr(vEA,2)}, v{vAE}
    ds_read_b128 {vr(vOF,4)}, v{vG2} offset:{OFF}
    ds_read_b128 {vr(vOF+4,4)}, v{vG2} offset:{OFF+16}
    s_add_u32 s41, s41, {8 + 15*16}
    s_lshr_b32 s41, s41, 4
    s_sub_u32 s41, s41, s7
    s_lshr_b32 s41, s41, 4
    s_cbranch_scc0 L_mdone
    s_cmp_eq_u32 s61, 0
    s_cbranch_scc0 L_slow
    s_cmp_lt_u32 s41, 2
    s_waitcnt lgkmcnt(0)
    s_cbranch_scc1 L_tail0
    """)

    T = lambda r: vr(vDD + 2 * r, 2)
    H = lambda r: vr(vH + 2 * r, 2)
    P, Nn = vr(vP, 2), vr(vNn, 2)

    def ex(r):
        if not opt.get("noex"):
            a(f"v_exp_f32 v{vDD+2*r}, v{vDD+2*r}\nv_exp_f32 v{vDD+2*r+1}, v{vDD+2*r+1}")

    def head():
        a(f"v_mfma_f32_32x32x16_bf16 {vr(vDD,16)}, {vr(vEA,4)}, {vr(vBO,4)}, {vr(vGA,16)}")
        for r in range(8):
            a(f"v_lshlrev_b64 {vr(vH+2*r,2)}, 16, {vr(vGA+2*r,2)}")

    def fin(na):
        a(f"""
        v_cvt_f64_f32 {vr(vF,2)}, v{vNn}
        v_cvt_f64_f32 {vr(vF+2,2)}, v{vNn+1}
        ds_add_f64 v{na}, {vr(vF,2)} offset:256
        ds_add_f64 v{na}, {vr(vF+2,2)} offset:512
        """)

    def unit(par, tail):
        na, nb = vNA[par], vNA[1 - par]
        a("s_setprio 3\ns_waitcnt vmcnt(0) lgkmcnt(2)")
        head()
        if not tail:
            a(f"""
            v_add_u32 v{nb}, v{vG2+1}, v{vN8}
            v_mad_u32_u24 v{vAE}, v{vGM}, v{vEM}, v{vEC}
            s_setprio 2
            s_cmp_le_u32 s41, {opt['b1']}
            s_cbranch_scc1 L_bo{par}
            L_bob{par}:
            """)
            gathers()
            a(f"""
            ds_read_b64 {vr(vBO+2,2)}, v{nb}
            ds_read_b64 {vr(vEA,2)}, v{vAE}
            ds_read_b64 {vr(vG2,2)}, v{vAH} offset:{512+256*par}
            ds_read_b32 v{vGM}, v{vAM} offset:{512+256*par}
            """)
            if par == 1:
                a(f"v_add_u32 v{vAH}, 512, v{vAH}\nv_add_u32 v{vAM}, 512, v{vAM}")
        else:
            a("s_nop 2\ns_setprio 0")
        ex(0)
        ex(1)
        a(f"v_pk_add_f32 {P}, {T(0)}, 1.0 op_sel_hi:[1,0]")
        ex(2)
        a(f"v_pk_fma_f32 {Nn}, {H(0)}, {T(1)}, {H(0)}")
        a(f"v_pk_fma_f32 {Nn}, {H(1)}, {P}, {Nn}")
        a(f"v_pk_fma_f32 {P}, {P}, {T(1)}, {P}")
        for r in range(2, 8):
            if r == 2 and not tail:
                a(f"""
                s_waitcnt lgkmcnt(1)
                ds_read_b128 {vr(vOF,4)}, v{vG2} offset:{OFF}
                ds_read_b128 {vr(vOF+4,4)}, v{vG2} offset:{OFF+16}
                """)
            if r < 7:
                ex(r + 1)
            a(f"v_pk_fma_f32 {Nn}, {Nn}, {T(r)}, {Nn}")
            a(f"v_pk_fma_f32 {Nn}, {H(r)}, {P}, {Nn}")
            a(f"v_pk_fma_f32 {P}, {P}, {T(r)}, {P}")
        a(f"""
        v_rcp_f32 v{vRc}, v{vP}
        v_rcp_f32 v{vRc+1}, v{vP+1}
        v_pk_add_f32 {vr(vSS,2)}, {vr(vSS,2)}, {P}
        v_pk_mul_f32 {Nn}, {Nn}, {vr(vRc,2)}
        """)
        if not tail:
            a("s_sub_u32 s41, s41, 1\ns_cmp_lt_u32 s41, 2")
        fin(na)

    a("L_fast:")
    unit(0, False)
    a("s_cbranch_scc1 L_tail1")
    unit(1, False)
    a("s_cbranch_scc0 L_fast\ns_branch L_tail0")
    a(f"L_tail1:\nv_mov_b32 v{vNA[0]}, v{vNA[1]}\nL_tail0:")
    unit(0, True)
    a(f"""
    L_mdone:
    v_add_f32 v{vSS}, v{vSS}, v{vSS+1}
    s_waitcnt vmcnt(0) lgkmcnt(0)
    v_mov_b32 v16, {MORE}
    ds_read_b32 v17, v16
    v_cmp_ngt_f32 vcc, 0x7e000000, v{vSS}
    s_cbranch_vccz L_sok
    ds_write_b32 v16, v16 offset:4
    L_sok:
    v_lshrrev_b32 v8, 4, v0
    v_mul_u32_u24 v9, 768, v8
    v_lshl_add_u32 v9, v{vI}, 5, v9
    v_lshlrev_b32 v10, 3, v0
    s_waitcnt lgkmcnt(0)
    v_readfirstlane_b32 s5, v17
    """)
    stamp(10)
    stamp(15, "")
    a(f"""
    s_barrier
    s_cmp_eq_u32 s5, 0
    s_cbranch_scc0 L_again
    """)
    stamp(11)
    a(f"""
    v_cmp_gt_u32 vcc, {NPB*16}, v0
    s_and_saveexec_b64 s[46:47], vcc
    s_cbranch_execz L_noout
    ds_read_b128 v[32:35], v9 offset:{NODE+256}
    ds_read_b128 v[36:39], v9 offset:{NODE+272}
    s_waitcnt lgkmcnt(0)
    """)
    for i in range(4):
        a(f"v_cvt_f32_f64 v{24+i}, {vr(32+2*i,2)}")
    for i in range(4):
        a(f"v_mul_f32 v{28+i}, {NLOG2E}, v{24+i}")
    for i in range(4):
        a(f"v_exp_f32 v{28+i}, v{28+i}")
    a("v_pk_add_f32 v[18:19], v[24:25], v[26:27]")
    a("v_pk_add_f32 v[28:29], v[28:29], 1.0 op_sel_hi:[1,0]\nv_pk_add_f32 v[30:31], v[30:31], 1.0 op_sel_hi:[1,0]")
    for i in range(4):
        a(f"v_rcp_f32 v{28+i}, v{28+i}")
    a(f"""
    v_add_f32 v18, v18, v19
    v_pk_mul_f32 v[28:29], v[28:29], v[24:25]
    v_pk_mul_f32 v[30:31], v[30:31], v[26:27]
    v_cvt_pk_bf16_f32 v28, v28, v29
    v_cvt_pk_bf16_f32 v29, v30, v31
    buffer_store_dwordx2 v[28:29], v10, {sr(sO)}, s63 offen
    v_mov_b32 v19, 0x207
    v_cmp_class_f32 vcc, v18, v19
    s_cbranch_vccz L_noout
    ds_write_b32 v16, v16 offset:4
    L_noout:
    s_mov_b64 exec, -1
    s_cmp_eq_u32 s61, 0
    s_cbranch_scc0 L_fin
    s_waitcnt lgkmcnt(0)
    s_barrier
    ds_read_b32 v17, v16 offset:4
    s_waitcnt lgkmcnt(0)
    v_readfirstlane_b32 s5, v17
    s_cmp_eq_u32 s5, {"s5" if opt.get("nog") or opt.get("noex") else 0}
    s_cbranch_scc0 L_redo
    L_fin:
    """)
    if opt.get("stamps"):
        a("s_waitcnt vmcnt(0)")
        stamp(12)
        a(f"""
        s_lshl_b32 s5, s2, 4
        s_add_u32 s5, s5, s3
        s_lshl_b32 s5, s5, 6
        s_add_u32 s5, s5, {WS_DBG}
        s_mov_b64 exec, 0xffff
        v_lshlrev_b32 v2, 2, v1
        buffer_store_dword v127, v2, {sr(sWS)}, s5 offen
        """)
    a("L_end:\ns_endpgm")
    a(f"""
    L_sig:
    s_cmp_eq_u32 s3, 14
    s_cbranch_scc1 L_cld
    s_lshl_b32 s43, s2, {4 if NC == 16 else 2}
    v_lshl_add_u32 v32, v1, 10, s43
    buffer_store_dword v3, v32, {sr(sDB)}, 0 offen {SC}
    s_branch L_noscan
    L_cld:
    s_mov_b32 m0, {LC}
    s_nop 0
    buffer_load_dwordx4 v7, {sr(sG)}, s54 offen lds
    s_branch L_noscan
    L_repoll:
    {"s_sleep %d" % opt["sl"] if opt["sl"] else ""}
    s_cbranch_scc0 L_poll
    s_branch L_window
    """)
    if EARLY:
        a(f"""
        L_early:
        ds_read_b128 {vr(vOF,4)}, v{vE0} offset:{OFF}
        ds_read_b128 {vr(vOF+4,4)}, v{vE0} offset:{OFF+16}
        s_waitcnt lgkmcnt(2)
        v_cmp_gt_u32 vcc, 32, v11
        s_and_b32 s40, vcc_lo, 0xff
        s_cselect_b32 s40, 0, 1
        s_waitcnt lgkmcnt(0)
        s_cbranch_scc1 L_earlyb
        """)
        gathers()
        a("s_branch L_earlyb")
    for par in range(2):
        a(f"""
        L_bo{par}:
        s_setprio 1
        s_cmp_gt_u32 s41, {opt["b0"]}
        s_cbranch_scc1 L_bob{par}
        s_setprio 0
        s_branch L_bob{par}
        """)
    a(f"""
    L_abort:
    s_waitcnt vmcnt(0)
    v_mov_b32 v25, {ABORT}
    ds_write_b32 v25, v25
    s_waitcnt lgkmcnt(0)
    s_endpgm
    L_redo:
    s_mov_b32 s61, 1
    s_mov_b32 s53, {NLOG2E}
    s_bfe_u32 s40, s3, 0x20001
    s_and_b32 s41, s3, 1
    v_lshlrev_b32 v10, 2, v1
    v_mov_b32 v11, 0
    ds_write_b32 v10, v11 offset:{CN2}
    s_waitcnt vmcnt(0) lgkmcnt(0)
    s_barrier
    s_branch L_job
    L_again:
    v_lshlrev_b32 v10, 2, v1
    v_mov_b32 v12, 0
    ds_write_b32 v10, v12 offset:{CN2}
    ds_write_b32 v12, v12 offset:{MORE}
    s_or_b64 s[90:91], s[44:45], s[46:47]
    """)
    for j in range(2, 8):
        a(f"s_or_b64 s[90:91], s[90:91], s[{44+2*j}:{45+2*j}]")
    a(f"""
    s_cselect_b32 s40, 0, 32
    s_add_u32 s60, s60, s40
    s_min_u32 s60, s60, {SL}
    """)
    prefill("b")
    a(f"""
    s_cmp_eq_u32 s40, 0
    s_waitcnt lgkmcnt(0)
    s_barrier
    s_cbranch_scc1 L_round
    s_branch L_window
    L_slow:
    s_waitcnt vmcnt(0)
    ds_read_b64 v[8:9], v{vAH}
    ds_read_b32 v{vGM}, v{vAM}
    s_waitcnt lgkmcnt(0)
    ds_read_b128 {vr(vOF,4)}, v8 offset:{OFF}
    ds_read_b128 {vr(vOF+4,4)}, v8 offset:{OFF+16}
    v_add_u32 v{vNA[0]}, v9, v{vN8}
    v_mad_u32_u24 v{vAE}, v{vGM}, v{vEM}, v{vEC}
    ds_read_b64 {vr(vBO+2,2)}, v{vNA[0]}
    ds_read_b64 {vr(vEA,2)}, v{vAE}
    v_add_u32 v{vAH}, 256, v{vAH}
    v_add_u32 v{vAM}, 256, v{vAM}
    s_waitcnt lgkmcnt(0)
    """)
    gathers()
    a("s_waitcnt vmcnt(0)")
    head()
    a(f"s_nop 3\nv_mov_b64 {Nn}, 0")
    for r in range(8):
        ex(r)
        a(f"s_nop 0\nv_pk_add_f32 {T(r)}, {T(r)}, 1.0 op_sel_hi:[1,0]")
        a(f"v_rcp_f32 v{vDD+2*r}, v{vDD+2*r}\nv_rcp_f32 v{vDD+2*r+1}, v{vDD+2*r+1}\ns_nop 0")
        a(f"v_pk_fma_f32 {Nn}, {H(r)}, {T(r)}, {Nn}")
    a("s_sub_u32 s41, s41, 1\ns_cmp_eq_u32 s41, 0")
    fin(vNA[0])
    a("s_cbranch_scc0 L_slow\ns_branch L_mdone")
    return a.text()


def kd(name, vgpr):
    return f""".p2align 6
.amdhsa_kernel {name}
  .amdhsa_next_free_vgpr {vgpr}
  .amdhsa_next_free_sgpr 96
  .amdhsa_accum_offset {vgpr}
  .amdhsa_group_segment_fixed_size 0
  .amdhsa_kernarg_size 80
  .amdhsa_user_sgpr_count 2
  .amdhsa_user_sgpr_kernarg_segment_ptr 1
  .amdhsa_system_sgpr_workgroup_id_x 1
.end_amdhsa_kernel
"""


def gen(opt):
    t = kernel(opt)
    ref = open(f"cdna_kernels/{NAME}.s.ref").read().split("\n")
    out = "\n".join(ref[:11]) + "\n"
    out += f"; @launch grid=(256,1,1) block=(1024,1,1) lds={LDS}\n"
    out += '.amdgcn_target "amdgcn-amd-amdhsa--gfx950"\n.text\n'
    nm = NAME + "_kernel"
    out += f".globl {nm}\n.p2align 8\n.type {nm},@function\n" + t
    out += '.section .rodata,"a"\n' + kd(nm, 128)
    return out


if __name__ == "__main__":
    opt = {}
    for x in sys.argv[2:]:
        k, _, v = x.partition("=")
        opt[k] = int(v) if v else 1
    open(sys.argv[1], "w").write(gen(opt))
```

```python
import sys

NAME = "gather_scatter__edge_featured_mpnn_egc__graph"
N, E = 12500, 800000
NPB = 49
SL = 3136
WS_T = 4 << 20
WS_K = 5 << 20
WS_E = 9 << 20
WS_DBG = 32 << 20
NLOG2E = "0xbfb8aa3b"

CN2 = 0
GC, MORE, FL, ABORT = 256, 260, 264, 268
CNT, BASE = 512, 1536
NODE = 2560
GD = NODE + NPB * 768
OFF = GD + 6400
BS = 528
EA = OFF + 26112
LWA = EA + 51840
LX = LWA + 16384
LC = LX + 7168
LDS = LX + 8192
KEYS, EAIN, TBS, LWB = 40192, 53504, 80128, 96512
ZOFF = N * 8


class Asm:
    def __init__(self):
        self.l = []

    def __call__(self, s):
        for x in s.split("\n"):
            x = x.strip()
            if x:
                self.l.append(("" if x.endswith(":") else "    ") + x)

    def text(self):
        return "\n".join(self.l) + "\n"


def vr(a, n):
    return f"v[{a}:{a+n-1}]"


def sr(a, n=4):
    return f"s[{a}:{a+n-1}]"


def kernel(opt):
    a = Asm()
    for k, v in (("b1", 4), ("b0", 1), ("pf3", 16), ("rpf", 1), ("sb", 0), ("jf", 1), ("wp", 3), ("tp", 2), ("wpf", 2), ("early", 1), ("sl", 0)):
        opt.setdefault(k, v)
    safe = opt.get("safe")
    EARLY = opt["early"]
    NC = opt.get("nc", 64)

    def stamp(i, clk="real"):
        if opt.get("stamps"):
            a(f"s_mem{clk}time s[94:95]\ns_waitcnt lgkmcnt(0)\nv_writelane_b32 v127, s94, {i}")

    sDST, sSRC, sEA, sX, sWB, sWA, sG, sWS, sTB, sO, sDB = 8, 12, 16, 20, 24, 28, 32, 36, 64, 68, 72
    SC = "sc1"
    sd = "dst_sel:DWORD dst_unused:UNUSED_PAD src0_sel:DWORD"
    vXA, vWA, vG4, vI = 124, 125, 126, 6
    vD, vS, vB, vR, vL = 8, 12, 16, 20, 24
    vA, vW, vM = 64, 72, 104
    vBO, vEA = 60, 56
    vAH, vAM, vEM, vEC, vN8, vTA, vPF = 48, 49, 50, 51, 52, 53, 54
    vAH0, vAM0, vE0 = 120, 121, 122
    vT = 2

    a(f"""
    {NAME}_kernel:
    s_cmp_ge_u32 s2, 256
    s_cbranch_scc1 L_end
    s_load_dwordx2 s[{sDST}:{sDST+1}], s[0:1], 24
    s_load_dwordx2 s[{sWS}:{sWS+1}], s[0:1], 72
    s_load_dwordx2 s[{sSRC}:{sSRC+1}], s[0:1], 16
    s_load_dwordx2 s[{sEA}:{sEA+1}], s[0:1], 8
    s_load_dwordx2 s[{sX}:{sX+1}], s[0:1], 0
    s_load_dwordx2 s[{sG}:{sG+1}], s[0:1], 48
    s_load_dwordx2 s[{sWB}:{sWB+1}], s[0:1], 40
    s_load_dwordx2 s[{sWA}:{sWA+1}], s[0:1], 32
    s_load_dwordx2 s[{sO}:{sO+1}], s[0:1], 56
    s_load_dwordx2 s[{sDB}:{sDB+1}], s[0:1], 64
    """)
    if opt.get("stamps"):
        a("s_memrealtime s[92:93]")
    a(f"""
    v_readfirstlane_b32 s3, v0
    v_and_b32 v1, 63, v0
    v_lshlrev_b32 v2, 2, v0
    v_mov_b64 v[40:41], 0
    v_mov_b64 v[42:43], 0
    ds_write_b32 v2, v40
    s_cmp_lt_u32 s2, 255
    s_movk_i32 s5, 784
    s_cselect_b32 s5, s5, 80
    v_cmp_gt_u32 s[44:45], s5, v0
    v_lshlrev_b32 v4, 4, v0
    v_lshlrev_b32 v7, 4, v1
    s_lshr_b32 s3, s3, 6
    v_cndmask_b32 v5, 2.0, v4, s[44:45]
    s_mul_i32 s6, s2, {SL*4}
    s_lshl_b32 s7, s3, 10
    s_lshl_b32 s79, s2, 10
    s_add_u32 s79, s79, {WS_T}
    s_lshl_b32 s5, s7, {4 if NC == 16 else 6}
    s_add_u32 s5, s5, s79
    {"" if NC == 16 else "s_sub_u32 s5, s5, %d" % (12 << 16)}
    """)
    for s, sz in ((sDST, E * 4), (sWS, (64 if opt.get("stamps") else 16) << 20), (sSRC, E * 4), (sEA, E * 8),
                  (sX, N * 128), (sG, 132 * 128), (sWB, 8192), (sWA, 8192), (sO, N * 128), (sDB, 256)):
        a(f"s_mov_b32 s{s+2}, {sz}\ns_mov_b32 s{s+3}, 0x20000")
    a(f"""
    {"" if NC == 16 else "s_cmp_lt_u32 s3, 12"}
    {"s_mov_b32 s42, s2" if NC == 16 else "s_cselect_b32 s42, 64, s2"}
    s_cmp_lt_u32 s42, {NC}
    s_waitcnt lgkmcnt(0)
    s_cbranch_scc0 L_noclr
    buffer_store_dwordx4 v[40:43], v7, {sr(sWS)}, s5 offen {SC}
    L_noclr:
    """)
    if opt["wpf"]:
        a(f"""
        s_cmp_eq_u32 s3, 14
        s_cbranch_scc0 L_nowpf
        s_lshr_b32 s42, s2, 3
        s_lshl_b32 s42, s42, 8
        s_mul_i32 s43, s42, 3
        v_lshlrev_b32 v55, 7, v1
        s_mov_b64 exec, 3
        buffer_load_dword v54, v55, {sr(sWA)}, s42 offen
        buffer_load_dword v53, v55, {sr(sWB)}, s42 offen
        s_mov_b64 exec, 63
        buffer_load_dword v52, v55, {sr(sG)}, s43 offen
        """)
        if opt["wpf"] == 2:
            a(f"""
            s_getpc_b64 s[90:91]
            L_pc:
            s_mov_b64 exec, 3
            v_add_u32 v55, s42, v55
            v_min_u32 v55, L_redo-L_pc, v55
            global_load_dword v51, v55, s[90:91]
            """)
        a(f"""
        s_mov_b64 exec, -1
        L_nowpf:
        """)
    a(f"buffer_load_dwordx4 {vr(vD,4)}, v5, {sr(sDST)}, s6 offen")
    if opt.get("stamps"):
        a("v_writelane_b32 v127, s92, 0")
    stamp(13)
    srcld = f"buffer_load_dwordx4 {vr(vS,4)}, v5, {sr(sSRC)}, s6 offen"
    a(f"""
    s_and_b32 s4, s2, 7
    s_lshl_b32 s4, s4, 5
    s_lshr_b32 s5, s2, 3
    s_add_u32 s4, s4, s5
    s_mul_i32 s63, s4, {NPB*128}
    s_mov_b32 s{sTB}, s{sWS}
    s_or_b32 s{sTB+1}, s{sWS+1}, {0 if safe else 0x80000000}
    s_mov_b32 s{sTB+2}, {WS_T}
    s_mov_b32 s{sTB+3}, {"0x20000" if safe else "0xc00000"}
    s_add_u32 s42, s{sG}, 8192
    s_addc_u32 s43, s{sG+1}, 0
    s_cmp_lt_u32 s3, 8
    s_cselect_b32 s{sWB}, s42, s{sWB}
    s_cselect_b32 s{sWB+1}, s43, s{sWB+1}
    s_cselect_b32 s{sWA}, s{sG}, s{sWA}
    s_cselect_b32 s{sWA+1}, s{sG+1}, s{sWA+1}
    s_mov_b32 s5, {LWB}
    s_bfe_u32 s40, s3, 0x20001
    s_and_b32 s41, s3, 1
    v_and_b32 v31, 0x70, v0
    v_xor_b32 v31, v31, v7
    v_xor_b32 v31, 64, v31
    v_and_b32 v32, 16, v0
    v_and_b32 v33, 64, v0
    v_lshl_or_b32 v32, v32, 1, v33
    v_xor_b32 v47, v32, v7
    s_add_u32 m0, s7, {LWB}
    s_and_b32 s59, s7, 8191
    buffer_load_dwordx4 v47, {sr(sWB)}, s59 offen lds
    s_add_u32 m0, s7, {LX - 9*1024}
    s_add_u32 s42, s63, s7
    s_sub_u32 s42, s42, {9*1024}
    s_cmp_lt_u32 s3, 9
    s_cbranch_scc1 L_nox
    buffer_load_dwordx4 v31, {sr(sX)}, s42 offen lds
    L_nox:
    v_and_b32 v{vI}, 15, v1
    v_lshrrev_b32 v{vG4}, 4, v1
    s_lshl_b32 s42, s40, 11
    s_add_u32 s42, s42, {LX}
    v_lshrrev_b32 v2, 1, v{vI}
    v_xor_b32 v2, v2, v{vG4}
    v_lshlrev_b32 v2, 4, v2
    v_lshl_add_u32 v{vXA}, v{vI}, 7, v2
    v_add_u32 v{vXA}, s42, v{vXA}
    v_lshrrev_b32 v{vWA}, 2, v{vI}
    v_lshl_add_u32 v{vWA}, v{vG4}, 3, v{vWA}
    v_bfe_u32 v2, v1, 3, 2
    v_xor_b32 v2, s41, v2
    v_lshl_add_u32 v{vWA}, v{vWA}, 2, v2
    v_and_b32 v2, 3, v1
    v_lshl_add_u32 v{vWA}, v{vWA}, 2, v2
    v_lshl_add_u32 v{vWA}, v{vWA}, 3, s5
    v_subrev_u32 v30, 3072, v4
    s_movk_i32 s43, {784*16}
    v_cmp_gt_u32 vcc, s43, v30
    v_lshlrev_b32 v28, 16, v0
    v_mov_b32 v3, 4
    v_cndmask_b32 v30, 2.0, v30, vcc
    v_lshlrev_b32 v2, 3, v0
    s_mov_b32 s52, -{NPB}
    s_movk_i32 s54, 0x4000
    s_mov_b32 s55, 0x8000
    s_mov_b32 s56, 0xc000
    s_mov_b32 s61, 0
    s_mov_b32 s62, 0
    s_mov_b32 s53, {NLOG2E}
    s_movk_i32 s58, 0x61ff
    {srcld if opt["sb"] else ""}
    s_lshl_b32 s42, s6, 1
    s_add_u32 s42, s42, s7
    s_add_u32 m0, s7, {EAIN}
    s_cmp_lt_u32 s3, 9
    s_barrier
    {"" if opt["sb"] else srcld}
    s_cbranch_scc0 L_w0
    s_waitcnt vmcnt(2)
    L_w0:
    s_waitcnt vmcnt(3)
    """)
    stamp(5)
    a("s_mov_b64 exec, s[44:45]\ns_cbranch_execz L_norank")
    for k in range(4):
        a(f"""
        v_mul_u32_u24 v{vL+k}, 21400, v{vD+k}
        v_lshrrev_b32 v{vL+k}, 20, v{vL+k}
        v_lshlrev_b32 v{vB+k}, 2, v{vL+k}
        ds_add_rtn_u32 v{vR+k}, v{vB+k}, v3 offset:{CNT}
        """)
    a(f"""
    L_norank:
    s_mov_b64 exec, -1
    buffer_load_dwordx4 v7, {sr(sEA)}, s42 offen lds
    s_cmp_lt_u32 s3, 9
    s_cbranch_scc0 L_xldb
    s_add_u32 m0, s7, {EAIN+16384}
    s_add_u32 s42, s42, 16384
    buffer_load_dwordx4 v7, {sr(sEA)}, s42 offen lds
    L_xldb:
    s_waitcnt lgkmcnt(0)
    s_barrier
    """)
    stamp(1)

    a(f"""
    s_cmp_eq_u32 s3, 0
    s_cbranch_scc0 L_noscan
    ds_read_b128 v[32:35], v7 offset:{CNT}
    s_waitcnt lgkmcnt(0)
    v_add_u32 v44, v32, v33
    v_add_u32 v45, v44, v34
    v_add_u32 v46, v45, v35
    v_mov_b32 v36, v46
    """)
    for sh in (1, 2, 4, 8):
        a(f"s_nop 1\nv_add_u32_dpp v36, v36, v36 row_shr:{sh} row_mask:0xf bank_mask:0xf bound_ctrl:0")
    a(f"""
    s_nop 1
    v_add_u32_dpp v36, v36, v36 row_bcast:15 row_mask:0xa bank_mask:0xf
    s_nop 1
    v_add_u32_dpp v36, v36, v36 row_bcast:31 row_mask:0xc bank_mask:0xf
    v_sub_u32 v36, v36, v46
    v_add_u32 v36, 0x40000, v36
    v_add_u32 v37, v36, v32
    v_add_u32 v38, v36, v44
    v_add_u32 v39, v36, v45
    v_lshl_add_u32 v36, v32, 16, v36
    v_lshl_add_u32 v37, v33, 16, v37
    v_lshl_add_u32 v38, v34, 16, v38
    v_lshl_add_u32 v39, v35, 16, v39
    ds_write_b128 v7, v[36:39] offset:{BASE}
    L_noscan:
    s_cmp_eq_u32 s3, 13
    s_cbranch_scc0 L_nosig
    s_lshl_b32 s43, s2, {4 if NC == 16 else 2}
    v_lshl_add_u32 v32, v1, 10, s43
    buffer_store_dword v3, v32, {sr(sDB)}, 0 offen {SC}
    L_nosig:
    s_mov_b32 m0, {LC}
    s_cmp_eq_u32 s3, 14
    s_cbranch_scc0 L_nocld
    buffer_load_dwordx4 v7, {sr(sG)}, s54 offen lds
    L_nocld:
    """)
    for k in range(4):
        a(f"v_mad_i32_i24 v{vL+k}, v{vL+k}, s52, v{vD+k}\nv_lshl_or_b32 v{vL+k}, v{vL+k}, 26, v28")
    a("s_waitcnt lgkmcnt(0)\ns_barrier")
    stamp(2)
    a("s_mov_b64 exec, s[44:45]\ns_cbranch_execz L_nosc")
    for k in range(4):
        a(f"ds_read_u16 v{vB+k}, v{vB+k} offset:{BASE}")
    a(f"""
    s_bitcmp1_b32 s58, s3
    s_cbranch_scc1 L_w1
    s_waitcnt vmcnt(1)
    L_w1:
    s_waitcnt vmcnt(2)
    v_or_b32 v{vS}, v{vS}, v{vL}
    v_or3_b32 v{vS+1}, v{vS+1}, v{vL+1}, s54
    v_or3_b32 v{vS+2}, v{vS+2}, v{vL+2}, s55
    v_or3_b32 v{vS+3}, v{vS+3}, v{vL+3}, s56
    """)
    for k in range(4):
        a(f"""
        s_waitcnt lgkmcnt(3)
        v_add_u32 v{vB+k}, v{vB+k}, v{vR+k}
        ds_write_b32 v{vB+k}, v{vS+k} offset:{KEYS}
        """)
    a("L_nosc:\ns_mov_b64 exec, -1")
    a("s_bitcmp1_b32 s58, s3\ns_cbranch_scc1 L_w2\ns_waitcnt vmcnt(1)\nL_w2:\ns_waitcnt vmcnt(2)")
    a(f"""
    s_mul_i32 s42, s2, {SL*8}
    s_add_u32 s42, s42, {WS_E}
    s_add_u32 s57, s6, {WS_K}
    s_add_u32 s5, s42, 16384
    s_waitcnt lgkmcnt(0)
    s_barrier
    """)
    stamp(3)

    wa = f"s_add_u32 m0, s7, {LWA}\ns_nop 0\nbuffer_load_dwordx4 v47, {sr(sWA)}, s59 offen lds"

    def keys_out():
        a(f"""
        ds_read_b128 v[20:23], v4 offset:{KEYS-3072}
        ds_read_b64 v[8:9], v2 offset:{KEYS}
        ds_read_b64 v[10:11], v2 offset:{KEYS+8192}
        """)
        if opt["wp"] == 2:
            a(wa)
        a(f"""
        v_cmp_gt_u32 vcc, {1568-1024}, v0
        s_waitcnt lgkmcnt(2)
        buffer_store_dwordx4 v[20:23], v30, {sr(sWS)}, s57 offen {SC}
        s_waitcnt lgkmcnt(0)
        """)
        for k in range(4):
            a(f"v_lshrrev_b32 v{8+k}, 11, v{8+k}\nv_and_b32 v{8+k}, 0x7ff8, v{8+k}")
    if not opt["jf"]:
        keys_out()

    def gemm(wofs):
        a(f"""
        v_xor_b32 v{vM}, 64, v{vXA}
        v_xor_b32 v{vM+1}, 64, v{vWA}
        ds_read_b128 {vr(vA,4)}, v{vXA}
        ds_read_b128 {vr(vA+4,4)}, v{vM}
        """)
        idx = 0
        for M in range(2):
            for t in range(2):
                for s in range(2):
                    for j2 in range(2):
                        a(f"ds_read_b64_tr_b16 {vr(vW+2*idx,2)}, v{vM+1 if t else vWA} offset:{wofs+M*8192+s*4096+j2*512}")
                        idx += 1
        for q in range(4):
            a(f"s_waitcnt lgkmcnt({12-4*q})")
            a(f"v_mfma_f32_16x16x32_bf16 {vr(vM+4*q,4)}, {vr(vA,4)}, {vr(vW+8*q,4)}, 0")
            a(f"v_mfma_f32_16x16x32_bf16 {vr(vM+4*q,4)}, {vr(vA+4,4)}, {vr(vW+8*q+4,4)}, {vr(vM+4*q,4)}")
    a("s_cmp_lt_u32 s3, 8\ns_cbranch_scc1 L_nojob1")
    gemm(0)
    a(f"""
    s_lshl_b32 s46, s40, 12
    s_lshl_b32 s47, s41, 6
    s_add_u32 s46, s46, s47
    s_add_u32 s46, s46, {TBS}
    v_mov_b32 v29, 0x21800000
    v_lshlrev_b32 v24, 10, v{vG4}
    v_lshl_add_u32 v24, v{vI}, 2, v24
    v_add_u32 v24, s46, v24
    """)
    for r in range(4):
        a(f"v_fma_f32 v{vM+r}, v{vM+r}, s53, v29")
    for r in range(4):
        a(f"v_fma_f32 v{vM+4+r}, v{vM+4+r}, s53, v29")
    for r in range(4):
        a(f"v_cvt_pk_bf16_f32 v{64+r}, v{vM+8+r}, v{vM+8+r}")
    for r in range(4):
        a(f"v_add_f32 v{vM+12+r}, 0, v{vM+12+r}")
    for r in range(4):
        a(f"v_sub_u32_sdwa v{vM+r}, v{vM+r}, v{64+r} clamp {sd} src1_sel:WORD_0")
    for r in range(4):
        a(f"v_cvt_pk_bf16_f32 v{vM+r}, v{vM+8+r}, v{vM+r}")
    for r in range(4):
        a(f"v_sub_u32_sdwa v{vM+12+r}, v{vM+12+r}, v{vM+r} clamp {sd} src1_sel:WORD_1")
    for r in range(4):
        a(f"v_cvt_pk_bf16_f32 v{64+r}, v{vM+12+r}, v{vM+12+r}")
    for r in range(4):
        a(f"v_sub_u32_sdwa v{vM+4+r}, v{vM+4+r}, v{64+r} clamp {sd} src1_sel:WORD_0")
    for r in range(4):
        a(f"v_cvt_pk_bf16_f32 v{vM+4+r}, v{vM+12+r}, v{vM+4+r}")
        a(f"ds_write2_b32 v24, v{vM+r}, v{vM+4+r} offset0:{64*r} offset1:{64*r+32}")
    a("L_nojob1:")
    if opt["jf"]:
        keys_out()
    a(f"""
    v_add_u32 v31, {TBS - 3072}, v4
    s_lshl_b32 s43, s63, 1
    s_waitcnt vmcnt({2 if opt["wp"] == 2 else 1}) lgkmcnt(0)
    s_barrier
    """)
    stamp(4)
    tst = f"buffer_store_dwordx4 v[64:67], v30, {sr(sWS)}, s43 offen {SC}"
    a(f"""
    ds_read_b128 v[64:67], v31
    ds_read_b64 v[12:13], v8 offset:{EAIN}
    ds_read_b64 v[14:15], v9 offset:{EAIN}
    s_waitcnt lgkmcnt(2)
    {tst if opt["tp"] == 2 else ""}
    s_and_saveexec_b64 s[48:49], vcc
    s_cbranch_execz L_noe2
    ds_read_b64 v[16:17], v10 offset:{EAIN}
    ds_read_b64 v[18:19], v11 offset:{EAIN}
    s_waitcnt lgkmcnt(0)
    buffer_store_dwordx4 v[16:19], v4, {sr(sWS)}, s5 offen {SC}
    L_noe2:
    s_mov_b64 exec, -1
    s_waitcnt lgkmcnt(0)
    buffer_store_dwordx4 v[12:15], v4, {sr(sWS)}, s42 offen {SC}
    {tst if opt["tp"] == 3 else ""}
    {wa if opt["wp"] == 3 else ""}
    v_lshlrev_b32 v9, 1, v1
    v_add_u32 v9, {LC}, v9
    """)
    for k in range(4):
        a(f"ds_read_u16 v{32+k}, v9 offset:{128*k}")
    a(f"""
    v_lshrrev_b32 v24, 5, v1
    v_bfe_u32 v25, v1, 2, 1
    v_and_b32 v26, 1, v1
    v_and_b32 v{vN8}, 31, v1
    v_cmp_eq_u32 vcc, v25, v24
    v_mov_b32 v27, 0x3f803f80
    v_lshrrev_b32 v28, 3, v{vN8}
    v_cndmask_b32 v27, 0, v27, vcc
    v_cmp_eq_u32 vcc, 0, v26
    v_bfe_u32 v29, v1, 1, 1
    v_lshl_add_u32 v28, v28, 1, v29
    v_cndmask_b32 v{vEA+2}, 0, v27, vcc
    v_cndmask_b32 v{vEA+3}, v27, 0, vcc
    v_cmp_eq_u32 vcc, v26, v24
    v_lshlrev_b32 v28, 3, v28
    v_add_u32 v28, {EA}, v28
    v_mov_b32 v29, {EA + NPB*BS*2}
    v_cndmask_b32 v{vEC}, v29, v28, vcc
    v_cndmask_b32 v{vEM}, 0, 2, vcc
    v_lshlrev_b32 v{vN8}, 3, v{vN8}
    s_add_u32 s7, s3, {4 if EARLY else 0}
    s_and_b32 s7, s7, 15
    s_lshl_b32 s5, s7, 4
    s_add_u32 s5, s5, {GD}
    v_lshl_add_u32 v{vAH0}, v24, 3, s5
    v_lshl_add_u32 v{vAM0}, v25, 3, s5
    s_mul_i32 s5, s7, {2*BS}
    v_mul_u32_u24 v{vE0}, {BS}, v24
    v_add_u32 v{vE0}, s5, v{vE0}
    s_and_b32 s43, s3, 7
    s_lshr_b32 s5, s3, 3
    s_lshl_b32 s5, s5, 7
    s_add_u32 s43, s43, s5
    s_lshl_b32 s5, s43, 10
    s_lshl_b32 s42, s4, 2
    s_add_u32 s5, s5, s42
    s_add_u32 s5, s5, {WS_T}
    v_lshl_add_u32 v{vTA}, v{vG4}, 13, s5
    s_mov_b32 s76, 0x8000
    s_mov_b32 s77, 0x10000
    s_mov_b32 s78, 0x18000
    s_mul_i32 s5, s43, {SL*4}
    s_add_u32 s80, s5, {WS_K}
    s_lshl_b32 s5, s5, 1
    s_add_u32 s84, s5, {WS_E}
    """)
    for u in range(1, 4):
        a(f"s_add_u32 s{80+u}, s80, {u*32*SL*4}\ns_add_u32 s{84+u}, s84, {u*32*SL*8}")
    a(f"""
    s_lshr_b32 s5, s2, 3
    s_lshl_b32 s5, s5, 4
    s_add_u32 s5, s5, s3
    s_mul_i32 s88, s5, {49*128}
    v_lshlrev_b32 v{vPF}, 7, v1
    s_and_b32 s24, s2, 0xf8
    s_lshr_b32 s25, s3, 1
    s_add_u32 s24, s24, s25
    s_mul_i32 s24, s24, {SL*4}
    s_and_b32 s25, s2, 7
    s_mul_i32 s25, s25, 1574
    s_add_u32 s24, s24, s25
    s_mul_i32 s25, s41, {7*128}
    s_add_u32 s24, s24, s25
    s_add_u32 s24, s24, {WS_K}
    s_andn2_b32 s24, s24, 127
    s_waitcnt lgkmcnt(0)
    """)
    for k in range(4):
        a(f"v_lshlrev_b32 v{32+k}, 16, v{32+k}\nv_mul_f32 v{32+k}, s53, v{32+k}")
    a(f"""
    v_cvt_pk_bf16_f32 v{vBO}, v32, v33
    v_cvt_pk_bf16_f32 v{vBO+1}, v34, v35
    s_cmp_eq_u32 s3, 0
    s_cbranch_scc0 L_not
    {"v_lshlrev_b32 v24, 4, v%d" % vI if NC == 16 else "v_lshlrev_b32 v24, 2, v1"}
    L_dbg:
    buffer_load_dword v25, v24, {sr(sDB)}, 0 offen {SC}
    s_add_u32 s62, s62, 1
    s_bitcmp1_b32 s62, 21
    s_cbranch_scc1 L_abort
    s_waitcnt vmcnt(0)
    v_cmp_eq_u32 vcc, 0, v25
    s_cbranch_vccnz L_dbg
    L_not:
    s_waitcnt vmcnt(0)
    s_barrier
    """)
    stamp(6)
    a(f"""
    s_cmp_eq_u32 s3, 0
    s_cbranch_scc0 L_not2
    buffer_store_dwordx4 v[36:39], v7, {sr(sWS)}, s79 offen {SC}
    L_not2:
    """)

    def pf(lo, hi):
        m = ((1 << hi) - 1) & ~((1 << lo) - 1)
        if m:
            a(f"""
            s_mov_b32 exec_lo, {hex(m & 0xffffffff)}
            s_mov_b32 exec_hi, {hex(m >> 32)}
            buffer_load_dword v55, v{vPF}, {sr(sWS)}, s88 offen {SC}
            s_mov_b64 exec, -1
            """)
        return 1 if m else 0
    if opt["rpf"]:
        a(f"""
        s_mov_b64 exec, 0x7f
        buffer_load_dword v55, v{vPF}, {sr(sWS)}, s24 offen {SC}
        s_mov_b64 exec, -1
        """)

    def prefill(tag):
        a(f"""
        v_mov_b32 v8, {NPB*BS}
        v_mov_b32 v9, {NODE}
        v_lshlrev_b32 v10, 3, v0
        v_cmp_gt_u32 vcc, 800, v0
        s_and_saveexec_b64 s[42:43], vcc
        ds_write_b64 v10, v[8:9] offset:{GD}
        v_cmp_gt_u32 vcc, 8, v0
        s_and_b64 exec, exec, vcc
        s_cbranch_execz L_nodum{tag}
        """)
        if EARLY:
            a(f"""
            v_mul_u32_u24 v8, {BS}, v0
            v_mul_u32_u24 v9, 768, v0
            v_add_u32 v9, {NODE}, v9
            ds_write_b64 v10, v[8:9] offset:{GD}
            """)
        a(f"""
        v_mov_b32 v8, {64 if EARLY else 0}
        ds_write_b32 v8, v8 offset:{GC - (64 if EARLY else 0)}
        v_mov_b32 v8, {ZOFF}
        v_lshlrev_b32 v9, 2, v0
        v_add_u32 v9, {OFF + NPB*BS}, v9
        ds_write_b32 v9, v8
        v_mov_b64 v[8:9], 0
        v_add_u32 v10, {EA + NPB*BS*2}, v10
        ds_write_b64 v10, v[8:9]
        L_nodum{tag}:
        s_mov_b64 exec, -1
        v_mov_b32 v8, 4
        v_mov_b32 v9, 0xfc
        s_lshl_b32 s5, s60, 18
        s_add_u32 s5, s5, {(128+8)<<16}
        s_mov_b32 s43, {EA}
        s_movk_i32 s42, 0x200
        s_movk_i32 s89, {BS//4}
        v_add_u32 v22, s60, v{vI}
        v_lshlrev_b32 v20, 18, v22
        v_add_u32 v20, {8<<16}, v20
        v_add_u32 v21, {64<<16}, v20
        v_mul_u32_u24 v23, {SL*8}, v{vG4}
        v_add_lshl_u32 v22, v22, v23, 2
        v_lshlrev_b32 v10, 2, v1
        s_lshl_b32 s6, s3, 5
        v_mul_u32_u24 v31, {BS}, v1
        v_add_u32 v116, s6, v31
        v_mul_u32_u24 v117, 768, v1
        v_add_u32 v117, {NODE}, v117
        v_mov_b32 v{vAH}, v{vAH0}
        v_mov_b32 v{vAM}, v{vAM0}
        """)
    a("L_job:\ns_cmp_lt_u32 s3, 8\ns_cbranch_scc1 L_job2d")
    gemm(LWA - LWB)
    a(f"""
    s_nop 1
    s_mul_i32 s42, s40, {16*768}
    s_lshl_b32 s43, s41, 7
    s_add_u32 s42, s42, s43
    v_mul_u32_u24 v8, {4*768}, v{vG4}
    v_lshl_add_u32 v8, v{vI}, 3, v8
    v_add_u32 v8, s42, v8
    s_cmp_eq_u32 s40, 3
    s_cselect_b64 exec, 0xffff, -1
    """)
    for r in range(4):
        t = 64 + 8 * r
        a(f"""
        v_mul_f32 v{vM+r}, s53, v{vM+r}
        v_mul_f32 v{vM+4+r}, s53, v{vM+4+r}
        v_and_b32 v{t}, 0xffff0000, v{vM+r}
        v_and_b32 v{t+1}, 0xffff0000, v{vM+4+r}
        v_sub_f32 v{vM+r}, v{vM+r}, v{t}
        v_sub_f32 v{vM+4+r}, v{vM+4+r}, v{t+1}
        v_cvt_pk_bf16_f32 v{t}, v{t}, v{vM+r}
        v_cvt_pk_bf16_f32 v{t+1}, v{t+1}, v{vM+4+r}
        v_cvt_f64_f32 {vr(t+2,2)}, v{vM+8+r}
        v_cvt_f64_f32 {vr(t+4,2)}, v{vM+12+r}
        ds_write_b64 v8, {vr(t,2)} offset:{NODE+768*r}
        ds_write_b64 v8, {vr(t+2,2)} offset:{NODE+768*r+256}
        ds_write_b64 v8, {vr(t+4,2)} offset:{NODE+768*r+512}
        """)
        if r == 0:
            a("s_cbranch_scc1 L_job2d")
    a("L_job2d:\ns_mov_b64 exec, -1\ns_mov_b32 s60, 0")
    prefill("a")
    a(f"""
    ds_read_b32 v11, v8 offset:{ABORT-4}
    s_waitcnt lgkmcnt(0)
    v_cmp_ne_u32 vcc, 0, v11
    s_cbranch_vccnz L_end
    L_poll:
    buffer_load_dword v{vT}, v{vTA}, {sr(sWS)}, 0 offen {SC}
    buffer_load_dword v{vT+1}, v{vTA}, {sr(sWS)}, s76 offen {SC}
    buffer_load_dword v{vT+2}, v{vTA}, {sr(sWS)}, s77 offen {SC}
    buffer_load_dword v{vT+3}, v{vTA}, {sr(sWS)}, s78 offen {SC}
    s_add_u32 s62, s62, 1
    s_bitcmp1_b32 s62, 21
    s_waitcnt vmcnt(0)
    v_min_u32 v11, v{vT}, v{vT+1}
    v_min3_u32 v11, v11, v{vT+2}, v{vT+3}
    v_cmp_eq_u32 vcc, 0, v11
    s_cbranch_scc1 L_window
    s_cbranch_vccnz L_poll
    L_window:
    """)
    stamp(7)
    for u in range(4):
        a(f"v_cmp_le_u32 s[{44+2*u}:{45+2*u}], v20, v{vT+u}\nv_cmp_le_u32 s[{52+2*u}:{53+2*u}], v21, v{vT+u}")
    vRk, vRe, vRa, vRp = 64, 80, 96, 72
    a("L_round:")
    for u in range(4):
        a(f"v_add_u32_sdwa v{12+u}, v22, v{vT+u} {sd} src1_sel:WORD_0\nv_lshlrev_b32 v{16+u}, 1, v{12+u}")
    for u in range(4):
        a(f"""
        s_mov_b64 exec, s[{52+2*u}:{53+2*u}]
        s_cbranch_execz L_n2_{u}
        buffer_load_dword v{vRk+4+u}, v{12+u}, {sr(sWS)}, s{80+u} offen offset:64 {SC}
        buffer_load_dwordx2 {vr(vRe+8+2*u,2)}, v{16+u}, {sr(sWS)}, s{84+u} offen offset:128 {SC}
        L_n2_{u}:
        """)
    for u in range(4):
        a(f"s_or_b64 exec, s[{44+2*u}:{45+2*u}], 1")
        a(f"buffer_load_dword v{vRk+u}, v{12+u}, {sr(sWS)}, s{80+u} offen {SC}")
    for u in range(4):
        a(f"s_or_b64 exec, s[{44+2*u}:{45+2*u}], 1")
        a(f"buffer_load_dwordx2 {vr(vRe+2*u,2)}, v{16+u}, {sr(sWS)}, s{84+u} offen {SC}")
    a(f"""
    s_mov_b64 exec, -1
    v_max_u32 v11, v{vT}, v{vT+1}
    v_max3_u32 v11, v11, v{vT+2}, v{vT+3}
    v_cmp_le_u32 s[90:91], s5, v11
    """)

    def slot_rank(j):
        a(f"""
        v_and_b32_sdwa v{vRa+j}, v{vRk+j}, v9 dst_sel:DWORD dst_unused:UNUSED_PAD src0_sel:BYTE_3 src1_sel:DWORD
        ds_add_rtn_u32 v{vRp+j}, v{vRa+j}, v8 offset:{CN2}
        v_lshlrev_b32 v{vRk+j}, 18, v{vRk+j}
        v_lshrrev_b32 v{vRk+j}, 15, v{vRk+j}
        """)

    def slot_put(j, wait=""):
        m = f"s[{44+2*j}:{45+2*j}]"
        a(f"""
        v_cmpx_gt_u32 vcc, s42, v{vRp+j}
        v_mad_u32_u24 v{vRp+j}, v{vRa+j}, s89, v{vRp+j}
        s_andn2_b64 {m}, {m}, exec
        ds_write_b32 v{vRp+j}, v{vRk+j} offset:{OFF}
        v_lshl_add_u32 v{vRa+j}, v{vRp+j}, 1, s43
        s_or_b64 s[90:91], s[90:91], {m}
        {wait}
        ds_write_b64 v{vRa+j}, {vr(vRe+2*j,2)}
        """)

    for u in range(4):
        a(f"s_mov_b64 exec, s[{44+2*u}:{45+2*u}]\ns_waitcnt vmcnt({7-u})")
        slot_rank(u)
    for u in range(4):
        a(f"s_mov_b64 exec, s[{52+2*u}:{53+2*u}]\ns_cbranch_execz L_r2_{u}")
        slot_rank(4 + u)
        a(f"L_r2_{u}:")
    a("s_waitcnt lgkmcnt(0)")
    for u in range(4):
        a(f"s_mov_b64 exec, s[{52+2*u}:{53+2*u}]\ns_cbranch_execz L_p2_{u}")
        slot_put(4 + u)
        a(f"L_p2_{u}:")
    for u in range(4):
        a(f"s_mov_b64 exec, s[{44+2*u}:{45+2*u}]")
        slot_put(u, f"s_waitcnt vmcnt({3-u})")
    a(f"""
    s_mov_b64 exec, -1
    s_cbranch_scc0 L_nomore
    ds_write_b32 v8, v8 offset:{MORE-4}
    L_nomore:
    """)
    pf(0, opt["pf3"])
    a("s_waitcnt lgkmcnt(0)\ns_barrier")
    stamp(8)

    vGA, vH, vDD, vOF = 64, 32, 96, 16
    vNA = (24, 25)
    vG2, vGM, vAE = 26, 28, 29
    vP, vNn, vRc, vF, vSS = 8, 10, 12, 112, 14
    vL4 = 30

    def gathers():
        if opt.get("nog"):
            return
        for r in range(8):
            if safe:
                a(f"v_lshrrev_b32 v{vL4}, 1, v{vN8}\nv_lshl_add_u32 v{vOF+r}, v{vOF+r}, 5, v{vL4}")
            a(f"buffer_load_dword v{vGA+2*r}, v{vOF+r}, {sr(sTB)}, 0 offen")
            a(f"buffer_load_dword v{vGA+2*r+1}, v{vOF+r}, {sr(sTB)}, 0 offen offset:{128 if safe else 4}")

    a(f"ds_read_b32 v11, v10 offset:{CN2}")
    if EARLY:
        a(f"""
        s_mov_b32 s40, 0
        s_cmp_ge_u32 s3, 12
        s_cbranch_scc0 L_earlyb
        ds_read_b128 {vr(vOF,4)}, v{vE0} offset:{OFF}
        ds_read_b128 {vr(vOF+4,4)}, v{vE0} offset:{OFF+16}
        s_waitcnt lgkmcnt(2)
        v_cmp_gt_u32 vcc, 32, v11
        s_and_b32 s40, vcc_lo, 0xff
        s_cselect_b32 s40, 0, 1
        s_waitcnt lgkmcnt(0)
        s_cbranch_scc1 L_earlyb
        """)
        gathers()
        a("L_earlyb:\ns_waitcnt lgkmcnt(0)")
    else:
        a("s_waitcnt lgkmcnt(0)")
    a(f"""
    v_min_u32 v11, s42, v11
    v_cmp_lt_u32 vcc, s6, v11
    """)
    if EARLY:
        a("s_cmp_eq_u32 s3, 0\ns_cselect_b32 s5, 0xff, 0\ns_andn2_b32 vcc_lo, vcc_lo, s5")
    a(f"""
    s_bcnt1_i32_b64 s6, vcc
    s_cbranch_scc0 L_nolev
    s_lshl_b32 s6, s6, 3
    v_mov_b32 v14, s6
    s_mov_b64 exec, 1
    ds_add_rtn_u32 v14, v10, v14 offset:{GC}
    s_mov_b64 exec, -1
    v_mbcnt_lo_u32_b32 v15, vcc_lo, 0
    v_mbcnt_hi_u32_b32 v15, vcc_hi, v15
    s_waitcnt lgkmcnt(0)
    v_readfirstlane_b32 s6, v14
    s_mov_b64 exec, vcc
    s_nop 0
    v_lshl_add_u32 v15, v15, 3, s6
    ds_write_b64 v15, v[116:117] offset:{GD}
    s_mov_b64 exec, -1
    L_nolev:
    s_sub_u32 s6, s3, {4 if EARLY else 8}
    s_cmp_lt_u32 s6, 8
    s_cbranch_scc0 L_nopad
    s_lshl_b32 s6, s6, 2
    v_add_u32 v14, 28, v11
    v_and_b32 v14, 0xffffffe0, v14
    """)
    if EARLY:
        a("s_mov_b64 exec, 0xff\nv_max_u32 v14, 32, v14\ns_mov_b64 exec, -1")
    a(f"""
    v_add_u32 v11, s6, v11
    v_cmpx_lt_u32 vcc, v11, v14
    v_add_u32 v11, v31, v11
    v_mov_b32 v14, {ZOFF}
    ds_write_b32 v11, v14 offset:{OFF}
    v_lshl_add_u32 v11, v11, 1, s43
    v_mov_b64 v[14:15], 0
    ds_write_b64 v11, v[14:15]
    s_mov_b64 exec, -1
    L_nopad:
    v_mov_b32 v10, 0
    s_waitcnt lgkmcnt(0)
    s_barrier
    """)
    stamp(9)
    stamp(14, "")
    a(f"""
    ds_read_b64 v[8:9], v{vAH}
    ds_read_b32 v11, v10 offset:{GC}
    ds_read_b32 v13, v{vAM}
    ds_read_b64 {vr(vG2,2)}, v{vAH} offset:256
    ds_read_b32 v{vGM}, v{vAM} offset:256
    v_mov_b64 {vr(vSS,2)}, 0
    """)
    if EARLY:
        a("s_cmp_eq_u32 s40, 0\ns_cbranch_scc0 L_nog0")
    a(f"""
    s_waitcnt lgkmcnt(4)
    ds_read_b128 {vr(vOF,4)}, v8 offset:{OFF}
    ds_read_b128 {vr(vOF+4,4)}, v8 offset:{OFF+16}
    s_waitcnt lgkmcnt(0)
    """)
    gathers()
    a(f"""
    L_nog0:
    s_waitcnt lgkmcnt(0)
    v_readfirstlane_b32 s41, v11
    v_add_u32 v{vNA[0]}, v9, v{vN8}
    v_mad_u32_u24 v{vAE}, v13, v{vEM}, v{vEC}
    ds_read_b64 {vr(vBO+2,2)}, v{vNA[0]}
    ds_read_b64 {vr(vEA,2)}, v{vAE}
    ds_read_b128 {vr(vOF,4)}, v{vG2} offset:{OFF}
    ds_read_b128 {vr(vOF+4,4)}, v{vG2} offset:{OFF+16}
    s_add_u32 s41, s41, {8 + 15*16}
    s_lshr_b32 s41, s41, 4
    s_sub_u32 s41, s41, s7
    s_lshr_b32 s41, s41, 4
    s_cbranch_scc0 L_mdone
    s_cmp_eq_u32 s61, 0
    s_cbranch_scc0 L_slow
    s_cmp_lt_u32 s41, 2
    s_waitcnt lgkmcnt(0)
    s_cbranch_scc1 L_tail0
    """)

    T = lambda r: vr(vDD + 2 * r, 2)
    H = lambda r: vr(vH + 2 * r, 2)
    P, Nn = vr(vP, 2), vr(vNn, 2)

    def ex(r):
        if not opt.get("noex"):
            a(f"v_exp_f32 v{vDD+2*r}, v{vDD+2*r}\nv_exp_f32 v{vDD+2*r+1}, v{vDD+2*r+1}")

    def head():
        a(f"v_mfma_f32_32x32x16_bf16 {vr(vDD,16)}, {vr(vEA,4)}, {vr(vBO,4)}, {vr(vGA,16)}")
        for r in range(8):
            a(f"v_lshlrev_b64 {vr(vH+2*r,2)}, 16, {vr(vGA+2*r,2)}")

    def fin(na):
        a(f"""
        v_cvt_f64_f32 {vr(vF,2)}, v{vNn}
        v_cvt_f64_f32 {vr(vF+2,2)}, v{vNn+1}
        ds_add_f64 v{na}, {vr(vF,2)} offset:256
        ds_add_f64 v{na}, {vr(vF+2,2)} offset:512
        """)

    def unit(par, tail):
        na, nb = vNA[par], vNA[1 - par]
        a("s_setprio 3\ns_waitcnt vmcnt(0) lgkmcnt(2)")
        head()
        if not tail:
            a(f"""
            v_add_u32 v{nb}, v{vG2+1}, v{vN8}
            v_mad_u32_u24 v{vAE}, v{vGM}, v{vEM}, v{vEC}
            s_setprio 2
            s_cmp_le_u32 s41, {opt['b1']}
            s_cbranch_scc1 L_bo{par}
            L_bob{par}:
            """)
            gathers()
            a(f"""
            ds_read_b64 {vr(vBO+2,2)}, v{nb}
            ds_read_b64 {vr(vEA,2)}, v{vAE}
            ds_read_b64 {vr(vG2,2)}, v{vAH} offset:{512+256*par}
            ds_read_b32 v{vGM}, v{vAM} offset:{512+256*par}
            """)
            if par == 1:
                a(f"v_add_u32 v{vAH}, 512, v{vAH}\nv_add_u32 v{vAM}, 512, v{vAM}")
        else:
            a("s_nop 2\ns_setprio 0")
        ex(0)
        ex(1)
        a(f"v_pk_add_f32 {P}, {T(0)}, 1.0 op_sel_hi:[1,0]")
        ex(2)
        a(f"v_pk_fma_f32 {Nn}, {H(0)}, {T(1)}, {H(0)}")
        a(f"v_pk_fma_f32 {Nn}, {H(1)}, {P}, {Nn}")
        a(f"v_pk_fma_f32 {P}, {P}, {T(1)}, {P}")
        for r in range(2, 8):
            if r == 2 and not tail:
                a(f"""
                s_waitcnt lgkmcnt(1)
                ds_read_b128 {vr(vOF,4)}, v{vG2} offset:{OFF}
                ds_read_b128 {vr(vOF+4,4)}, v{vG2} offset:{OFF+16}
                """)
            if r < 7:
                ex(r + 1)
            a(f"v_pk_fma_f32 {Nn}, {Nn}, {T(r)}, {Nn}")
            a(f"v_pk_fma_f32 {Nn}, {H(r)}, {P}, {Nn}")
            a(f"v_pk_fma_f32 {P}, {P}, {T(r)}, {P}")
        a(f"""
        v_rcp_f32 v{vRc}, v{vP}
        v_rcp_f32 v{vRc+1}, v{vP+1}
        v_pk_add_f32 {vr(vSS,2)}, {vr(vSS,2)}, {P}
        v_pk_mul_f32 {Nn}, {Nn}, {vr(vRc,2)}
        """)
        if not tail:
            a("s_sub_u32 s41, s41, 1\ns_cmp_lt_u32 s41, 2")
        fin(na)

    a("L_fast:")
    unit(0, False)
    a("s_cbranch_scc1 L_tail1")
    unit(1, False)
    a("s_cbranch_scc0 L_fast\ns_branch L_tail0")
    for par in range(2):
        a(f"""
        L_bo{par}:
        s_setprio 1
        s_cmp_gt_u32 s41, {opt["b0"]}
        s_cbranch_scc1 L_bob{par}
        s_setprio 0
        s_branch L_bob{par}
        """)
    a(f"L_tail1:\nv_mov_b32 v{vNA[0]}, v{vNA[1]}\nL_tail0:")
    unit(0, True)
    a(f"""
    L_mdone:
    v_add_f32 v{vSS}, v{vSS}, v{vSS+1}
    s_waitcnt vmcnt(0) lgkmcnt(0)
    v_mov_b32 v16, {MORE}
    ds_read_b32 v17, v16
    v_cmp_ngt_f32 vcc, 0x7e000000, v{vSS}
    s_cbranch_vccz L_sok
    ds_write_b32 v16, v16 offset:4
    L_sok:
    v_lshrrev_b32 v8, 4, v0
    v_mul_u32_u24 v9, 768, v8
    v_lshl_add_u32 v9, v{vI}, 5, v9
    v_lshlrev_b32 v10, 3, v0
    s_waitcnt lgkmcnt(0)
    v_readfirstlane_b32 s5, v17
    """)
    stamp(10)
    stamp(15, "")
    a(f"""
    s_barrier
    s_cmp_eq_u32 s5, 0
    s_cbranch_scc0 L_again
    """)
    stamp(11)
    a(f"""
    v_cmp_gt_u32 vcc, {NPB*16}, v0
    s_and_saveexec_b64 s[46:47], vcc
    s_cbranch_execz L_noout
    ds_read_b128 v[32:35], v9 offset:{NODE+256}
    ds_read_b128 v[36:39], v9 offset:{NODE+272}
    s_waitcnt lgkmcnt(0)
    """)
    for i in range(4):
        a(f"v_cvt_f32_f64 v{24+i}, {vr(32+2*i,2)}")
    for i in range(4):
        a(f"v_mul_f32 v{28+i}, {NLOG2E}, v{24+i}")
    for i in range(4):
        a(f"v_exp_f32 v{28+i}, v{28+i}")
    a("v_pk_add_f32 v[18:19], v[24:25], v[26:27]")
    a("v_pk_add_f32 v[28:29], v[28:29], 1.0 op_sel_hi:[1,0]\nv_pk_add_f32 v[30:31], v[30:31], 1.0 op_sel_hi:[1,0]")
    for i in range(4):
        a(f"v_rcp_f32 v{28+i}, v{28+i}")
    a(f"""
    v_add_f32 v18, v18, v19
    v_pk_mul_f32 v[28:29], v[28:29], v[24:25]
    v_pk_mul_f32 v[30:31], v[30:31], v[26:27]
    v_cvt_pk_bf16_f32 v28, v28, v29
    v_cvt_pk_bf16_f32 v29, v30, v31
    buffer_store_dwordx2 v[28:29], v10, {sr(sO)}, s63 offen
    v_mov_b32 v19, 0x207
    v_cmp_class_f32 vcc, v18, v19
    s_cbranch_vccz L_noout
    ds_write_b32 v16, v16 offset:4
    L_noout:
    s_mov_b64 exec, -1
    s_cmp_eq_u32 s61, 0
    s_cbranch_scc0 L_fin
    s_waitcnt lgkmcnt(0)
    s_barrier
    ds_read_b32 v17, v16 offset:4
    s_waitcnt lgkmcnt(0)
    v_readfirstlane_b32 s5, v17
    s_cmp_eq_u32 s5, {"s5" if opt.get("nog") or opt.get("noex") else 0}
    s_cbranch_scc0 L_redo
    L_fin:
    """)
    if opt.get("stamps"):
        a("s_waitcnt vmcnt(0)")
        stamp(12)
        a(f"""
        s_lshl_b32 s5, s2, 4
        s_add_u32 s5, s5, s3
        s_lshl_b32 s5, s5, 6
        s_add_u32 s5, s5, {WS_DBG}
        s_mov_b64 exec, 0xffff
        v_lshlrev_b32 v2, 2, v1
        buffer_store_dword v127, v2, {sr(sWS)}, s5 offen
        """)
    a("L_end:\ns_endpgm")
    a(f"""
    L_abort:
    s_waitcnt vmcnt(0)
    v_mov_b32 v25, {ABORT}
    ds_write_b32 v25, v25
    s_waitcnt lgkmcnt(0)
    s_endpgm
    L_redo:
    s_mov_b32 s61, 1
    s_mov_b32 s53, {NLOG2E}
    s_bfe_u32 s40, s3, 0x20001
    s_and_b32 s41, s3, 1
    v_lshlrev_b32 v10, 2, v1
    v_mov_b32 v11, 0
    ds_write_b32 v10, v11 offset:{CN2}
    s_waitcnt vmcnt(0) lgkmcnt(0)
    s_barrier
    s_branch L_job
    L_again:
    v_lshlrev_b32 v10, 2, v1
    v_mov_b32 v12, 0
    ds_write_b32 v10, v12 offset:{CN2}
    ds_write_b32 v12, v12 offset:{MORE}
    s_or_b64 s[90:91], s[44:45], s[46:47]
    """)
    for j in range(2, 8):
        a(f"s_or_b64 s[90:91], s[90:91], s[{44+2*j}:{45+2*j}]")
    a(f"""
    s_cselect_b32 s40, 0, 32
    s_add_u32 s60, s60, s40
    s_min_u32 s60, s60, {SL}
    """)
    prefill("b")
    a(f"""
    s_cmp_eq_u32 s40, 0
    s_waitcnt lgkmcnt(0)
    s_barrier
    s_cbranch_scc1 L_round
    s_branch L_window
    L_slow:
    s_waitcnt vmcnt(0)
    ds_read_b64 v[8:9], v{vAH}
    ds_read_b32 v{vGM}, v{vAM}
    s_waitcnt lgkmcnt(0)
    ds_read_b128 {vr(vOF,4)}, v8 offset:{OFF}
    ds_read_b128 {vr(vOF+4,4)}, v8 offset:{OFF+16}
    v_add_u32 v{vNA[0]}, v9, v{vN8}
    v_mad_u32_u24 v{vAE}, v{vGM}, v{vEM}, v{vEC}
    ds_read_b64 {vr(vBO+2,2)}, v{vNA[0]}
    ds_read_b64 {vr(vEA,2)}, v{vAE}
    v_add_u32 v{vAH}, 256, v{vAH}
    v_add_u32 v{vAM}, 256, v{vAM}
    s_waitcnt lgkmcnt(0)
    """)
    gathers()
    a("s_waitcnt vmcnt(0)")
    head()
    a(f"s_nop 3\nv_mov_b64 {Nn}, 0")
    for r in range(8):
        ex(r)
        a(f"s_nop 0\nv_pk_add_f32 {T(r)}, {T(r)}, 1.0 op_sel_hi:[1,0]")
        a(f"v_rcp_f32 v{vDD+2*r}, v{vDD+2*r}\nv_rcp_f32 v{vDD+2*r+1}, v{vDD+2*r+1}\ns_nop 0")
        a(f"v_pk_fma_f32 {Nn}, {H(r)}, {T(r)}, {Nn}")
    a("s_sub_u32 s41, s41, 1\ns_cmp_eq_u32 s41, 0")
    fin(vNA[0])
    a("s_cbranch_scc0 L_slow\ns_branch L_mdone")
    return a.text()


def kd(name, vgpr):
    return f""".p2align 6
.amdhsa_kernel {name}
  .amdhsa_next_free_vgpr {vgpr}
  .amdhsa_next_free_sgpr 96
  .amdhsa_accum_offset {vgpr}
  .amdhsa_group_segment_fixed_size 0
  .amdhsa_kernarg_size 80
  .amdhsa_user_sgpr_count 2
  .amdhsa_user_sgpr_kernarg_segment_ptr 1
  .amdhsa_system_sgpr_workgroup_id_x 1
.end_amdhsa_kernel
"""


def gen(opt):
    t = kernel(opt)
    ref = open(f"cdna_kernels/{NAME}.s.ref").read().split("\n")
    out = "\n".join(ref[:11]) + "\n"
    out += f"; @launch grid=(256,1,1) block=(1024,1,1) lds={LDS}\n"
    out += '.amdgcn_target "amdgcn-amd-amdhsa--gfx950"\n.text\n'
    nm = NAME + "_kernel"
    out += f".globl {nm}\n.p2align 8\n.type {nm},@function\n" + t
    out += '.section .rodata,"a"\n' + kd(nm, 128)
    return out


if __name__ == "__main__":
    opt = {}
    for x in sys.argv[2:]:
        k, _, v = x.partition("=")
        opt[k] = int(v) if v else 1
    open(sys.argv[1], "w").write(gen(opt))
```
